```python
import torch

def _softmax(x, axis=-1):
    return torch.softmax(x, dim=axis)
def _gelu(x):
    return torch.nn.functional.gelu(x, approximate="tanh")
def _silu(x):
    return torch.nn.functional.silu(x)
def _sigmoid(x):
    return torch.sigmoid(x)
def _layernorm(x, axis=-1, eps=1e-5):
    m = x.mean(dim=axis, keepdim=True)
    v = x.var(dim=axis, keepdim=True, unbiased=False)
    return (x - m) / torch.sqrt(v + eps)
def _scatter_add(tgt, idx, src, axis=0):
    return tgt.clone().index_add_(axis, idx, src)
def _segment_sum(src, seg, n):
    out = torch.zeros((n,) + src.shape[1:], dtype=src.dtype)
    return out.index_add_(0, seg, src)
def _pad(x, pw):
    flat = tuple(v for pair in reversed(pw) for v in pair)
    return torch.nn.functional.pad(x, flat)

kernel_name = 'recurrent_scan__mha_block_cached__dense_activation_silu__prompt'

def setup_inputs():

    _w = (lambda a: (lambda t: t.to(torch.bfloat16) if t.is_floating_point() else t)(torch.as_tensor(a)))
    def _A_setup():
        B, Sq, D = 1, 2048, 1024
        H, Sk, Dh = 32, 2048, 128
        return {
            "x": _w((lambda *s: torch.randn(*s, dtype=torch.bfloat16) * 0.05)(B, Sq, D)),
            "k_cache": _w((lambda *s: torch.randn(*s, dtype=torch.bfloat16) * 3.2)(B, H, Sk, Dh)),
            "v_cache": _w((lambda *s: torch.randn(*s, dtype=torch.bfloat16) * 3.2)(B, H, Sk, Dh)),
            "wq": _w((lambda *s: torch.randn(*s, dtype=torch.bfloat16) * 3.2)(D, H * Dh) * (D ** -0.5)),
            "wo": _w((lambda *s: torch.randn(*s, dtype=torch.bfloat16) * 3.2)(H * Dh, D) * ((H * Dh) ** -0.5)),
        }
    _A_in = _A_setup()

    def _B_setup():
        B, S, D, F = 1, 2048, 1024, 3584
        return {
            "x": _w((lambda *s: torch.randn(*s, dtype=torch.bfloat16) * 0.05)(B, S, D)),
            "w1": _w((lambda *s: torch.randn(*s, dtype=torch.bfloat16) * 3.2)(D, F) * (D ** -0.5)),
            "w2": _w((lambda *s: torch.randn(*s, dtype=torch.bfloat16) * 0.4)(F, D) * (F ** -0.5)),
        }
    _B_in = _B_setup()

    return {
        "A_x": _A_in["x"],
        "A_k_cache": _A_in["k_cache"],
        "A_v_cache": _A_in["v_cache"],
        "A_wq": _A_in["wq"],
        "A_wo": _A_in["wo"],
        "B_x": _B_in["x"],
        "B_w1": _B_in["w1"],
        "B_w2": _B_in["w2"],
    }

def reference(A_x, A_k_cache, A_v_cache, A_wq, A_wo, B_x, B_w1, B_w2):
    def _A_ref(x, k_cache, v_cache, wq, wo):
        B, Sq, D = x.shape
        H, Dh = 32, 128
        q = (lambda x, *d: x.permute(*d))((x @ wq).reshape(B, Sq, H, Dh), 0, 2, 1, 3)
        scores = torch.einsum("bhqd,bhkd->bhqk", q, k_cache) * (Dh ** -0.5)
        p = _softmax(scores, axis=-1)
        o = torch.einsum("bhqk,bhkd->bhqd", p, v_cache)
        return (lambda x, *d: x.permute(*d))(o, 0, 2, 1, 3).reshape(B, Sq, H * Dh) @ wo

    def _B_ref(x, w1, w2):
        h = torch.einsum("bsd,df->bsf", x, w1)
        h = _silu(h)
        out = torch.einsum("bsf,fd->bsd", h, w2)
        return out

    x = A_x
    xn = _layernorm(x, axis=-1)
    s = _A_ref(xn, A_k_cache, A_v_cache, A_wq, A_wo)
    g = _silu(_B_ref(xn, B_w1, B_w2))
    return x + s * g
```

```python
import sys, struct, math

NAME = "recurrent_scan__mha_block_cached__dense_activation_silu__prompt"

XN_OFF = 0
Q_OFF = 4 << 20
H_OFF = 20 << 20
O_OFF = 36 << 20
G_OFF = 52 << 20
XN_SZ, Q_SZ, H_SZ, O_SZ, G_SZ = 4 << 20, 16 << 20, 64 * 224 * 1024, 16 << 20, 4 << 20

LOG2E = 1.4426950408889634
QSCALE = (128 ** -0.5) * LOG2E


def f32(x):
    return "0x%08x" % struct.unpack("<I", struct.pack("<f", x))[0]


CFG = dict(mimic=0, slow_only=1)


class K:
    def __init__(self, name):
        self.name = name
        self.L = []

    def __call__(self, s):
        self.L.append("    " + s)

    def lab(self, s):
        self.L.append(s + ":")

    def head(self):
        n = self.name
        return f".globl {n}\n.p2align 8\n.type {n},@function\n{n}:"

    def text(self):
        return self.head() + "\n" + "\n".join(self.L)

    def kd(self, vgpr, sgpr, accum):
        return f""".p2align 6
.amdhsa_kernel {self.name}
  .amdhsa_next_free_vgpr {vgpr}
  .amdhsa_next_free_sgpr {sgpr}
  .amdhsa_accum_offset {accum}
  .amdhsa_group_segment_fixed_size 0
  .amdhsa_kernarg_size 88
  .amdhsa_user_sgpr_count 2
  .amdhsa_user_sgpr_kernarg_segment_ptr 1
  .amdhsa_system_sgpr_workgroup_id_x 1
.end_amdhsa_kernel"""

    def csel2(self, d, a, b):
        self(f"s_mov_b32 s{d}, {b}")
        self(f"s_cselect_b32 s{d}, {a}, s{d}")

    def srd(self, d, p, const=0, soff=None, nrec=0):
        a = self
        if const:
            a(f"s_add_u32 s{d}, s{p}, {const}")
            a(f"s_addc_u32 s{d+1}, s{p+1}, 0")
        else:
            a(f"s_mov_b32 s{d}, s{p}")
            a(f"s_mov_b32 s{d+1}, s{p+1}")
        if soff is not None:
            a(f"s_add_u32 s{d}, s{d}, {soff}")
            a(f"s_addc_u32 s{d+1}, s{d+1}, 0")
        a(f"s_and_b32 s{d+1}, s{d+1}, 0xffff")
        a(f"s_mov_b32 s{d+2}, {nrec}")
        a(f"s_mov_b32 s{d+3}, 0x20000")


def vr(b, n):
    return f"v[{b}:{b+n-1}]"


def ar(b, n):
    return f"a[{b}:{b+n-1}]"


def MFMA(d, a, b, c):
    return f"v_mfma_f32_32x32x16_bf16 {d}, {a}, {b}, {c}"


def weave(k, mfmas, fill):
    for i, m in enumerate(mfmas):
        k(m)
        for s in fill.get(i, []):
            k(s)


def add_fill(fill, i, s):
    fill.setdefault(i, []).append(s)


def gen_ln():
    k = K("ln_kernel")
    k("s_cmp_ge_u32 s2, 256")
    k("s_cbranch_scc1 ln_done")
    k("s_load_dwordx2 s[4:5], s[0:1], 0")
    k("s_load_dwordx2 s[6:7], s[0:1], 80")
    k("v_lshrrev_b32 v1, 5, v0")
    k("v_and_b32 v2, 31, v0")
    k("s_lshl_b32 s3, s2, 3")
    k("v_add_u32 v1, s3, v1")
    k("v_lshlrev_b32 v3, 11, v1")
    k("v_lshl_add_u32 v3, v2, 4, v3")
    k("v_lshrrev_b32 v4, 5, v1")
    k("v_lshlrev_b32 v4, 16, v4")
    k("v_lshrrev_b32 v5, 1, v2")
    k("v_lshl_add_u32 v4, v5, 10, v4")
    k("v_and_b32 v5, 1, v2")
    k("v_lshl_add_u32 v4, v5, 9, v4")
    k("v_and_b32 v5, 31, v1")
    k("v_lshl_add_u32 v4, v5, 4, v4")
    k("s_waitcnt lgkmcnt(0)")
    k.srd(8, 4, nrec=2048 * 2048)
    k.srd(12, 6, const=XN_OFF, nrec=XN_SZ)
    for i in range(4):
        k(f"buffer_load_dwordx4 {vr(8+4*i,4)}, v3, s[8:11], 0 offen offset:{512*i}")
    k("s_mov_b32 s16, 16384")
    k("s_mov_b32 s17, 32768")
    k("s_mov_b32 s18, 49152")
    k(f"s_mov_b32 s19, {f32(1.0/1024)}")
    for i in range(4):
        k(f"s_waitcnt vmcnt({3-i})")
        for r in range(4):
            R = 8 + 4 * i + r
            k(f"v_lshlrev_b32 v{32+8*i+2*r}, 16, v{R}")
            k(f"v_and_b32 v{33+8*i+2*r}, 0xffff0000, v{R}")

    def reduce32(s, t):
        for p in ("quad_perm:[1,0,3,2]", "quad_perm:[2,3,0,1]", "row_half_mirror", "row_mirror"):
            k("s_nop 1")
            k(f"v_add_f32_dpp v{s}, v{s}, v{s} {p} row_mask:0xf bank_mask:0xf")
        k(f"v_mov_b32 v{t}, v{s}")
        k("s_nop 1")
        k(f"v_permlane16_swap_b32 v{s}, v{t}")
        k("s_nop 1")
        k(f"v_add_f32 v{s}, v{s}, v{t}")

    for i in range(4):
        k(f"v_add_f32 v{24+i}, v{32+i}, v{36+i}")
    for j in range(8, 32, 4):
        for i in range(4):
            k(f"v_add_f32 v{24+i}, v{24+i}, v{32+j+i}")
    k("v_add_f32 v24, v24, v25")
    k("v_add_f32 v26, v26, v27")
    k("v_add_f32 v24, v24, v26")
    reduce32(24, 25)
    k("v_mul_f32 v24, s19, v24")
    for i in range(4):
        k(f"v_sub_f32 v{64+i}, v{32+i}, v24")
        k(f"v_mul_f32 v{26+i}, v{64+i}, v{64+i}")
    for j in range(4, 32):
        k(f"v_sub_f32 v{64+(j&3)}, v{32+j}, v24")
        k(f"v_fmac_f32 v{26+(j&3)}, v{64+(j&3)}, v{64+(j&3)}")
    k("v_add_f32 v26, v26, v27")
    k("v_add_f32 v28, v28, v29")
    k("v_add_f32 v26, v26, v28")
    reduce32(26, 27)
    k("v_mul_f32 v26, s19, v26")
    k("v_cvt_pk_bf16_f32 v24, v24, v26")
    k("v_and_b32 v26, 0xffff0000, v24")
    k("v_lshlrev_b32 v24, 16, v24")
    k(f"v_add_f32 v26, {f32(1e-5)}, v26")
    k("v_cvt_pk_bf16_f32 v26, v26, v26")
    k("v_lshlrev_b32 v26, 16, v26")
    k("v_sqrt_f32 v26, v26")
    k("s_nop 0")
    k("v_cvt_pk_bf16_f32 v26, v26, v26")
    k("v_lshlrev_b32 v26, 16, v26")
    k("v_rcp_f32 v26, v26")
    for i in range(4):
        for r in range(4):
            a, b = 32 + 8 * i + 2 * r, 33 + 8 * i + 2 * r
            k(f"v_sub_f32 v{a}, v{a}, v24")
            k(f"v_sub_f32 v{b}, v{b}, v24")
            k(f"v_cvt_pk_bf16_f32 v{b}, v{a}, v{b}")
            k(f"v_lshlrev_b32 v{a}, 16, v{b}")
            k(f"v_and_b32 v{b}, 0xffff0000, v{b}")
            k(f"v_mul_f32 v{a}, v{a}, v26")
            k(f"v_mul_f32 v{b}, v{b}, v26")
            k(f"v_cvt_pk_bf16_f32 v{8+4*i+r}, v{a}, v{b}")
        so = ["0", "s16", "s17", "s18"][i]
        k(f"buffer_store_dwordx4 {vr(8+4*i,4)}, v4, s[12:15], {so} offen")
    k.lab("ln_done")
    k("s_endpgm")
    return k, k.kd(72, 24, 72)


def lane_fields(k, vl, vrr, vc, vg1, vh, sw):
    k(f"v_and_b32 v{vl}, 63, v0")
    k(f"v_lshrrev_b32 v{vh}, 6, v0")
    k(f"v_bfe_u32 v{vrr}, v0, 2, 2")
    k(f"v_readfirstlane_b32 s{sw}, v{vh}")
    k(f"v_and_b32 v{vc}, 3, v0")
    k(f"v_bfe_u32 v{vg1}, v0, 4, 1")
    k(f"v_bfe_u32 v{vh}, v0, 5, 1")


def silu_pair(k, a, b, t0, t1, sneg):
    k(f"v_mul_f32 v{t0}, s{sneg}, v{a}")
    k(f"v_mul_f32 v{t1}, s{sneg}, v{b}")
    k(f"v_exp_f32 v{t0}, v{t0}")
    k(f"v_exp_f32 v{t1}, v{t1}")
    k(f"v_add_f32 v{t0}, 1.0, v{t0}")
    k(f"v_add_f32 v{t1}, 1.0, v{t1}")
    k(f"v_rcp_f32 v{t0}, v{t0}")
    k(f"v_rcp_f32 v{t1}, v{t1}")
    k(f"v_mul_f32 v{a}, v{a}, v{t0}")
    k(f"v_mul_f32 v{b}, v{b}, v{t1}")


def gen_gemm1():
    k = K("gemm1_kernel")
    sW, sMT, sNT, sLDW, sISQ = 20, 21, 22, 23, 24
    sW4K, sSOX, sSOW, sCNT, sSTEPW = 25, 26, 27, 28, 29
    SX, SWT, SO = 8, 12, 16
    sSTRM, sT0, sT1, sC = 30, 31, 32, 33
    vl, vrr, vc, vg1, vh = 1, 2, 3, 4, 5
    vXrd = [10, 11]
    vWrd = [[12, 13, 14, 15], [16, 17, 18, 19]]
    vXdma = [20, 21]
    vWdma = [22, 23, 24, 25]
    vOut = 26
    FW = [64, 96]
    FX = [80, 112]

    k("s_cmp_ge_u32 s2, 240")
    k("s_cbranch_scc1 gemm1_done")
    k("s_load_dwordx2 s[4:5], s[0:1], 24")
    k("s_load_dwordx2 s[6:7], s[0:1], 48")
    k("s_load_dwordx2 s[34:35], s[0:1], 80")
    lane_fields(k, vl, vrr, vc, vg1, vh, sW)
    k("s_and_b32 s3, s2, 7")
    k("s_mul_i32 s3, s3, 30")
    k(f"s_lshr_b32 s{sT0}, s2, 3")
    k(f"s_add_u32 s3, s3, s{sT0}")
    k(f"s_and_b32 s{sMT}, s3, 7")
    k(f"s_lshr_b32 s{sNT}, s3, 3")
    k(f"s_cmp_lt_u32 s{sNT}, 16")
    k(f"s_cselect_b32 s{sISQ}, 1, 0")
    k.csel2(sLDW, 8192, 7168)
    k.csel2(sT1, 8388608, 7340032)
    k(f"s_cselect_b32 s{sT0}, 0, 16")
    k(f"s_sub_u32 s{sNT}, s{sNT}, s{sT0}")
    k(f"s_lshl_b32 s{sW4K}, s{sW}, 12")
    k(f"s_lshl_b32 s{sSTEPW}, s{sLDW}, 5")
    k("s_waitcnt lgkmcnt(0)")
    k(f"s_cmp_eq_u32 s{sISQ}, 1")
    k("s_cselect_b32 s4, s4, s6")
    k("s_cselect_b32 s5, s5, s7")
    k(f"s_lshl_b32 s{sT0}, s{sNT}, 9")
    k(f"s_sub_u32 s{sT1}, s{sT1}, s{sT0}")
    k.srd(SWT, 4, soff=f"s{sT0}", nrec=f"s{sT1}")
    k(f"s_lshl_b32 s{sT0}, s{sMT}, 19")
    k(f"s_sub_u32 s{sT1}, {XN_SZ}, s{sT0}")
    k.srd(SX, 34, const=XN_OFF, soff=f"s{sT0}", nrec=f"s{sT1}")
    k(f"v_lshlrev_b32 v6, 4, v{vl}")
    k(f"s_lshl_b32 s{sT0}, s{sW}, 17")
    k(f"v_add_u32 v{vXdma[0]}, s{sT0}, v6")
    k(f"v_add_u32 v{vXdma[1]}, {65536-2048}, v{vXdma[0]}")
    k(f"v_and_b32 v7, 31, v{vl}")
    for p in range(4):
        k(f"s_lshl_b32 s{sT0}, s{sW}, 3")
        k(f"s_add_u32 s{sT0}, s{sT0}, {2*p}")
        k(f"v_add_u32 v8, s{sT0}, v{vh}")
        k(f"v_and_b32 v9, 3, v8")
        k(f"v_lshlrev_b32 v9, 2, v9")
        k(f"v_xor_b32 v9, v9, v7")
        k(f"v_mul_lo_u32 v8, v8, s{sLDW}")
        k(f"v_lshl_add_u32 v8, v9, 4, v8")
        k(f"v_subrev_u32 v{vWdma[p]}, {1024*p}, v8")
    k(f"s_mov_b32 s{sSOX}, 0")
    k(f"s_mov_b32 s{sSOW}, 0")

    def dma_x(slot, i):
        mb2, s = i >> 1, i & 1
        return f"buffer_load_dwordx4 v{vXdma[mb2]}, s[{SX}:{SX+3}], s{sSOX} offen offset:{mb2*2048+s*1024} lds"

    def dma_w(slot, p):
        return f"buffer_load_dwordx4 v{vWdma[p]}, s[{SWT}:{SWT+3}], s{sSOW} offen offset:{p*1024} lds"

    def m0x(slot):
        return f"s_add_u32 m0, s{sW4K}, {slot*32768}"

    def m0w(slot):
        return f"s_add_u32 m0, s{sW4K}, {slot*32768+16384}"

    adv = [f"s_add_u32 s{sSOX}, s{sSOX}, 2048", f"s_add_u32 s{sSOW}, s{sSOW}, s{sSTEPW}"]
    for slot in range(4):
        k(m0x(slot)); k("s_nop 0")
        for i in range(4): k(dma_x(slot, i))
        k(m0w(slot)); k("s_nop 0")
        for p in range(4): k(dma_w(slot, p))
        for s in adv: k(s)
    k(f"s_and_b32 s{sT0}, s{sW}, 1")
    k(f"s_lshl_b32 s{sT0}, s{sT0}, 13")
    k(f"v_add_u32 v{vXrd[0]}, s{sT0}, v6")
    k(f"v_add_u32 v{vXrd[1]}, 0x10000, v{vXrd[0]}")
    k(f"s_lshr_b32 s{sT0}, s{sW}, 1")
    k(f"s_lshl_b32 s{sT0}, s{sT0}, 8")
    k(f"s_add_u32 s{sT0}, s{sT0}, 16384")
    k(f"v_lshl_add_u32 v7, v{vh}, 3, v{vrr}")
    k(f"v_lshlrev_b32 v7, 9, v7")
    k(f"v_add_u32 v7, s{sT0}, v7")
    k(f"v_lshl_add_u32 v7, v{vg1}, 5, v7")
    k(f"v_lshl_add_u32 v7, v{vc}, 3, v7")
    for i in range(4):
        k(f"v_xor_b32 v8, {i}, v{vrr}")
        k(f"v_lshl_add_u32 v{vWrd[0][i]}, v8, 6, v7")
        k(f"v_add_u32 v{vWrd[1][i]}, 0x10000, v{vWrd[0][i]}")
    for i in range(256):
        k(f"v_accvgpr_write_b32 a{i}, 0")

    def reads(slot, s, fs):
        hi, lo = slot >> 1, slot & 1
        R = []
        for i in range(4):
            R.append(f"ds_read_b128 {vr(FX[fs]+4*i,4)}, v{vXrd[hi]} offset:{lo*32768+i*2048+s*1024}")
            for q2 in range(2):
                R.append(f"ds_read_b64_tr_b16 {vr(FW[fs]+4*i+2*q2,2)}, v{vWrd[hi][i]} offset:{lo*32768+s*8192+q2*2048}")
        return R

    def mfmas(fs):
        M = []
        for nb in range(4):
            for mb in range(4):
                d = ar((nb * 4 + mb) * 16, 16)
                M.append(MFMA(d, vr(FW[fs] + 4 * nb, 4), vr(FX[fs] + 4 * mb, 4), d))
        return M

    def phase(fs, rd, extra):
        fill = {}
        for i, r in enumerate(rd):
            add_fill(fill, i // 2 if False else i, r)
        for pos, s in extra:
            add_fill(fill, pos, s)
        weave(k, mfmas(fs), fill)

    k("s_waitcnt vmcnt(24)")
    k("s_barrier")
    for r in reads(0, 0, 0): k(r)
    k(f"s_mov_b32 s{sCNT}, 0")
    k("s_waitcnt lgkmcnt(0)")
    phase(0, reads(0, 1, 1), [])
    k.lab("gemm1_loop")
    k(f"s_cmp_eq_u32 s{sCNT}, 7")
    k(f"s_cselect_b32 s{SX+2}, 0, s{SX+2}")
    k(f"s_cselect_b32 s{SWT+2}, 0, s{SWT+2}")
    for u in range(4):
        k("s_waitcnt vmcnt(16) lgkmcnt(0)")
        k("s_barrier")
        ex = [(0, m0x(u)), (2, dma_x(u, 0)), (6, dma_x(u, 1)), (10, dma_x(u, 2)), (14, dma_x(u, 3))]
        phase(1, reads((u + 1) & 3, 0, 0), ex)
        if u == 3:
            k(f"s_cmp_eq_u32 s{sCNT}, 7")
            k("s_cbranch_scc1 gemm1_epi")
        k("s_waitcnt lgkmcnt(0)")
        ex = [(0, m0w(u)), (2, dma_w(u, 0)), (6, dma_w(u, 1)), (10, dma_w(u, 2)), (14, dma_w(u, 3)),
              (15, adv[0]), (15, adv[1])]
        phase(0, reads((u + 1) & 3, 1, 1), ex)
    k(f"s_add_u32 s{sCNT}, s{sCNT}, 1")
    k("s_branch gemm1_loop")

    k.lab("gemm1_epi")
    k(f"s_and_b32 s{sT0}, s{sW}, 1")
    k(f"s_lshl_b32 s{sT0}, s{sT0}, 2")
    k(f"s_lshl_b32 s{sT1}, s{sMT}, 3")
    k(f"s_add_u32 s{sT0}, s{sT0}, s{sT1}")
    k(f"s_lshr_b32 s{sT1}, s{sW}, 1")
    k(f"s_cmp_eq_u32 s{sISQ}, 1")
    k("s_cbranch_scc0 gemm1_epi_h")
    k(f"s_lshl_b32 s3, s{sNT}, 1")
    k(f"s_add_u32 s3, s3, s{sT1}")
    k("s_lshl_b32 s3, s3, 6")
    k(f"s_add_u32 s3, s3, s{sT0}")
    k("s_lshl_b32 s3, s3, 13")
    k(f"s_sub_u32 s{sT1}, {Q_SZ}, s3")
    k.srd(SO, 34, const=Q_OFF, soff="s3", nrec=f"s{sT1}")
    k(f"s_mov_b32 s{sC}, {f32(1.0 if CFG['mimic'] else QSCALE)}")
    k("s_nop 7")
    for mb in range(4):
        for nb in range(4):
            base = (nb * 4 + mb) * 16
            T = 128 + ((mb * 4 + nb) & 1) * 32
            for r in range(16):
                k(f"v_accvgpr_read_b32 v{T+r}, a{base+r}")
            for r in range(16):
                k(f"v_mul_f32 v{T+r}, s{sC}, v{T+r}")
            for r in range(8):
                k(f"v_cvt_pk_bf16_f32 v{T+16+r}, v{T+2*r}, v{T+2*r+1}")
            k("s_nop 1")
            for c in range(2):
                k(f"v_permlane32_swap_b32 v{T+16+4*c}, v{T+16+4*c+2}")
                k(f"v_permlane32_swap_b32 v{T+16+4*c+1}, v{T+16+4*c+3}")
            j = 2 * nb
            k(f"s_mov_b32 s{sT0}, {mb*8192+(j>>2)*4096}")
            for c in range(2):
                k(f"buffer_store_dwordx4 {vr(T+16+4*c,4)}, v6, s[{SO}:{SO+3}], s{sT0} offen offset:{((j+c)&3)*1024}")
    k("s_endpgm")
    k.lab("gemm1_epi_h")
    k(f"s_mul_i32 s3, s{sT0}, 224")
    k(f"s_lshl_b32 s{sT0}, s{sNT}, 4")
    k(f"s_add_u32 s3, s3, s{sT0}")
    k(f"s_lshl_b32 s{sT1}, s{sT1}, 3")
    k(f"s_add_u32 s3, s3, s{sT1}")
    k("s_lshl_b32 s3, s3, 10")
    k(f"s_sub_u32 s{sT1}, {H_SZ}, s3")
    k.srd(SO, 34, const=H_OFF, soff="s3", nrec=f"s{sT1}")
    k(f"s_mov_b32 s{sC}, {f32(-LOG2E)}")
    k("s_nop 7")
    for mb in range(4):
        for nb in range(4):
            base = (nb * 4 + mb) * 16
            T = 128 + ((mb * 4 + nb) & 1) * 32
            for r in range(16):
                k(f"v_accvgpr_read_b32 v{T+r}, a{base+r}")
            for r in range(0, 16, 2):
                silu_pair(k, T + r, T + r + 1, 192 + (r & 2), 193 + (r & 2), sC)
            for r in range(8):
                k(f"v_cvt_pk_bf16_f32 v{T+16+r}, v{T+2*r}, v{T+2*r+1}")
            j = 2 * nb
            k(f"s_mov_b32 s{sT0}, {mb*224*1024+(j>>2)*4096}")
            for c in range(2):
                k(f"buffer_store_dwordx4 {vr(T+16+4*c,4)}, v6, s[{SO}:{SO+3}], s{sT0} offen offset:{((j+c)&3)*1024}")
    k.lab("gemm1_done")
    k("s_endpgm")
    return k, k.kd(512, 40, 256)


def gen_attn():
    k = K("attn_kernel")
    sW, sHEAD, sQB = 20, 21, 22
    sW4K, sSO, sCNT = 25, 26, 28
    SK, SV, SQ, SO = 8, 12, 16, 36
    sT0, sT1, sC, sC2 = 31, 32, 33, 30
    vl, vrr, vc, vg1, vh = 1, 2, 3, 4, 5
    vL16 = 6
    vKrd = list(range(10, 18))
    vVrd = list(range(18, 22))
    vKdma = list(range(22, 26))
    vVdma = 26
    vM = [28, 29]
    vLs = [30, 31]
    S = lambda kb, qb: 64 + (kb * 2 + qb) * 16
    P = lambda qb, kk: 128 + (qb * 4 + kk) * 4
    O = lambda db, qb: (qb * 4 + db) * 16
    Q = lambda qb, j: 128 + (qb * 8 + j) * 4
    KB, VB = 0, 65536

    k("s_cmp_ge_u32 s2, 256")
    k("s_cbranch_scc1 attn_done")
    k("s_load_dwordx4 s[4:7], s[0:1], 8")
    k("s_load_dwordx2 s[34:35], s[0:1], 80")
    lane_fields(k, vl, vrr, vc, vg1, vh, sW)
    k("s_and_b32 s3, s2, 7")
    k("s_lshl_b32 s3, s3, 2")
    k(f"s_lshr_b32 s{sT0}, s2, 6")
    k(f"s_add_u32 s{sHEAD}, s3, s{sT0}")
    k(f"s_bfe_u32 s{sQB}, s2, 0x30003")
    k(f"s_lshl_b32 s{sW4K}, s{sW}, 12")
    k(f"v_lshlrev_b32 v{vL16}, 4, v{vl}")
    k("s_waitcnt lgkmcnt(0)")
    k(f"s_lshl_b32 s{sT0}, s{sHEAD}, 19")
    k.srd(SK, 4, soff=f"s{sT0}", nrec=524288)
    k.srd(SV, 6, soff=f"s{sT0}", nrec=524288)
    k(f"s_lshl_b32 s3, s{sHEAD}, 6")
    k(f"s_lshl_b32 s{sT0}, s{sQB}, 3")
    k(f"s_add_u32 s3, s3, s{sT0}")
    k(f"s_lshl_b32 s{sT0}, s{sW}, 1")
    k(f"s_add_u32 s3, s3, s{sT0}")
    k("s_lshl_b32 s3, s3, 13")
    k.srd(SQ, 34, const=Q_OFF, soff="s3", nrec=16384)
    for qb in range(2):
        for j in range(8):
            if (j & 3) == 0:
                k(f"s_mov_b32 s{sT0}, {qb*8192+(j>>2)*4096}")
            k(f"buffer_load_dwordx4 {ar(Q(qb,j),4)}, v{vL16}, s[{SQ}:{SQ+3}], s{sT0} offen offset:{(j&3)*1024}")
    k(f"s_lshl_b32 s3, s{sQB}, 3")
    k(f"s_lshl_b32 s{sT0}, s{sW}, 1")
    k(f"s_add_u32 s3, s3, s{sT0}")
    k("s_lshl_b32 s3, s3, 8")
    k(f"s_lshl_b32 s{sT0}, s{sHEAD}, 3")
    k(f"s_add_u32 s3, s3, s{sT0}")
    k("s_lshl_b32 s3, s3, 10")
    k(f"s_sub_u32 s{sT1}, {O_SZ}, s3")
    k.srd(SO, 34, const=O_OFF, soff="s3", nrec=f"s{sT1}")
    k(f"v_lshrrev_b32 v7, 4, v{vl}")
    k(f"v_and_b32 v8, 15, v{vl}")
    k(f"s_lshl_b32 s{sT0}, s{sW}, 12")
    k(f"v_lshlrev_b32 v9, 8, v7")
    k(f"v_add_u32 v9, s{sT0}, v9")
    for p in range(4):
        k(f"v_add_u32 v27, {4*p}, v7")
        k(f"v_xor_b32 v27, v27, v8")
        k(f"v_lshl_add_u32 v{vKdma[p]}, v27, 4, v9")
    k(f"v_lshlrev_b32 v27, 2, v7")
    k(f"v_xor_b32 v27, v27, v8")
    k(f"v_lshl_add_u32 v{vVdma}, v27, 4, v9")
    k(f"v_and_b32 v7, 31, v{vl}")
    k(f"v_lshlrev_b32 v9, 8, v7")
    for j in range(8):
        k(f"v_add_u32 v27, {2*j}, v{vh}")
        k(f"v_xor_b32 v27, v27, v8")
        k(f"v_lshl_add_u32 v{vKrd[j]}, v27, 4, v9")
    k(f"v_lshl_add_u32 v7, v{vh}, 2, v{vrr}")
    k(f"v_lshlrev_b32 v7, 8, v7")
    k(f"v_add_u32 v7, {VB}, v7")
    k(f"v_lshl_add_u32 v7, v{vg1}, 5, v7")
    k(f"v_lshl_add_u32 v7, v{vc}, 3, v7")
    for db in range(4):
        k(f"v_xor_b32 v27, {db}, v{vrr}")
        k(f"v_lshl_add_u32 v{vVrd[db]}, v27, 6, v7")

    def dma_k(p):
        return f"buffer_load_dwordx4 v{vKdma[p]}, s[{SK}:{SK+3}], s{sSO} offen offset:{p*1024} lds"

    def dma_v(p):
        return f"buffer_load_dwordx4 v{vVdma}, s[{SV}:{SV+3}], s{sSO} offen offset:{p*1024} lds"

    k.lab("attn_slow")
    for i in range(128):
        k(f"v_accvgpr_write_b32 a{i}, 0")
    for qb in range(2):
        k(f"v_mov_b32 v{vM[qb]}, {f32(-3.0e38)}")
        k(f"v_mov_b32 v{vLs[qb]}, 0")
    k(f"s_mov_b32 s{sSO}, 0")
    k(f"s_mov_b32 s{sC}, {f32(128**-0.5)}")
    k(f"s_mov_b32 s{sC2}, {f32(LOG2E)}")
    k.lab("attn_slow_loop")
    k("s_barrier")
    k(f"s_add_u32 m0, s{sW4K}, {KB}")
    k("s_nop 0")
    for p in range(4): k(dma_k(p))
    k(f"s_add_u32 m0, s{sW4K}, {VB}")
    k("s_nop 0")
    for p in range(4): k(dma_v(p))
    k("s_waitcnt vmcnt(0)")
    k("s_barrier")
    F = 160
    for kb in range(2):
        for j in range(8):
            k(f"ds_read_b128 {vr(F+4*j,4)}, v{vKrd[j]} offset:{kb*8192}")
        k("s_waitcnt lgkmcnt(0)")
        for j in range(8):
            for qb in range(2):
                d = vr(S(kb, qb), 16)
                k(MFMA(d, vr(F + 4 * j, 4), ar(Q(qb, j), 4), "0" if j == 0 else d))
    k("s_nop 15")
    for qb in range(2):
        regs = [S(0, qb) + r for r in range(16)] + [S(1, qb) + r for r in range(16)]
        if CFG["mimic"]:
            for i in range(0, 32, 2):
                a, b = regs[i], regs[i + 1]
                k(f"v_cvt_pk_bf16_f32 v{b}, v{a}, v{b}")
                k(f"v_lshlrev_b32 v{a}, 16, v{b}")
                k(f"v_and_b32 v{b}, 0xffff0000, v{b}")
                k(f"v_mul_f32 v{a}, s{sC}, v{a}")
                k(f"v_mul_f32 v{b}, s{sC}, v{b}")
                k(f"v_cvt_pk_bf16_f32 v{b}, v{a}, v{b}")
                k(f"v_lshlrev_b32 v{a}, 16, v{b}")
                k(f"v_and_b32 v{b}, 0xffff0000, v{b}")
                k(f"v_mul_f32 v{a}, s{sC2}, v{a}")
                k(f"v_mul_f32 v{b}, s{sC2}, v{b}")
        k(f"v_max3_f32 v32, v{regs[0]}, v{regs[1]}, v{vM[qb]}")
        for i in range(2, 32, 2):
            k(f"v_max3_f32 v32, v{regs[i]}, v{regs[i+1]}, v32")
        k("v_mov_b32 v33, v32")
        k("s_nop 1")
        k("v_permlane32_swap_b32 v32, v33")
        k("s_nop 1")
        k("v_max_f32 v32, v32, v33")
        k(f"v_sub_f32 v33, v{vM[qb]}, v32")
        k("v_exp_f32 v33, v33")
        k(f"v_mov_b32 v{vM[qb]}, v32")
        k(f"v_mul_f32 v{vLs[qb]}, v{vLs[qb]}, v33")
        for r in regs:
            k(f"v_sub_f32 v{r}, v{r}, v32")
        for r in regs:
            k(f"v_exp_f32 v{r}, v{r}")
        k("s_nop 0")
        for r in regs:
            k(f"v_add_f32 v{vLs[qb]}, v{vLs[qb]}, v{r}")
        for kk in range(4):
            for e in range(4):
                k(f"v_cvt_pk_bf16_f32 v{P(qb,kk)+e}, v{regs[kk*8+2*e]}, v{regs[kk*8+2*e+1]}")
        for db in range(4):
            for r in range(16):
                k(f"v_accvgpr_read_b32 v{34+r}, a{O(db,qb)+r}")
            for r in range(16):
                k(f"v_mul_f32 v{34+r}, v{34+r}, v33")
            for r in range(16):
                k(f"v_accvgpr_write_b32 a{O(db,qb)+r}, v{34+r}")
    for kk in range(4):
        for db in range(4):
            for q2 in range(2):
                k(f"ds_read_b64_tr_b16 {vr(F+4*db+2*q2,2)}, v{vVrd[db]} offset:{kk*4096+q2*2048}")
        k("s_waitcnt lgkmcnt(0)")
        for db in range(4):
            for qb in range(2):
                d = ar(O(db, qb), 16)
                k(MFMA(d, vr(F + 4 * db, 4), vr(P(qb, kk), 4), d))
    k(f"s_add_u32 s{sSO}, s{sSO}, 16384")
    k(f"s_cmp_lt_u32 s{sSO}, 524288")
    k("s_cbranch_scc1 attn_slow_loop")
    k.lab("attn_epi")
    k("s_nop 15")
    for qb in range(2):
        k(f"v_mov_b32 v33, v{vLs[qb]}")
        k("s_nop 1")
        k(f"v_permlane32_swap_b32 v{vLs[qb]}, v33")
        k("s_nop 1")
        k(f"v_add_f32 v33, v33, v{vLs[qb]}")
        k("v_rcp_f32 v33, v33")
        for db in range(4):
            T = 64 + (db & 1) * 32
            for r in range(16):
                k(f"v_accvgpr_read_b32 v{T+r}, a{O(db,qb)+r}")
            for r in range(16):
                k(f"v_mul_f32 v{T+r}, v{T+r}, v33")
            for r in range(8):
                k(f"v_cvt_pk_bf16_f32 v{T+16+r}, v{T+2*r}, v{T+2*r+1}")
            k(f"s_mov_b32 s{sT0}, {qb*256*1024+(db>>1)*4096}")
            for c in range(2):
                k(f"buffer_store_dwordx4 {vr(T+16+4*c,4)}, v{vL16}, s[{SO}:{SO+3}], s{sT0} offen offset:{((2*db+c)&3)*1024}")
    k.lab("attn_done")
    k("s_endpgm")
    return k, k.kd(512, 48, 256)


def gen_gemm2():
    k = K("gemm2_kernel")
    sW, sMT, sNT, sROLE, sTILE = 20, 21, 22, 24, 23
    sW4K, sSOA, sSOW, sCNT, sLAST = 25, 26, 27, 28, 29
    SA, SWT, SG, SXI, SOU = 8, 12, 16, 40, 44
    sT0, sT1, sC, sNK = 31, 32, 33, 30
    vl, vrr, vc, vg1, vh = 1, 2, 3, 4, 5
    vL16 = 6
    vArd = [10, 11]
    vWrd = [[12, 13], [14, 15]]
    vAdma = 16
    vWdma = [17, 18, 19, 20]
    vXo = 21
    FWb = lambda rs, s: 64 + rs * 64 + s * 16
    FAb = lambda rs, s: 64 + rs * 64 + s * 16 + 8
    XR = 192
    acc = lambda nb, mb: (nb * 2 + mb) * 16

    k("s_cmp_ge_u32 s2, 256")
    k("s_cbranch_scc1 gemm2_done")
    k("s_load_dwordx2 s[4:5], s[0:1], 32")
    k("s_load_dwordx2 s[6:7], s[0:1], 56")
    k("s_load_dwordx2 s[34:35], s[0:1], 80")
    k("s_load_dwordx4 s[36:39], s[0:1], 64")
    k("s_load_dwordx2 s[48:49], s[0:1], 0")
    lane_fields(k, vl, vrr, vc, vg1, vh, sW)
    k(f"s_bfe_u32 s{sROLE}, s2, 0x10002")
    k("s_and_b32 s3, s2, 3")
    k(f"s_lshr_b32 s{sT0}, s2, 3")
    k(f"s_lshl_b32 s{sTILE}, s3, 5")
    k(f"s_add_u32 s{sTILE}, s{sTILE}, s{sT0}")
    k(f"s_lshr_b32 s{sMT}, s{sTILE}, 3")
    k(f"s_and_b32 s{sNT}, s{sTILE}, 7")
    k(f"s_lshl_b32 s{sW4K}, s{sW}, 12")
    k(f"v_lshlrev_b32 v{vL16}, 4, v{vl}")
    k(f"s_cmp_eq_u32 s{sROLE}, 1")
    k.csel2(sNK, 256, 224)
    k(f"s_cselect_b32 s{sLAST}, 15, 13")
    k.csel2(50, O_OFF, H_OFF)
    k.csel2(51, O_SZ, H_SZ)
    k.csel2(52, 8388608, 7340032)
    k("s_waitcnt lgkmcnt(0)")
    k("s_cselect_b32 s4, s4, s6")
    k("s_cselect_b32 s5, s5, s7")
    k(f"s_lshl_b32 s{sT0}, s{sNT}, 8")
    k(f"s_sub_u32 s52, s52, s{sT0}")
    k.srd(SWT, 4, soff=f"s{sT0}", nrec="s52")
    k(f"s_mul_i32 s{sT0}, s{sMT}, s{sNK}")
    k(f"s_lshl_b32 s{sT0}, s{sT0}, 12")
    k(f"s_sub_u32 s51, s51, s{sT0}")
    k(f"s_add_u32 s{sT0}, s{sT0}, s50")
    k.srd(SA, 34, soff=f"s{sT0}", nrec="s51")
    k(f"s_mul_i32 s{sT0}, s{sW}, s{sNK}")
    k(f"s_lshl_b32 s{sT0}, s{sT0}, 10")
    k(f"v_add_u32 v{vAdma}, s{sT0}, v{vL16}")
    k(f"v_lshrrev_b32 v7, 4, v{vl}")
    k(f"v_and_b32 v8, 15, v{vl}")
    k(f"v_lshlrev_b32 v9, 2, v7")
    k(f"v_xor_b32 v8, v8, v9")
    k(f"s_lshl_b32 s{sT0}, s{sW}, 15")
    k(f"v_lshlrev_b32 v7, 11, v7")
    k(f"v_add_u32 v7, s{sT0}, v7")
    k(f"v_lshl_add_u32 v{vWdma[0]}, v8, 4, v7")
    for p in range(1, 4):
        k(f"v_add_u32 v{vWdma[p]}, {p*(8192-1024)}, v{vWdma[0]}")
    k(f"s_mov_b32 s{sSOA}, 0")
    k(f"s_mov_b32 s{sSOW}, 0")

    def dma_a(s):
        return f"buffer_load_dwordx4 v{vAdma}, s[{SA}:{SA+3}], s{sSOA} offen offset:{s*1024} lds"

    def dma_w(p):
        return f"buffer_load_dwordx4 v{vWdma[p]}, s[{SWT}:{SWT+3}], s{sSOW} offen offset:{p*1024} lds"

    m0a = lambda slot: f"s_add_u32 m0, s{sW4K}, {slot*32768}"
    m0w = lambda slot: f"s_add_u32 m0, s{sW4K}, {slot*32768+16384}"
    adv = [f"s_add_u32 s{sSOA}, s{sSOA}, 4096", f"s_add_u32 s{sSOW}, s{sSOW}, {64*2048}"]
    for slot in range(4):
        k(m0a(slot)); k("s_nop 0")
        for s in range(4): k(dma_a(s))
        k(m0w(slot)); k("s_nop 0")
        for p in range(4): k(dma_w(p))
        for s in adv: k(s)
    k(f"s_and_b32 s{sT0}, s{sW}, 1")
    k(f"s_lshl_b32 s{sT0}, s{sT0}, 13")
    k(f"v_add_u32 v{vArd[0]}, s{sT0}, v{vL16}")
    k(f"v_add_u32 v{vArd[1]}, 0x10000, v{vArd[0]}")
    k(f"v_lshl_add_u32 v7, v{vh}, 2, v{vrr}")
    k(f"v_lshlrev_b32 v7, 8, v7")
    k(f"v_add_u32 v7, 16384, v7")
    k(f"v_lshl_add_u32 v7, v{vg1}, 5, v7")
    k(f"v_lshl_add_u32 v7, v{vc}, 3, v7")
    k(f"s_and_b32 s{sT0}, s{sW}, 2")
    for i in range(2):
        k(f"s_add_u32 s{sT1}, s{sT0}, {i}")
        k(f"v_xor_b32 v8, s{sT1}, v{vrr}")
        k(f"v_lshl_add_u32 v{vWrd[0][i]}, v8, 6, v7")
        k(f"v_add_u32 v{vWrd[1][i]}, 0x10000, v{vWrd[0][i]}")
    for i in range(64):
        k(f"v_accvgpr_write_b32 a{i}, 0")
    k(f"s_lshl_b32 s{sT0}, s{sTILE}, 15")
    k(f"s_lshl_b32 s{sT1}, s{sW}, 13")
    k(f"s_add_u32 s{sT0}, s{sT0}, s{sT1}")
    k.srd(SG, 34, const=G_OFF, soff=f"s{sT0}", nrec=8192)
    k(f"s_lshl_b32 s{sT0}, s{sMT}, 18")
    k(f"s_and_b32 s{sT1}, s{sW}, 1")
    k(f"s_lshl_b32 s{sT1}, s{sT1}, 17")
    k(f"s_add_u32 s{sT0}, s{sT0}, s{sT1}")
    k(f"s_lshl_b32 s{sT1}, s{sNT}, 8")
    k(f"s_add_u32 s{sT0}, s{sT0}, s{sT1}")
    k(f"s_lshr_b32 s{sT1}, s{sW}, 1")
    k(f"s_lshl_b32 s{sT1}, s{sT1}, 7")
    k(f"s_add_u32 s{sT0}, s{sT0}, s{sT1}")
    k(f"v_and_b32 v7, 31, v{vl}")
    k(f"v_lshlrev_b32 v7, 11, v7")
    k(f"v_lshl_add_u32 v7, v{vh}, 4, v7")
    k(f"v_add_u32 v{vXo}, s{sT0}, v7")
    k.srd(SXI, 48, nrec=2048 * 2048)
    k.srd(SOU, 36, nrec=2048 * 2048)

    def reads(slot, rs):
        hi, lo = slot >> 1, slot & 1
        R = []
        for s in range(4):
            for i in range(2):
                R.append(f"ds_read_b128 {vr(FAb(rs,s)+4*i,4)}, v{vArd[hi]} offset:{lo*32768+i*4096+s*1024}")
                for q2 in range(2):
                    R.append(f"ds_read_b64_tr_b16 {vr(FWb(rs,s)+4*i+2*q2,2)}, v{vWrd[hi][i]} offset:{lo*32768+s*4096+q2*2048}")
        return R

    def mfmas(rs):
        M = []
        for s in range(4):
            for nb in range(2):
                for mb in range(2):
                    d = ar(acc(nb, mb), 16)
                    M.append(MFMA(d, vr(FWb(rs, s) + 4 * nb, 4), vr(FAb(rs, s) + 4 * mb, 4), d))
        return M

    k("s_waitcnt vmcnt(24)")
    k("s_barrier")
    for r in reads(0, 0): k(r)
    k(f"s_mov_b32 s{sCNT}, 0")
    k.lab("gemm2_loop")
    k(f"s_cmp_eq_u32 s{sCNT}, s{sLAST}")
    k(f"s_cselect_b32 s{SA+2}, 0, s{SA+2}")
    k(f"s_cselect_b32 s{SWT+2}, 0, s{SWT+2}")
    for u in range(4):
        k("s_waitcnt vmcnt(16) lgkmcnt(0)")
        k("s_barrier")
        fill = {}
        for i, r in enumerate(reads((u + 1) & 3, (u + 1) & 1)):
            add_fill(fill, i // 2, r)
        add_fill(fill, 0, m0a(u))
        for s in range(4): add_fill(fill, 1 + 2 * s, dma_a(s))
        add_fill(fill, 8, m0w(u))
        for p in range(4): add_fill(fill, 9 + 2 * p, dma_w(p))
        add_fill(fill, 15, adv[0]); add_fill(fill, 15, adv[1])
        weave(k, mfmas(u & 1), fill)
    k(f"s_add_u32 s{sCNT}, s{sCNT}, 1")
    k(f"s_cmp_le_u32 s{sCNT}, s{sLAST}")
    k("s_cbranch_scc1 gemm2_loop")
    k("s_waitcnt lgkmcnt(0)")
    k(f"s_lshr_b32 s{sT0}, s{sTILE}, 1")
    k(f"s_lshl_b32 s{sT0}, s{sT0}, 2")
    k(f"v_mov_b32 v22, s{sT0}")
    k(f"s_and_b32 s{sT1}, s{sTILE}, 1")
    k(f"s_lshl_b32 s{sT1}, s{sT1}, 4")
    k(f"s_lshl_b32 s53, 1, s{sT1}")
    k(f"s_cmp_eq_u32 s{sROLE}, 1")
    k("s_cbranch_scc1 gemm2_epi_s")
    k(f"s_mov_b32 s{sC}, {f32(-LOG2E)}")
    k("s_nop 7")
    for nb in range(2):
        for mb in range(2):
            bi = nb * 2 + mb
            T = 64 + bi * 32
            for r in range(16):
                k(f"v_accvgpr_read_b32 v{T+r}, a{acc(nb,mb)+r}")
            for r in range(0, 16, 2):
                k(f"v_cvt_pk_bf16_f32 v{T+r+1}, v{T+r}, v{T+r+1}")
                k(f"v_lshlrev_b32 v{T+r}, 16, v{T+r+1}")
                k(f"v_and_b32 v{T+r+1}, 0xffff0000, v{T+r+1}")
                silu_pair(k, T + r, T + r + 1, 24 + (r & 2), 25 + (r & 2), sC)
            for r in range(8):
                k(f"v_cvt_pk_bf16_f32 v{T+16+r}, v{T+2*r}, v{T+2*r+1}")
            k(f"s_mov_b32 s{sT0}, {(bi>>1)*4096}")
            for c in range(2):
                k(f"buffer_store_dwordx4 {vr(T+16+4*c,4)}, v{vL16}, s[{SG}:{SG+3}], s{sT0} offen offset:{((2*bi+c)&3)*1024} sc1")
    k("s_waitcnt vmcnt(0)")
    k("s_barrier")
    k(f"s_cmp_eq_u32 s{sW}, 0")
    k("s_cbranch_scc0 gemm2_done")
    k("v_mov_b32 v23, s53")
    k("s_mov_b64 exec, 1")
    k("global_atomic_add v22, v23, s[38:39] sc1")
    k("s_endpgm")
    k.lab("gemm2_epi_s")
    k(f"s_mov_b32 s{sT0}, {32*2048}")
    for nb in range(2):
        for mb in range(2):
            for c in range(2):
                so = "0" if mb == 0 else f"s{sT0}"
                k(f"buffer_load_dwordx4 {vr(XR+((nb*2+mb)*2+c)*4,4)}, v{vXo}, s[{SXI}:{SXI+3}], {so} offen offset:{nb*64+c*32}")
    k(f"s_cmp_eq_u32 s{sW}, 0")
    k("s_cbranch_scc0 gemm2_polled")
    k("s_mov_b32 s55, 0")
    k.lab("gemm2_poll")
    k("s_add_u32 s55, s55, 1")
    k("s_cmp_gt_u32 s55, 0x40000")
    k("s_cbranch_scc1 gemm2_polled")
    k("global_load_dword v23, v22, s[38:39] sc1")
    k("s_waitcnt vmcnt(0)")
    k("v_readfirstlane_b32 s54, v23")
    k("s_nop 3")
    k("s_and_b32 s54, s54, s53")
    k("s_cbranch_scc1 gemm2_polled")
    k("s_sleep 4")
    k("s_branch gemm2_poll")
    k.lab("gemm2_polled")
    k("s_barrier")
    GR = 224
    for bi in range(4):
        if (bi & 1) == 0:
            k(f"s_mov_b32 s{sT1}, {(bi>>1)*4096}")
        for c in range(2):
            k(f"buffer_load_dwordx4 {vr(GR+(bi*2+c)*4,4)}, v{vL16}, s[{SG}:{SG+3}], s{sT1} offen offset:{((2*bi+c)&3)*1024} sc1")
    for nb in range(2):
        for mb in range(2):
            bi = nb * 2 + mb
            T = 64 + bi * 32
            for r in range(16):
                k(f"v_accvgpr_read_b32 v{T+r}, a{acc(nb,mb)+r}")
            for r in range(0, 16, 2):
                k(f"v_cvt_pk_bf16_f32 v{T+r+1}, v{T+r}, v{T+r+1}")
                k(f"v_lshlrev_b32 v{T+r}, 16, v{T+r+1}")
                k(f"v_and_b32 v{T+r+1}, 0xffff0000, v{T+r+1}")
            k(f"s_waitcnt vmcnt({(3-bi)*2 + 2*bi})")
            for e in range(8):
                g = GR + bi * 8 + e
                k(f"v_lshlrev_b32 v24, 16, v{g}")
                k(f"v_and_b32 v25, 0xffff0000, v{g}")
                k(f"v_mul_f32 v{T+2*e}, v{T+2*e}, v24")
                k(f"v_mul_f32 v{T+2*e+1}, v{T+2*e+1}, v25")
                k(f"v_cvt_pk_bf16_f32 v{T+16+e}, v{T+2*e}, v{T+2*e+1}")
            k("s_nop 1")
            for c in range(2):
                k(f"v_permlane32_swap_b32 v{T+16+4*c}, v{T+16+4*c+2}")
                k(f"v_permlane32_swap_b32 v{T+16+4*c+1}, v{T+16+4*c+3}")
            k("s_nop 1")
            for e in range(8):
                x = XR + bi * 8 + e
                t = T + 16 + e
                k(f"v_lshlrev_b32 v24, 16, v{t}")
                k(f"v_and_b32 v25, 0xffff0000, v{t}")
                k(f"v_lshlrev_b32 v26, 16, v{x}")
                k(f"v_and_b32 v27, 0xffff0000, v{x}")
                k(f"v_add_f32 v24, v24, v26")
                k(f"v_add_f32 v25, v25, v27")
                k(f"v_cvt_pk_bf16_f32 v{t}, v24, v25")
            so = "0" if mb == 0 else f"s{sT0}"
            for c in range(2):
                k(f"buffer_store_dwordx4 {vr(T+16+4*c,4)}, v{vXo}, s[{SOU}:{SOU+3}], {so} offen offset:{nb*64+c*32}")
    k.lab("gemm2_done")
    k("s_endpgm")
    return k, k.kd(320, 64, 256)


HEADER = """; Kernarg layout (88 bytes): A_x@0 A_k_cache@8 A_v_cache@16 A_wq@24 A_wo@32 B_x@40 B_w1@48 B_w2@56 out@64 dbg@72 ws@80
"""


def main(path):
    ks = [(gen_ln(), (256, 256, 0)), (gen_gemm1(), (240, 256, 131072)),
          (gen_attn(), (256, 256, 131072)), (gen_gemm2(), (256, 256, 131072))]
    out = [HEADER.rstrip("\n")]
    for (k, kd), (g, b, lds) in ks:
        out.append(f"; @launch kernel={k.name} grid=({g},1,1) block=({b},1,1) lds={lds}")
    out.append('.amdgcn_target "amdgcn-amd-amdhsa--gfx950"')
    out.append(".text")
    for (k, kd), _ in ks:
        out.append(k.text())
    out.append('.section .rodata,"a"')
    for (k, kd), _ in ks:
        out.append(kd)
    open(path, "w").write("\n".join(out) + "\n")


if __name__ == "__main__":
    path = f"cdna_kernels/{NAME}.s"
    for a in sys.argv[1:]:
        if "=" in a:
            kk, v = a.split("=")
            if kk == "o":
                path = v
            else:
                CFG[kk] = int(v)
    main(path)
```

```python
import sys, struct, math

NAME = "recurrent_scan__mha_block_cached__dense_activation_silu__prompt"

XN_OFF = 0
H_OFF = 4 << 20
O_OFF = 20 << 20
G_OFF = 36 << 20
XN_SZ, H_SZ, O_SZ, G_SZ = 4 << 20, 128 * 112 * 1024, 16 << 20, 4 << 20

LOG2E = 1.4426950408889634
QSCALE = (128 ** -0.5) * LOG2E


def f32(x):
    return "0x%08x" % struct.unpack("<I", struct.pack("<f", x))[0]


CFG = dict(slow_only=0, stamps=0, abl=0, pf=1, force_slow=0, lnpf=1, hsc=0, osc=0)
ST_OFF = 64 << 20


class K:
    def __init__(self, name):
        self.name = name
        self.L = []

    def __call__(self, s):
        self.L.append("    " + s)

    def lab(self, s):
        self.L.append(s + ":")

    def head(self):
        n = self.name
        return f".globl {n}\n.p2align 8\n.type {n},@function\n{n}:"

    def text(self):
        return self.head() + "\n" + "\n".join(self.L)

    def kd(self, vgpr, sgpr, accum):
        return f""".p2align 6
.amdhsa_kernel {self.name}
  .amdhsa_next_free_vgpr {vgpr}
  .amdhsa_next_free_sgpr {sgpr}
  .amdhsa_accum_offset {accum}
  .amdhsa_group_segment_fixed_size 0
  .amdhsa_kernarg_size 88
  .amdhsa_user_sgpr_count 2
  .amdhsa_user_sgpr_kernarg_segment_ptr 1
  .amdhsa_system_sgpr_workgroup_id_x 1
.end_amdhsa_kernel"""

    def stamp(self, i, real=False):
        if CFG["stamps"]:
            self(f"{'s_memrealtime' if real else 's_memtime'} s[{64+2*i}:{65+2*i}]")

    def stamp_out(self, kidx, sws, sw):
        if not CFG["stamps"]:
            return
        self("s_waitcnt vmcnt(0)")
        self.stamp(6)
        self.stamp(7, True)
        self("s_waitcnt lgkmcnt(0)")
        self(f"s_lshl_b32 s92, s2, 2")
        self(f"s_add_u32 s92, s92, s{sw}")
        self(f"s_lshl_b32 s92, s92, 6")
        self(f"s_add_u32 s92, s92, {ST_OFF + kidx*65536}")
        self(f"s_add_u32 s88, s{sws}, s92")
        self(f"s_addc_u32 s89, s{sws+1}, 0")
        self("s_getreg_b32 s90, hwreg(HW_REG_XCC_ID)")
        self("s_mov_b32 s86, s90")
        self("v_mov_b32 v250, 0")
        for h in range(3):
            for i in range(4):
                self(f"v_mov_b32 v{252+i}, s{64+2*(4*h+i)}")
            self(f"global_store_dwordx4 v250, v[252:255], s[88:89] offset:{16*h}")
            self("s_nop 1")

    def csel2(self, d, a, b):
        self(f"s_mov_b32 s{d}, {b}")
        self(f"s_cselect_b32 s{d}, {a}, s{d}")

    def srd(self, d, p, const=0, soff=None, nrec=0):
        a = self
        if const:
            a(f"s_add_u32 s{d}, s{p}, {const}")
            a(f"s_addc_u32 s{d+1}, s{p+1}, 0")
        else:
            a(f"s_mov_b32 s{d}, s{p}")
            a(f"s_mov_b32 s{d+1}, s{p+1}")
        if soff is not None:
            a(f"s_add_u32 s{d}, s{d}, {soff}")
            a(f"s_addc_u32 s{d+1}, s{d+1}, 0")
        a(f"s_and_b32 s{d+1}, s{d+1}, 0xffff")
        a(f"s_mov_b32 s{d+2}, {nrec}")
        a(f"s_mov_b32 s{d+3}, 0x20000")


def vr(b, n):
    return f"v[{b}:{b+n-1}]"


def ar(b, n):
    return f"a[{b}:{b+n-1}]"


def MFMA(d, a, b, c):
    return f"v_mfma_f32_16x16x32_bf16 {d}, {a}, {b}, {c}"


def weave(k, mfmas, fill):
    for i, m in enumerate(mfmas):
        k(m)
        for s in fill.get(i, []):
            k(s)


def add_fill(fill, i, s):
    fill.setdefault(i, []).append(s)


def gen_ln():
    k = K("ln_kernel")
    k("s_cmp_ge_u32 s2, 256")
    k("s_cbranch_scc1 ln_done")
    k("s_load_dwordx2 s[4:5], s[0:1], 0")
    k("s_load_dwordx2 s[6:7], s[0:1], 80")
    k("s_load_dwordx2 s[20:21], s[0:1], 24")
    k("s_load_dwordx2 s[22:23], s[0:1], 48")
    k("v_lshrrev_b32 v1, 5, v0")
    k("v_and_b32 v2, 31, v0")
    k("s_lshl_b32 s3, s2, 3")
    k("v_add_u32 v1, s3, v1")
    k("v_lshlrev_b32 v3, 11, v1")
    k("v_lshl_add_u32 v3, v2, 4, v3")
    k("v_lshrrev_b32 v4, 4, v1")
    k("v_lshlrev_b32 v4, 15, v4")
    k("v_lshrrev_b32 v5, 2, v2")
    k("v_lshl_add_u32 v4, v5, 10, v4")
    k("v_and_b32 v5, 3, v2")
    k("v_lshl_add_u32 v4, v5, 8, v4")
    k("v_and_b32 v5, 15, v1")
    k("v_lshl_add_u32 v4, v5, 4, v4")
    k("s_waitcnt lgkmcnt(0)")
    k.srd(8, 4, nrec=2048 * 2048)
    k.srd(12, 6, const=XN_OFF, nrec=XN_SZ)
    for i in range(4):
        k(f"buffer_load_dwordx4 {vr(8+4*i,4)}, v3, s[8:11], 0 offen offset:{512*i}")
    if CFG["lnpf"]:
        k.srd(24, 20, nrec=8 << 20)
        k.srd(28, 22, nrec=7340032)
        k("v_lshlrev_b32 v6, 6, v0")
        k("s_lshl_b32 s32, s2, 15")
        k("s_mul_i32 s33, s2, 28672")
        k("v_add_u32 v7, 16384, v6")
        k("buffer_load_dword v68, v6, s[24:27], s32 offen")
        k("buffer_load_dword v69, v7, s[24:27], s32 offen")
        k("buffer_load_dword v70, v6, s[28:31], s33 offen")
        k("buffer_load_dword v71, v7, s[28:31], s33 offen")
    k("s_mov_b32 s16, 8192")
    k("s_mov_b32 s17, 16384")
    k("s_mov_b32 s18, 24576")
    k(f"s_mov_b32 s19, {f32(1.0/1024)}")
    for i in range(4):
        k(f"s_waitcnt vmcnt({3-i + (4 if CFG['lnpf'] else 0)})")
        for r in range(4):
            R = 8 + 4 * i + r
            k(f"v_lshlrev_b32 v{32+8*i+2*r}, 16, v{R}")
            k(f"v_and_b32 v{33+8*i+2*r}, 0xffff0000, v{R}")

    def reduce32(s, t):
        for p in ("quad_perm:[1,0,3,2]", "quad_perm:[2,3,0,1]", "row_half_mirror", "row_mirror"):
            k("s_nop 1")
            k(f"v_add_f32_dpp v{s}, v{s}, v{s} {p} row_mask:0xf bank_mask:0xf")
        k(f"v_mov_b32 v{t}, v{s}")
        k("s_nop 1")
        k(f"v_permlane16_swap_b32 v{s}, v{t}")
        k("s_nop 1")
        k(f"v_add_f32 v{s}, v{s}, v{t}")

    for i in range(4):
        k(f"v_add_f32 v{24+i}, v{32+i}, v{36+i}")
    for j in range(8, 32, 4):
        for i in range(4):
            k(f"v_add_f32 v{24+i}, v{24+i}, v{32+j+i}")
    k("v_add_f32 v24, v24, v25")
    k("v_add_f32 v26, v26, v27")
    k("v_add_f32 v24, v24, v26")
    reduce32(24, 25)
    k("v_mul_f32 v24, s19, v24")
    for i in range(4):
        k(f"v_sub_f32 v{64+i}, v{32+i}, v24")
        k(f"v_mul_f32 v{26+i}, v{64+i}, v{64+i}")
    for j in range(4, 32):
        k(f"v_sub_f32 v{64+(j&3)}, v{32+j}, v24")
        k(f"v_fmac_f32 v{26+(j&3)}, v{64+(j&3)}, v{64+(j&3)}")
    k("v_add_f32 v26, v26, v27")
    k("v_add_f32 v28, v28, v29")
    k("v_add_f32 v26, v26, v28")
    reduce32(26, 27)
    k("v_mul_f32 v26, s19, v26")
    k("v_cvt_pk_bf16_f32 v24, v24, v26")
    k("v_and_b32 v26, 0xffff0000, v24")
    k("v_lshlrev_b32 v24, 16, v24")
    k(f"v_add_f32 v26, {f32(1e-5)}, v26")
    k("v_cvt_pk_bf16_f32 v26, v26, v26")
    k("v_lshlrev_b32 v26, 16, v26")
    k("v_sqrt_f32 v26, v26")
    k("s_nop 0")
    k("v_cvt_pk_bf16_f32 v26, v26, v26")
    k("v_lshlrev_b32 v26, 16, v26")
    k("v_rcp_f32 v26, v26")
    for i in range(4):
        for r in range(4):
            a, b = 32 + 8 * i + 2 * r, 33 + 8 * i + 2 * r
            k(f"v_sub_f32 v{a}, v{a}, v24")
            k(f"v_sub_f32 v{b}, v{b}, v24")
            k(f"v_cvt_pk_bf16_f32 v{b}, v{a}, v{b}")
            k(f"v_lshlrev_b32 v{a}, 16, v{b}")
            k(f"v_and_b32 v{b}, 0xffff0000, v{b}")
            k(f"v_mul_f32 v{a}, v{a}, v26")
            k(f"v_mul_f32 v{b}, v{b}, v26")
            k(f"v_cvt_pk_bf16_f32 v{8+4*i+r}, v{a}, v{b}")
        so = ["0", "s16", "s17", "s18"][i]
        k(f"buffer_store_dwordx4 {vr(8+4*i,4)}, v4, s[12:15], {so} offen")
    k.lab("ln_done")
    k("s_endpgm")
    return k, k.kd(72, 40, 72)


def lane_fields(k, vl, vrr, vc, vg, v15, sw):
    k(f"v_lshrrev_b32 v{vg}, 6, v0")
    k(f"v_and_b32 v{vl}, 63, v0")
    k(f"v_bfe_u32 v{vrr}, v0, 2, 2")
    k(f"v_readfirstlane_b32 s{sw}, v{vg}")
    k(f"v_and_b32 v{vc}, 3, v0")
    k(f"v_and_b32 v{v15}, 15, v0")
    k(f"v_bfe_u32 v{vg}, v0, 4, 2")


def silu_n(k, regs, temps, sneg):
    P = list(zip(regs, temps))
    for a, t in P: k(f"v_mul_f32 v{t}, s{sneg}, v{a}")
    for a, t in P: k(f"v_exp_f32 v{t}, v{t}")
    for a, t in P: k(f"v_add_f32 v{t}, 1.0, v{t}")
    for a, t in P: k(f"v_rcp_f32 v{t}, v{t}")
    for a, t in P: k(f"v_mul_f32 v{a}, v{a}, v{t}")


def reduce_g(k, op, regs, temps):
    for sw in ("v_permlane16_swap_b32", "v_permlane32_swap_b32"):
        for a, t in zip(regs, temps): k(f"v_mov_b32 v{t}, v{a}")
        k("s_nop 1")
        for a, t in zip(regs, temps): k(f"{sw} v{a}, v{t}")
        k("s_nop 1")
        for a, t in zip(regs, temps): k(f"{op} v{a}, v{a}, v{t}")


MARGIN = 60.0
LTHRESH = 2.0 ** 60


def gen_big():
    k = K("big_kernel")
    sW, sHEAD, sQB, sW2K, sSOW1, sW4K, sSOX, sSOWQ, sCNT = 20, 21, 22, 23, 24, 25, 26, 27, 28
    sT0, sT1, sC = 29, 30, 31
    SK, SV, SX, SO, SWQ, SW1, SH = 8, 12, 16, 36, 52, 56, 60
    sSOK, sSOV = 40, 41
    sH7 = list(range(93, 100))
    vl, vrr, vc, vg, v15, vL16 = 1, 2, 3, 4, 5, 6
    vWq = [10, 11, 12, 13]
    vW1 = list(range(14, 21))
    vDq, vD1 = [21, 22], [23, 24]
    vX = [25, 26, 27, 28]
    XR = lambda st, mb: 32 + st * 16 + mb * 4
    WF = lambda st, nb: 96 + st * 60 + nb * 4
    vKrd = [216, 217, 218, 219]
    vVrd = list(range(220, 228))
    vKdma = [228, 229, 230, 231]
    vVdma = [232, 233]
    acc = lambda nb, mb: (nb * 4 + mb) * 4
    KB, VB, WB = 0, 65536, 98304

    k("s_cmp_ge_u32 s2, 256")
    k("s_cbranch_scc1 big_done")
    k.stamp(0, True); k.stamp(1)
    k("s_load_dwordx4 s[4:7], s[0:1], 8")
    k("s_load_dwordx4 s[44:47], s[0:1], 24")
    k("s_load_dwordx4 s[48:51], s[0:1], 48")
    k("s_load_dwordx2 s[34:35], s[0:1], 80")
    lane_fields(k, vl, vrr, vc, vg, v15, sW)
    k("s_and_b32 s3, s2, 7")
    k("s_lshl_b32 s3, s3, 2")
    k(f"s_lshr_b32 s{sT0}, s2, 6")
    k(f"s_add_u32 s{sHEAD}, s3, s{sT0}")
    k(f"s_bfe_u32 s{sQB}, s2, 0x30003")
    k(f"s_lshl_b32 s{sW4K}, s{sW}, 12")
    k(f"s_lshl_b32 s{sW2K}, s{sW}, 11")
    k(f"v_lshlrev_b32 v{vL16}, 4, v{vl}")
    for mb in range(4):
        k(f"v_add_u32 v{vX[mb]}, {mb*32768}, v{vL16}")
    k(f"s_lshl_b32 s{sT0}, s{sW}, 3")
    k(f"v_add_u32 v7, s{sT0}, v{vg}")
    k(f"v_lshlrev_b32 v8, 2, v{vg}")
    k(f"v_xor_b32 v8, v8, v{v15}")
    k(f"v_lshlrev_b32 v9, 13, v7")
    k(f"v_lshl_add_u32 v{vDq[0]}, v8, 4, v9")
    k(f"v_add_u32 v{vDq[1]}, {4*8192-1024}, v{vDq[0]}")
    k(f"s_and_b32 s{sT0}, s{sW}, 1")
    k(f"s_lshl_b32 s{sT0}, s{sT0}, 2")
    k(f"v_or_b32 v8, s{sT0}, v{vg}")
    k(f"v_lshlrev_b32 v8, 1, v8")
    k(f"v_xor_b32 v8, v8, v{v15}")
    k(f"v_mul_u32_u24 v9, 7168, v7")
    k(f"v_lshl_add_u32 v9, v8, 4, v9")
    k(f"v_cmp_gt_u32 vcc, 14, v8")
    k(f"v_mov_b32 v8, 0x80000000")
    k("s_nop 0")
    k(f"v_cndmask_b32 v{vD1[0]}, v8, v9, vcc")
    k(f"v_add_u32 v{vD1[1]}, {4*7168-1024}, v{vD1[0]}")
    k("s_waitcnt lgkmcnt(0)")
    k(f"s_lshl_b32 s3, s{sQB}, 4")
    k(f"s_lshl_b32 s{sT0}, s{sW}, 2")
    k(f"s_add_u32 s33, s3, s{sT0}")
    k(f"s_lshl_b32 s3, s33, 15")
    k.srd(SX, 34, const=XN_OFF, soff="s3", nrec=4 * 32768)
    k(f"s_lshl_b32 s3, s{sHEAD}, 8")
    k(f"s_sub_u32 s{sT1}, {8 << 20}, s3")
    k.srd(SWQ, 44, soff="s3", nrec=f"s{sT1}")
    k(f"s_mul_i32 s3, s{sHEAD}, 224")
    k(f"s_sub_u32 s{sT1}, 7340032, s3")
    k.srd(SW1, 48, soff="s3", nrec=f"s{sT1}")
    k(f"s_mov_b32 s{sSOX}, 0")
    k(f"s_mov_b32 s{sSOWQ}, 0")
    k(f"s_mov_b32 s{sSOW1}, 0")

    def xload(st, mb, imm):
        return f"buffer_load_dwordx4 {vr(XR(st,mb),4)}, v{vX[mb]}, s[{SX}:{SX+3}], s{sSOX} offen offset:{imm}"

    dq = lambda i: f"buffer_load_dwordx4 v{vDq[i]}, s[{SWQ}:{SWQ+3}], s{sSOWQ} offen offset:{i*1024} lds"
    d1 = lambda i: f"buffer_load_dwordx4 v{vD1[i]}, s[{SW1}:{SW1+3}], s{sSOW1} offen offset:{i*1024} lds"
    m0q = lambda slot: f"s_add_u32 m0, s{sW2K}, {WB+slot*16384}"
    m01 = lambda slot: f"s_add_u32 m0, s{sW2K}, {WB+slot*16384+8192}"
    advw = [f"s_add_u32 s{sSOWQ}, s{sSOWQ}, {32*8192}", f"s_add_u32 s{sSOW1}, s{sSOW1}, {32*7168}"]

    def wdma_block(slot):
        k(m0q(slot)); k("s_nop 0"); k(dq(0)); k(dq(1))
        k(m01(slot)); k("s_nop 0"); k(d1(0)); k(d1(1))
        for s in advw: k(s)

    for mb in range(4): k(xload(0, mb, 0))
    wdma_block(0)
    wdma_block(1)
    for mb in range(4): k(xload(1, mb, 1024))
    wdma_block(2)
    for mb in range(4): k(xload(2, mb, 2048))
    wdma_block(3)
    k(f"v_lshl_add_u32 v7, v{vg}, 3, v{vrr}")
    k(f"v_lshlrev_b32 v7, 8, v7")
    k(f"v_add_u32 v7, {WB}, v7")
    k(f"v_lshl_add_u32 v8, v{vc}, 4, v7")
    for js in range(4):
        k(f"v_xor_b32 v9, {js}, v{vrr}")
        k(f"v_lshl_add_u32 v{vWq[js]}, v9, 6, v8")
    k(f"v_lshl_add_u32 v8, v{vc}, 3, v7")
    k(f"v_add_u32 v8, 8192, v8")
    k(f"v_and_b32 v29, 1, v{vg}")
    k(f"v_lshl_add_u32 v29, v29, 2, v{vrr}")
    for n7 in range(7):
        k(f"v_xor_b32 v9, {n7}, v29")
        k(f"v_lshl_add_u32 v{vW1[n7]}, v9, 5, v8")
    k(f"s_lshl_b32 s3, s{sHEAD}, 19")
    k.srd(SK, 4, soff="s3", nrec=524288)
    k.srd(SV, 6, soff="s3", nrec=524288)
    k(f"v_lshlrev_b32 v7, 8, v{v15}")
    for js in range(4):
        k(f"v_add_u32 v9, {4*js}, v{vg}")
        k(f"v_xor_b32 v9, v9, v{v15}")
        k(f"v_lshl_add_u32 v{vKrd[js]}, v9, 4, v7")
    k(f"v_lshl_add_u32 v7, v{vg}, 2, v{vrr}")
    k(f"v_lshlrev_b32 v7, 8, v7")
    k(f"v_add_u32 v7, {VB}, v7")
    k(f"v_lshl_add_u32 v7, v{vc}, 3, v7")
    for db in range(8):
        k(f"v_xor_b32 v9, {db}, v29")
        k(f"v_lshl_add_u32 v{vVrd[db]}, v9, 5, v7")
    k(f"v_lshlrev_b32 v7, 8, v{vg}")
    k(f"v_add_u32 v7, s{sW4K}, v7")
    for p in range(4):
        k(f"v_add_u32 v9, {4*p}, v{vg}")
        k(f"v_xor_b32 v9, v9, v{v15}")
        k(f"v_lshl_add_u32 v{vKdma[p]}, v9, 4, v7")
    for i in range(2):
        k(f"v_add_u32 v9, {4*i}, v{vg}")
        k(f"v_lshlrev_b32 v9, 1, v9")
        k(f"v_xor_b32 v9, v9, v{v15}")
        k(f"v_lshl_add_u32 v{vVdma[i]}, v9, 4, v7")
    k(f"s_mov_b32 s{sSOK}, 0")
    k(f"s_mov_b32 s{sSOV}, 0")
    for i in range(240):
        k(f"v_accvgpr_write_b32 a{i}, 0")

    dma_k = lambda p: f"buffer_load_dwordx4 v{vKdma[p]}, s[{SK}:{SK+3}], s{sSOK} offen offset:{p*1024} lds"
    dma_v = lambda p: f"buffer_load_dwordx4 v{vVdma[p&1]}, s[{SV}:{SV+3}], s{sSOV} offen offset:{p*1024} lds"
    m0k = lambda slot: f"s_add_u32 m0, s{sW4K}, {KB+slot*16384}"
    m0v = lambda slot: f"s_add_u32 m0, s{sW4K}, {VB+slot*16384}"
    advk = f"s_add_u32 s{sSOK}, s{sSOK}, 16384"
    advv = f"s_add_u32 s{sSOV}, s{sSOV}, 16384"

    def wreads(slot, st):
        R = []
        for nb in range(15):
            for q2 in range(2):
                if nb < 8:
                    R.append(f"ds_read_b64_tr_b16 {vr(WF(st,nb)+2*q2,2)}, v{vWq[nb>>1]} offset:{slot*16384+q2*1024+(nb&1)*8}")
                else:
                    R.append(f"ds_read_b64_tr_b16 {vr(WF(st,nb)+2*q2,2)}, v{vW1[nb-8]} offset:{slot*16384+q2*1024}")
        return R

    def p1_mfmas(u):
        return [MFMA(ar(acc(nb, mb), 4), vr(WF(u & 1, nb), 4), vr(XR(u, mb), 4), ar(acc(nb, mb), 4))
                for nb in range(15) for mb in range(4)]

    def p1_stage(u, vmcnt, vm_items, rd=True):
        k(f"s_waitcnt vmcnt({vmcnt}) lgkmcnt(0)")
        k("s_barrier")
        fill = {}
        if rd:
            for i, r in enumerate(wreads((u + 1) & 3, (u + 1) & 1)):
                add_fill(fill, i, r)
        for i, (pre, ins, post) in enumerate(vm_items):
            g = 32 + 3 * i
            for s in pre: add_fill(fill, g - 1, s)
            add_fill(fill, g, ins)
            for s in post: add_fill(fill, g + 1, s)
        weave(k, p1_mfmas(u), fill)

    k("s_waitcnt vmcnt(20)")
    k("s_barrier")
    k.stamp(2)
    for r in wreads(0, 0): k(r)
    k(f"s_mov_b32 s{sCNT}, 0")
    k.lab("big_p1_loop")
    for u in range(4):
        imm = 3072 if u == 0 else (u - 1) * 1024
        it = [([m0q(u)], dq(0), []), ([], dq(1), []), ([m01(u)], d1(0), []), ([], d1(1), advw)]
        it += [([], xload((u + 3) & 3, mb, imm), [f"s_add_u32 s{sSOX}, s{sSOX}, 4096"] if (u == 0 and mb == 3) else [])
               for mb in range(4)]
        p1_stage(u, 16, it)
    k(f"s_add_u32 s{sCNT}, s{sCNT}, 1")
    k(f"s_cmp_lt_u32 s{sCNT}, 7")
    k("s_cbranch_scc1 big_p1_loop")

    def kv_items(kind, slot):
        L = []
        for p in range(4):
            pre = [m0k(slot) if kind == "k" else m0v(slot)] if p == 0 else []
            post = [advk if kind == "k" else advv] if p == 3 else []
            L.append((pre, dma_k(p) if kind == "k" else dma_v(p), post))
        return L

    p1_stage(0, 16, [([], xload(3, mb, 3072), []) for mb in range(4)] + kv_items("k", 0))
    p1_stage(1, 16, kv_items("k", 1) + kv_items("v", 0))
    p1_stage(2, 16, kv_items("k", 2) + kv_items("v", 1))
    p1_stage(3, 20, kv_items("k", 3), rd=False)
    k.stamp(3)

    k(f"s_mul_i32 s3, s33, {112*1024}")
    k.srd(SH, 34, const=H_OFF, soff="s3", nrec=4 * 112 * 1024)
    k(f"s_mul_i32 s{sT0}, s{sHEAD}, 7")
    for n7 in range(7):
        k(f"s_add_u32 s{sT1}, s{sT0}, {n7}")
        k(f"s_lshr_b32 s{sH7[n7]}, s{sT1}, 1")
        k(f"s_lshl_b32 s{sH7[n7]}, s{sH7[n7]}, 10")
        k(f"s_and_b32 s{sT1}, s{sT1}, 1")
        k(f"s_lshl_b32 s{sT1}, s{sT1}, 3")
        k(f"s_add_u32 s{sH7[n7]}, s{sH7[n7]}, s{sT1}")
    for mb in range(4):
        k(f"v_add_u32 v{vX[mb]}, {mb*112*1024}, v{vL16}")
    k(f"s_mov_b32 s{sC}, {f32(-LOG2E)}")
    nvm = 0
    if CFG["pf"]:
        k(f"s_lshl_b32 s3, s2, 2")
        k(f"s_add_u32 s3, s3, s{sW}")
        k.srd(SWQ, 46, nrec=8 << 20)
        k.srd(SW1, 50, nrec=7340032)
        k(f"s_lshl_b32 s{sSOWQ}, s3, 13")
        k(f"s_mul_i32 s{sSOW1}, s3, 7168")
    for n7 in range(7):
        T = 96 + (n7 & 1) * 48
        for i in range(16):
            k(f"v_accvgpr_read_b32 v{T+i}, a{acc(8+n7,0)+i}")
        silu_n(k, list(range(T, T + 16)), list(range(T + 16, T + 32)), sC)
        for i in range(8):
            k(f"v_cvt_pk_bf16_f32 v{T+32+i}, v{T+2*i}, v{T+2*i+1}")
        for mb in range(4):
            k(f"buffer_store_dwordx2 {vr(T+32+2*mb,2)}, v{vX[mb]}, s[{SH}:{SH+3}], s{sH7[n7]} offen" + (" sc1" if CFG["hsc"] == 1 else " nt" if CFG["hsc"] == 2 else ""))
            nvm += 1
    k.stamp(8)
    Q = lambda qb, js: 32 + (qb * 4 + js) * 4
    k(f"s_mov_b32 s{sC}, {f32(QSCALE)}")
    for js in range(4):
        T = 96 + (js & 1) * 32
        for b in range(2):
            for i in range(16):
                k(f"v_accvgpr_read_b32 v{T+16*b+i}, a{acc(2*js+b,0)+i}")
        for i in range(32):
            k(f"v_mul_f32 v{T+i}, s{sC}, v{T+i}")
        for qb in range(4):
            for b in range(2):
                for h2 in range(2):
                    k(f"v_cvt_pk_bf16_f32 v{Q(qb,js)+2*b+h2}, v{T+16*b+4*qb+2*h2}, v{T+16*b+4*qb+2*h2+1}")
    k(f"s_lshl_b32 s3, s33, 7")
    k(f"s_lshl_b32 s{sT0}, s{sHEAD}, 2")
    k(f"s_add_u32 s3, s3, s{sT0}")
    k("s_lshl_b32 s3, s3, 10")
    k(f"s_sub_u32 s{sT1}, {O_SZ}, s3")
    k.srd(SO, 34, const=O_OFF, soff="s3", nrec=f"s{sT1}")

    Sb = lambda buf, kb, qb: 96 + buf * 32 + (kb * 4 + qb) * 4
    Pb = lambda buf, qb: 160 + buf * 16 + qb * 4
    NM = lambda qb: 192 + 4 * qb
    vLs = [208, 209, 210, 211]
    KF = lambda f: 192 + 4 * f
    VF = lambda db: 224 + 4 * db
    O = lambda db, qb: (db * 4 + qb) * 4

    def kread(f, slot, half):
        return f"ds_read_b128 {ar(KF(f),4)}, v{vKrd[f&3]} offset:{slot*16384+half*8192+(f>>2)*4096}"

    def vread(db, q2, slot, half):
        return f"ds_read_b64_tr_b16 {ar(VF(db)+2*q2,2)}, v{vVrd[db]} offset:{slot*16384+half*8192+q2*4096}"

    def qk(buf, first_c=None):
        M = []
        for f in range(8):
            for qb in range(4):
                d = vr(Sb(buf, f >> 2, qb), 4)
                c = d if (f & 3) else (first_c if first_c is not None else vr(NM(qb), 4))
                M.append(MFMA(d, ar(KF(f), 4), vr(Q(qb, f & 3), 4), c))
        return M

    def pv(buf):
        return [MFMA(ar(O(db, qb), 4), ar(VF(db), 4), vr(Pb(buf, qb), 4), ar(O(db, qb), 4))
                for db in range(8) for qb in range(4)]

    def sm_add(buf, i):
        kb, qb, r = i >> 4, (i >> 2) & 3, i & 3
        s = 96 + buf * 32 + i
        L = [f"v_add_f32 v{vLs[qb]}, v{vLs[qb]}, v{s}"]
        if i & 1:
            L.append(f"v_cvt_pk_bf16_f32 v{Pb(buf,qb)+2*kb+(r>>1)}, v{s-1}, v{s}")
        return L

    sm_exp = lambda buf, i: f"v_exp_f32 v{96+buf*32+i}, v{96+buf*32+i}"

    if not CFG["slow_only"]:
        for i in range(128):
            k(f"v_accvgpr_write_b32 a{i}, 0")
        for qb in range(4):
            k(f"v_mov_b32 v{vLs[qb]}, 0")
        k.stamp(9)
        k(f"s_waitcnt vmcnt({nvm})")
        k.stamp(10)
        k("s_barrier")
        k.stamp(4)
        for f in range(8): k(kread(f, 0, 0))
        k("s_waitcnt lgkmcnt(0)")
        fill = {}
        for f in range(8): add_fill(fill, 4 * f + 3, kread(f, 0, 1))
        weave(k, qk(0, "0"), fill)
        k("s_nop 7")
        tm, tt = [212, 213, 214, 215], [234, 235, 236, 237]
        for qb in range(4):
            k(f"v_max3_f32 v{tm[qb]}, v{Sb(0,0,qb)}, v{Sb(0,0,qb)+1}, v{Sb(0,0,qb)+2}")
        for qb in range(4):
            k(f"v_max3_f32 v{tm[qb]}, v{Sb(0,0,qb)+3}, v{Sb(0,1,qb)}, v{tm[qb]}")
        for qb in range(4):
            k(f"v_max3_f32 v{tm[qb]}, v{Sb(0,1,qb)+1}, v{Sb(0,1,qb)+2}, v{tm[qb]}")
        for qb in range(4):
            k(f"v_max_f32 v{tm[qb]}, v{Sb(0,1,qb)+3}, v{tm[qb]}")
        reduce_g(k, "v_max_f32", tm, tt)
        for qb in range(4):
            k(f"v_sub_f32 v{tm[qb]}, {f32(-MARGIN)}, v{tm[qb]}")
        for qb in range(4):
            for r in range(4):
                k(f"v_mov_b32 v{NM(qb)+r}, v{tm[qb]}")
        for i in range(32):
            k(f"v_add_f32 v{96+i}, v{96+i}, v{tm[(i>>2)&3]}")
        k("s_waitcnt lgkmcnt(0)")
        fill = {}
        for f in range(8): add_fill(fill, 4 * f + 3, kread(f, 1, 0))
        for i in range(32):
            if i >= 1:
                for x in sm_add(0, i - 1): add_fill(fill, i, x)
            add_fill(fill, i, sm_exp(0, i))
        weave(k, qk(1), fill)
        k(f"s_mov_b32 s{sCNT}, 0")

        def half(tt, par):
            vm, ds, va, ex, first, last = {}, {}, {}, {}, {}, {}
            M = qk(par) + pv(par)
            for db in range(8):
                for q2 in range(2):
                    add_fill(ds, 2 * db + q2, vread(db, q2, tt, par))
            for f in range(8):
                add_fill(ds, 16 + 2 * f, kread(f, (tt + 1 + par) & 3, 1 - par))
            add_fill(first, 7, "s_waitcnt lgkmcnt(7)")
            if par == 1:
                add_fill(first, 15, f"s_waitcnt vmcnt({9 if (CFG['pf'] and (tt & 1)) else 8}) lgkmcnt(7)")
                add_fill(last, 15, "s_barrier")
                if CFG["pf"] and tt == 0:
                    add_fill(vm, 16, f"buffer_load_dwordx4 v[244:247], v{vL16}, s[{SWQ}:{SWQ+3}], s{sSOWQ} offen")
                    add_fill(first, 19, f"s_add_u32 s{sSOWQ}, s{sSOWQ}, 1024")
                if CFG["pf"] and tt == 2:
                    add_fill(vm, 16, f"buffer_load_dwordx4 v[248:251], v{vL16}, s[{SW1}:{SW1+3}], s{sSOW1} offen")
                    add_fill(first, 19, f"s_add_u32 s{sSOW1}, s{sSOW1}, 1024")
                add_fill(first, 16, m0k(tt))
                for p in range(4): add_fill(vm, 17 + 4 * p, dma_k(p))
                add_fill(first, 31, advk)
            else:
                add_fill(first, 15, "s_waitcnt lgkmcnt(7)")
                add_fill(first, 16, m0v((tt + 2) & 3))
                for p in range(4): add_fill(vm, 17 + 4 * p, dma_v(p))
                add_fill(first, 31, advv)
            add_fill(first, 23, "s_waitcnt lgkmcnt(4)")
            add_fill(first, 31, "s_waitcnt lgkmcnt(4)")
            for x in sm_add(par, 31): add_fill(va, 0, x)
            for g in range(32):
                if g >= 1:
                    for x in sm_add(1 - par, g - 1): add_fill(va, g, x)
                add_fill(ex, g, sm_exp(1 - par, g))
            fill = {}
            for g in range(32):
                fill[2 * g] = first.get(g, []) + vm.get(g, []) + ds.get(g, []) + va.get(g, [])
                fill[2 * g + 1] = ex.get(g, []) + last.get(g, [])
            weave(k, M, fill)

        k("s_nop 3")
        k("s_waitcnt lgkmcnt(4)")
        k.lab("big_attn_loop")
        for i in range(8):
            if i == 6:
                k(f"s_cmp_eq_u32 s{sCNT}, 7")
                k("s_cbranch_scc1 big_attn_tail")
            half(i >> 1, i & 1)
        k(f"s_add_u32 s{sCNT}, s{sCNT}, 1")
        k("s_branch big_attn_loop")
        k.lab("big_attn_tail")
        for db in range(8):
            for q2 in range(2): k(vread(db, q2, 3, 0))
        for x in sm_add(0, 31): k(x)
        k("s_waitcnt lgkmcnt(0)")
        fill = {}
        for i in range(32):
            if i >= 1:
                for x in sm_add(1, i - 1): add_fill(fill, i, x)
            add_fill(fill, i, sm_exp(1, i))
            if (i & 3) == 3:
                for q2 in range(2): fill[i] = [vread(i >> 2, q2, 3, 1)] + fill[i]
        weave(k, pv(0), fill)
        k("s_nop 0")
        for x in sm_add(1, 31): k(x)
        k("s_waitcnt lgkmcnt(0)")
        k("s_nop 0")
        weave(k, pv(1), {})
        k(f"s_mov_b32 s{sT0}, {f32(LTHRESH if not CFG['force_slow'] else -1.0)}")
        k(f"v_add_f32 v213, v{vLs[0]}, v{vLs[1]}")
        k(f"v_add_f32 v214, v{vLs[2]}, v{vLs[3]}")
        k(f"v_add_f32 v212, v213, v214")
        k(f"s_lshl_b32 s{sT1}, s{sW}, 2")
        k(f"s_add_u32 s{sT1}, s{sT1}, 131072")
        k(f"v_cmp_nge_f32 vcc, s{sT0}, v212")
        k(f"v_mov_b32 v213, s{sT1}")
        k("s_cmp_lg_u64 vcc, 0")
        k("s_cselect_b32 s42, 1, 0")
        k("v_mov_b32 v214, s42")
        k("ds_write_b32 v213, v214")
        k("v_mov_b32 v213, 131072")
        k("s_waitcnt lgkmcnt(0)")
        k("s_barrier")
        k("ds_read_b128 v[236:239], v213")
        k("s_waitcnt lgkmcnt(0)")
        k("v_or_b32 v236, v236, v237")
        k("v_or3_b32 v236, v236, v238, v239")
        k("s_nop 0")
        k("v_readfirstlane_b32 s42, v236")
        k("s_nop 3")
        k("s_cmp_eq_u32 s42, 0")
        k("s_cbranch_scc1 big_epi")

    k.lab("big_slow")
    k("s_waitcnt vmcnt(0) lgkmcnt(0)")
    for i in range(128):
        k(f"v_accvgpr_write_b32 a{i}, 0")
    vM = [192, 193, 194, 195]
    tm, tt, al = [212, 213, 214, 215], [234, 235, 236, 237], [238, 239, 240, 241]
    for qb in range(4):
        k(f"v_mov_b32 v{vM[qb]}, {f32(-3.0e38)}")
        k(f"v_mov_b32 v{vLs[qb]}, 0")
    k(f"s_mov_b32 s{sSOK}, 0")
    k(f"s_mov_b32 s{sSOV}, 0")
    k.lab("big_slow_loop")
    k("s_barrier")
    k(m0k(0)); k("s_nop 0")
    for p in range(4): k(dma_k(p))
    k(m0v(0)); k("s_nop 0")
    for p in range(4): k(dma_v(p))
    k(advk); k(advv)
    k("s_waitcnt vmcnt(0)")
    k("s_barrier")
    for hf in range(2):
        for f in range(8): k(kread(f, 0, hf))
        for db in range(8):
            for q2 in range(2): k(vread(db, q2, 0, hf))
        k("s_waitcnt lgkmcnt(0)")
        for m in qk(0, "0"): k(m)
        k("s_nop 7")
        for qb in range(4):
            k(f"v_max3_f32 v{tm[qb]}, v{Sb(0,0,qb)}, v{Sb(0,0,qb)+1}, v{vM[qb]}")
        for a, b in (((0, 2), (0, 3)), ((1, 0), (1, 1)), ((1, 2), (1, 3))):
            for qb in range(4):
                k(f"v_max3_f32 v{tm[qb]}, v{Sb(0,a[0],qb)+a[1]}, v{Sb(0,b[0],qb)+b[1]}, v{tm[qb]}")
        reduce_g(k, "v_max_f32", tm, tt)
        for qb in range(4): k(f"v_sub_f32 v{al[qb]}, v{vM[qb]}, v{tm[qb]}")
        for qb in range(4): k(f"v_exp_f32 v{al[qb]}, v{al[qb]}")
        for qb in range(4): k(f"v_mov_b32 v{vM[qb]}, v{tm[qb]}")
        for qb in range(4): k(f"v_mul_f32 v{vLs[qb]}, v{vLs[qb]}, v{al[qb]}")
        for i in range(32): k(f"v_sub_f32 v{96+i}, v{96+i}, v{tm[(i>>2)&3]}")
        for i in range(32): k(sm_exp(0, i))
        k("s_nop 0")
        for i in range(32):
            for x in sm_add(0, i): k(x)
        for db in range(8):
            for i in range(16): k(f"v_accvgpr_read_b32 v{128+i}, a{O(db,0)+i}")
            for i in range(16): k(f"v_mul_f32 v{128+i}, v{128+i}, v{al[i>>2]}")
            for i in range(16): k(f"v_accvgpr_write_b32 a{O(db,0)+i}, v{128+i}")
        k("s_nop 1")
        for m in pv(0): k(m)
        k("s_nop 7")
    k(f"s_cmp_lt_u32 s{sSOK}, 524288")
    k("s_cbranch_scc1 big_slow_loop")

    k.lab("big_epi")
    k.stamp(5)
    reduce_g(k, "v_add_f32", vLs, [234, 235, 236, 237])
    for qb in range(4): k(f"v_rcp_f32 v{vLs[qb]}, v{vLs[qb]}")
    for qb in range(4):
        k(f"s_mov_b32 s{sH7[qb]}, {qb*128*1024}")
    for c in range(4):
        T = 96 + (c & 1) * 48
        for b in range(2):
            for i in range(16):
                k(f"v_accvgpr_read_b32 v{T+16*b+i}, a{O(2*c+b,0)+i}")
        for i in range(32):
            k(f"v_mul_f32 v{T+i}, v{T+i}, v{vLs[(i>>2)&3]}")
        for qb in range(4):
            for b in range(2):
                for h2 in range(2):
                    k(f"v_cvt_pk_bf16_f32 v{T+32+4*qb+2*b+h2}, v{T+16*b+4*qb+2*h2}, v{T+16*b+4*qb+2*h2+1}")
        for qb in range(4):
            k(f"buffer_store_dwordx4 {vr(T+32+4*qb,4)}, v{vL16}, s[{SO}:{SO+3}], s{sH7[qb]} offen offset:{c*1024}" + (" sc1" if CFG["osc"] == 1 else " nt" if CFG["osc"] == 2 else ""))
    k.stamp_out(1, 34, sW)
    k.lab("big_done")
    k("s_endpgm")
    return k, k.kd(512, 102, 256)


def gen_gemm2():
    k = K("gemm2_kernel")
    sW, sMT, sNT, sROLE, sTILE = 20, 21, 22, 24, 23
    sW4K, sSOA, sSOW, sCNT, sLAST = 25, 26, 27, 28, 29
    SA, SWT, SG, SXI, SOU = 8, 12, 16, 40, 44
    sT0, sT1, sC, sNK = 31, 32, 33, 30
    vl, vrr, vc, vg, v15, vL16 = 1, 2, 3, 4, 5, 6
    vArd = [10, 11]
    vWrd = [[12, 13, 14, 15], [16, 17, 18, 19]]
    vAdma = [20, 21]
    vWdma = [22, 23, 24, 25]
    vXo = 26
    FWb = lambda rs, s, nb: 64 + rs * 64 + s * 32 + nb * 4
    FAb = lambda rs, s, mb: 64 + rs * 64 + s * 32 + 16 + mb * 4
    XR = 192
    acc = lambda nb, mb: (nb * 4 + mb) * 4

    k("s_cmp_ge_u32 s2, 256")
    k("s_cbranch_scc1 gemm2_done")
    k.stamp(0, True); k.stamp(1)
    k("s_load_dwordx2 s[4:5], s[0:1], 32")
    k("s_load_dwordx2 s[6:7], s[0:1], 56")
    k("s_load_dwordx2 s[34:35], s[0:1], 80")
    k("s_load_dwordx4 s[36:39], s[0:1], 64")
    k("s_load_dwordx2 s[48:49], s[0:1], 0")
    lane_fields(k, vl, vrr, vc, vg, v15, sW)
    k(f"s_bfe_u32 s{sROLE}, s2, 0x10002")
    k("s_and_b32 s3, s2, 3")
    k(f"s_lshr_b32 s{sT0}, s2, 3")
    k(f"s_lshl_b32 s{sTILE}, s3, 5")
    k(f"s_add_u32 s{sTILE}, s{sTILE}, s{sT0}")
    k(f"s_lshr_b32 s{sMT}, s{sTILE}, 3")
    k(f"s_and_b32 s{sNT}, s{sTILE}, 7")
    k(f"s_lshl_b32 s{sW4K}, s{sW}, 12")
    k(f"v_lshlrev_b32 v{vL16}, 4, v{vl}")
    k(f"s_cmp_eq_u32 s{sROLE}, 1")
    k.csel2(sNK, 128, 112)
    k(f"s_cselect_b32 s{sLAST}, 15, 13")
    k.csel2(50, O_OFF, H_OFF)
    k.csel2(51, O_SZ, H_SZ)
    k.csel2(52, 8388608, 7340032)
    k("s_waitcnt lgkmcnt(0)")
    k("s_cselect_b32 s4, s4, s6")
    k("s_cselect_b32 s5, s5, s7")
    k(f"s_lshl_b32 s{sT0}, s{sNT}, 8")
    k(f"s_sub_u32 s52, s52, s{sT0}")
    k.srd(SWT, 4, soff=f"s{sT0}", nrec="s52")
    k(f"s_mul_i32 s{sT0}, s{sMT}, s{sNK}")
    k(f"s_lshl_b32 s{sT0}, s{sT0}, 13")
    k(f"s_sub_u32 s51, s51, s{sT0}")
    k(f"s_add_u32 s{sT0}, s{sT0}, s50")
    k.srd(SA, 34, soff=f"s{sT0}", nrec="s51")
    k(f"s_mul_i32 s{sT0}, s{sW}, s{sNK}")
    k(f"s_lshl_b32 s{sT0}, s{sT0}, 11")
    k(f"v_add_u32 v{vAdma[0]}, s{sT0}, v{vL16}")
    k(f"s_lshl_b32 s{sT0}, s{sNK}, 10")
    k(f"s_sub_u32 s{sT0}, s{sT0}, 2048")
    k(f"v_add_u32 v{vAdma[1]}, s{sT0}, v{vAdma[0]}")
    k(f"s_lshl_b32 s{sT0}, s{sW}, 15")
    k(f"v_lshlrev_b32 v7, 11, v{vg}")
    k(f"v_add_u32 v7, s{sT0}, v7")
    for i in range(2):
        k(f"v_add_u32 v8, {4*i}, v{vg}")
        k(f"v_lshlrev_b32 v8, 1, v8")
        k(f"v_xor_b32 v8, v8, v{v15}")
        k(f"v_lshl_add_u32 v8, v8, 4, v7")
        k(f"v_add_u32 v{vWdma[i]}, {i*(8192-1024)}, v8")
        k(f"v_add_u32 v{vWdma[i+2]}, {(i+2)*(8192-1024)}, v8")
    k(f"s_mov_b32 s{sSOA}, 0")
    k(f"s_mov_b32 s{sSOW}, 0")

    dma_a = lambda i: f"buffer_load_dwordx4 v{vAdma[i>>1]}, s[{SA}:{SA+3}], s{sSOA} offen offset:{i*1024} lds"
    dma_w = lambda p: f"buffer_load_dwordx4 v{vWdma[p]}, s[{SWT}:{SWT+3}], s{sSOW} offen offset:{p*1024} lds"
    m0a = lambda slot: f"s_add_u32 m0, s{sW4K}, {slot*32768}"
    m0w = lambda slot: f"s_add_u32 m0, s{sW4K}, {slot*32768+16384}"
    adv = [f"s_add_u32 s{sSOA}, s{sSOA}, 2048", f"s_add_u32 s{sSOW}, s{sSOW}, {64*2048}"]
    for slot in range(4):
        k(m0a(slot)); k("s_nop 0")
        for s in range(4): k(dma_a(s))
        k(m0w(slot)); k("s_nop 0")
        for p in range(4): k(dma_w(p))
        for s in adv: k(s)
    k(f"s_and_b32 s{sT0}, s{sW}, 1")
    k(f"s_lshl_b32 s{sT0}, s{sT0}, 13")
    k(f"v_add_u32 v{vArd[0]}, s{sT0}, v{vL16}")
    k(f"v_add_u32 v{vArd[1]}, 0x10000, v{vArd[0]}")
    k(f"v_lshl_add_u32 v7, v{vg}, 2, v{vrr}")
    k(f"v_lshlrev_b32 v7, 8, v7")
    k(f"v_add_u32 v7, 16384, v7")
    k(f"v_lshl_add_u32 v7, v{vc}, 3, v7")
    k(f"v_and_b32 v9, 1, v{vg}")
    k(f"v_lshl_add_u32 v9, v9, 2, v{vrr}")
    k(f"s_and_b32 s{sT0}, s{sW}, 2")
    k(f"s_lshl_b32 s{sT0}, s{sT0}, 1")
    for i in range(4):
        k(f"s_add_u32 s{sT1}, s{sT0}, {i}")
        k(f"v_xor_b32 v8, s{sT1}, v9")
        k(f"v_lshl_add_u32 v{vWrd[0][i]}, v8, 5, v7")
        k(f"v_add_u32 v{vWrd[1][i]}, 0x10000, v{vWrd[0][i]}")
    for i in range(64):
        k(f"v_accvgpr_write_b32 a{i}, 0")
    k(f"s_lshl_b32 s{sT0}, s{sTILE}, 15")
    k(f"s_lshl_b32 s{sT1}, s{sW}, 13")
    k(f"s_add_u32 s{sT0}, s{sT0}, s{sT1}")
    k.srd(SG, 34, const=G_OFF, soff=f"s{sT0}", nrec=8192)
    k(f"s_lshl_b32 s{sT0}, s{sMT}, 18")
    k(f"s_and_b32 s{sT1}, s{sW}, 1")
    k(f"s_lshl_b32 s{sT1}, s{sT1}, 17")
    k(f"s_add_u32 s{sT0}, s{sT0}, s{sT1}")
    k(f"s_lshl_b32 s{sT1}, s{sNT}, 8")
    k(f"s_add_u32 s{sT0}, s{sT0}, s{sT1}")
    k(f"s_lshr_b32 s{sT1}, s{sW}, 1")
    k(f"s_lshl_b32 s{sT1}, s{sT1}, 7")
    k(f"s_add_u32 s{sT0}, s{sT0}, s{sT1}")
    k(f"v_lshlrev_b32 v7, 11, v{v15}")
    k(f"v_lshl_add_u32 v7, v{vg}, 4, v7")
    k(f"v_add_u32 v{vXo}, s{sT0}, v7")
    k.srd(SXI, 48, nrec=2048 * 2048)
    k.srd(SOU, 36, nrec=2048 * 2048)

    def reads(slot, rs):
        hi, lo = slot >> 1, slot & 1
        R = []
        for s in range(2):
            for i in range(4):
                R.append(f"ds_read_b128 {vr(FAb(rs,s,i),4)}, v{vArd[hi]} offset:{lo*32768+i*2048+s*1024}")
                for q2 in range(2):
                    R.append(f"ds_read_b64_tr_b16 {vr(FWb(rs,s,i)+2*q2,2)}, v{vWrd[hi][i]} offset:{lo*32768+s*8192+q2*4096}")
        return R

    def mfmas(rs):
        return [MFMA(ar(acc(nb, mb), 4), vr(FWb(rs, s, nb), 4), vr(FAb(rs, s, mb), 4), ar(acc(nb, mb), 4))
                for s in range(2) for nb in range(4) for mb in range(4)]

    k.stamp(2)
    k("s_waitcnt vmcnt(24)")
    k("s_barrier")
    k.stamp(3)
    for r in reads(0, 0): k(r)
    k(f"s_mov_b32 s{sCNT}, 0")
    k.lab("gemm2_loop")
    k(f"s_cmp_eq_u32 s{sCNT}, s{sLAST}")
    k(f"s_cselect_b32 s{SA+2}, 0, s{SA+2}")
    k(f"s_cselect_b32 s{SWT+2}, 0, s{SWT+2}")
    for u in range(4):
        k("s_waitcnt vmcnt(16) lgkmcnt(0)")
        k("s_barrier")
        fill = {}
        rd = reads((u + 1) & 3, (u + 1) & 1)
        vmg = [1, 5, 9, 13, 17, 21, 25, 29]
        add_fill(fill, 0, m0a(u))
        add_fill(fill, 16, m0w(u))
        for i in range(4): add_fill(fill, vmg[i], dma_a(i))
        for p in range(4): add_fill(fill, vmg[4 + p], dma_w(p))
        gaps = [g for g in range(28)]
        slots = [g for g in gaps if g not in vmg] + [1, 5, 9]
        slots.sort()
        for r, g in zip(rd, slots): add_fill(fill, g, r)
        add_fill(fill, 30, adv[0]); add_fill(fill, 31, adv[1])
        weave(k, mfmas(u & 1), fill)
    k(f"s_add_u32 s{sCNT}, s{sCNT}, 1")
    k(f"s_cmp_le_u32 s{sCNT}, s{sLAST}")
    k("s_cbranch_scc1 gemm2_loop")
    k.stamp(4)
    k("s_waitcnt lgkmcnt(0)")
    k(f"s_lshr_b32 s{sT0}, s{sTILE}, 1")
    k(f"s_lshl_b32 s{sT0}, s{sT0}, 2")
    k(f"v_mov_b32 v27, s{sT0}")
    k(f"s_and_b32 s{sT1}, s{sTILE}, 1")
    k(f"s_lshl_b32 s{sT1}, s{sT1}, 4")
    k(f"s_lshl_b32 s53, 1, s{sT1}")
    k(f"s_mov_b32 s56, 4096")
    k(f"s_cmp_eq_u32 s{sROLE}, 1")
    k("s_cbranch_scc1 gemm2_epi_s")

    def rnd_bf16(T, n):
        for r in range(0, n, 2):
            k(f"v_cvt_pk_bf16_f32 v{T+r+1}, v{T+r}, v{T+r+1}")
        for r in range(0, n, 2):
            k(f"v_lshlrev_b32 v{T+r}, 16, v{T+r+1}")
            k(f"v_and_b32 v{T+r+1}, 0xffff0000, v{T+r+1}")

    k(f"s_mov_b32 s{sC}, {f32(-LOG2E)}")
    for c in range(2):
        T = 64 + c * 80
        for b in range(2):
            for i in range(16):
                k(f"v_accvgpr_read_b32 v{T+16*b+i}, a{acc(2*c+b,0)+i}")
        rnd_bf16(T, 32)
        silu_n(k, list(range(T, T + 32)), list(range(T + 32, T + 64)), sC)
        for mb in range(4):
            for b in range(2):
                for h2 in range(2):
                    k(f"v_cvt_pk_bf16_f32 v{T+64+4*mb+2*b+h2}, v{T+16*b+4*mb+2*h2}, v{T+16*b+4*mb+2*h2+1}")
        for mb in range(4):
            k(f"buffer_store_dwordx4 {vr(T+64+4*mb,4)}, v{vL16}, s[{SG}:{SG+3}], {'s56' if c else '0'} offen offset:{mb*1024} sc1")
    k.stamp(5)
    k("s_waitcnt vmcnt(0)")
    k("s_barrier")
    k.stamp_out(2, 34, sW)
    k(f"s_cmp_eq_u32 s{sW}, 0")
    k("s_cbranch_scc0 gemm2_done")
    k("v_mov_b32 v28, s53")
    k("s_mov_b64 exec, 1")
    k("global_atomic_add v27, v28, s[38:39] sc1")
    k("s_endpgm")
    k.lab("gemm2_epi_s")
    for mb in range(1, 4):
        k(f"s_mov_b32 s{56+mb}, {mb*16*2048}")
    xso = lambda mb: "0" if mb == 0 else f"s{56+mb}"
    for c in range(2):
        for mb in range(4):
            k(f"buffer_load_dwordx4 {vr(XR+(c*4+mb)*4,4)}, v{vXo}, s[{SXI}:{SXI+3}], {xso(mb)} offen offset:{c*64}")
    k(f"s_cmp_eq_u32 s{sW}, 0")
    k("s_cbranch_scc0 gemm2_polled")
    k("s_mov_b32 s55, 0")
    k.lab("gemm2_poll")
    k("s_add_u32 s55, s55, 1")
    k("s_cmp_gt_u32 s55, 0x40000")
    k("s_cbranch_scc1 gemm2_polled")
    k("global_load_dword v28, v27, s[38:39] sc1")
    k("s_waitcnt vmcnt(0)")
    k("v_readfirstlane_b32 s54, v28")
    k("s_nop 3")
    k("s_and_b32 s54, s54, s53")
    k("s_cbranch_scc1 gemm2_polled")
    k("s_sleep 4")
    k("s_branch gemm2_poll")
    k.lab("gemm2_polled")
    k("s_barrier")
    k.stamp(5)
    GR = 224
    for c in range(2):
        for mb in range(4):
            k(f"buffer_load_dwordx4 {vr(GR+(c*4+mb)*4,4)}, v{vL16}, s[{SG}:{SG+3}], {'s56' if c else '0'} offen offset:{mb*1024} sc1")
    for c in range(2):
        T = 64 + c * 64
        for b in range(2):
            for i in range(16):
                k(f"v_accvgpr_read_b32 v{T+16*b+i}, a{acc(2*c+b,0)+i}")
        rnd_bf16(T, 32)
    for c in range(2):
        T = 64 + c * 64
        k(f"s_waitcnt vmcnt(4)")
        for mb in range(4):
            for b in range(2):
                for h2 in range(2):
                    g = GR + (c * 4 + mb) * 4 + 2 * b + h2
                    a = T + 16 * b + 4 * mb + 2 * h2
                    k(f"v_lshlrev_b32 v30, 16, v{g}")
                    k(f"v_and_b32 v31, 0xffff0000, v{g}")
                    k(f"v_mul_f32 v{a}, v{a}, v30")
                    k(f"v_mul_f32 v{a+1}, v{a+1}, v31")
                    k(f"v_cvt_pk_bf16_f32 v{T+32+4*mb+2*b+h2}, v{a}, v{a+1}")
        k("s_nop 1")
        for sw in ("v_permlane32_swap_b32", "v_permlane16_swap_b32"):
            for mb in range(4):
                for h2 in range(2):
                    k(f"{sw} v{T+32+4*mb+h2}, v{T+32+4*mb+2+h2}")
            k("s_nop 1")
        for mb in range(4):
            for e in range(4):
                x = XR + (c * 4 + mb) * 4 + e
                t = T + 32 + 4 * mb + e
                k(f"v_lshlrev_b32 v30, 16, v{t}")
                k(f"v_and_b32 v31, 0xffff0000, v{t}")
                k(f"v_lshlrev_b32 v32, 16, v{x}")
                k(f"v_and_b32 v33, 0xffff0000, v{x}")
                k(f"v_add_f32 v30, v30, v32")
                k(f"v_add_f32 v31, v31, v33")
                k(f"v_cvt_pk_bf16_f32 v{t}, v30, v31")
            k(f"buffer_store_dwordx4 {vr(T+32+4*mb,4)}, v{vXo}, s[{SOU}:{SOU+3}], {xso(mb)} offen offset:{c*64}")
    k.stamp_out(2, 34, sW)
    k.lab("gemm2_done")
    k("s_endpgm")
    return k, k.kd(320, 102, 256)


HEADER = """; Kernarg layout (88 bytes): A_x@0 A_k_cache@8 A_v_cache@16 A_wq@24 A_wo@32 B_x@40 B_w1@48 B_w2@56 out@64 dbg@72 ws@80
"""


def main(path):
    ks = [(gen_ln(), (256, 256, 0)), (gen_big(), (256, 256, 163840)), (gen_gemm2(), (256, 256, 131072))]
    out = [HEADER.rstrip("\n")]
    for (k, kd), (g, b, lds) in ks:
        out.append(f"; @launch kernel={k.name} grid=({g},1,1) block=({b},1,1) lds={lds}")
    out.append('.amdgcn_target "amdgcn-amd-amdhsa--gfx950"')
    out.append(".text")
    for (k, kd), _ in ks:
        out.append(k.text())
    out.append('.section .rodata,"a"')
    for (k, kd), _ in ks:
        out.append(kd)
    open(path, "w").write("\n".join(out) + "\n")


if __name__ == "__main__":
    path = f"cdna_kernels/{NAME}.s"
    for a in sys.argv[1:]:
        if "=" in a:
            kk, v = a.split("=")
            if kk == "o":
                path = v
            else:
                CFG[kk] = int(v)
    main(path)
```

```python
import sys, struct, math

NAME = "recurrent_scan__mha_block_cached__dense_activation_silu__prompt"

XN_OFF = 0
H_OFF = 4 << 20
O_OFF = 20 << 20
E_OFF = 36 << 20
FL_OFF = 60 << 20
XN_SZ, H_SZ, O_SZ = 4 << 20, 128 * 112 * 1024, 16 << 20

LOG2E = 1.4426950408889634
QSCALE = (128 ** -0.5) * LOG2E


def f32(x):
    return "0x%08x" % struct.unpack("<I", struct.pack("<f", x))[0]


CFG = dict(slow_only=0, stamps=0, abl=0, pf=1, force_slow=0, lnpf=1, p1pf=1, g2pf=0, hsc=0, osc=0, g2map=0, xbf=1, g2la=4)
ST_OFF = 64 << 20


class K:
    def __init__(self, name):
        self.name = name
        self.L = []

    def __call__(self, s):
        self.L.append("    " + s)

    def lab(self, s):
        self.L.append(s + ":")

    def head(self):
        n = self.name
        return f".globl {n}\n.p2align 8\n.type {n},@function\n{n}:"

    def text(self):
        return self.head() + "\n" + "\n".join(self.L)

    def kd(self, vgpr, sgpr, accum):
        return f""".p2align 6
.amdhsa_kernel {self.name}
  .amdhsa_next_free_vgpr {vgpr}
  .amdhsa_next_free_sgpr {sgpr}
  .amdhsa_accum_offset {accum}
  .amdhsa_group_segment_fixed_size 0
  .amdhsa_kernarg_size 88
  .amdhsa_user_sgpr_count 2
  .amdhsa_user_sgpr_kernarg_segment_ptr 1
  .amdhsa_system_sgpr_workgroup_id_x 1
.end_amdhsa_kernel"""

    def stamp(self, i, real=False):
        if CFG["stamps"]:
            self(f"{'s_memrealtime' if real else 's_memtime'} s[{64+2*i}:{65+2*i}]")

    def stamp_out(self, kidx, sws, sw):
        if not CFG["stamps"]:
            return
        self("s_waitcnt vmcnt(0)")
        self.stamp(6)
        self.stamp(7, True)
        self("s_waitcnt lgkmcnt(0)")
        self(f"s_lshl_b32 s92, s2, 2")
        self(f"s_add_u32 s92, s92, s{sw}")
        self(f"s_lshl_b32 s92, s92, 6")
        self(f"s_add_u32 s92, s92, {ST_OFF + kidx*65536}")
        self(f"s_add_u32 s88, s{sws}, s92")
        self(f"s_addc_u32 s89, s{sws+1}, 0")
        self("s_getreg_b32 s90, hwreg(HW_REG_XCC_ID)")
        self("s_mov_b32 s86, s90")
        self("v_mov_b32 v186, 0")
        for h in range(3):
            for i in range(4):
                self(f"v_mov_b32 v{188+i}, s{64+2*(4*h+i)}")
            self(f"global_store_dwordx4 v186, v[188:191], s[88:89] offset:{16*h}")
            self("s_nop 1")

    def csel2(self, d, a, b):
        self(f"s_mov_b32 s{d}, {b}")
        self(f"s_cselect_b32 s{d}, {a}, s{d}")

    def srd(self, d, p, const=0, soff=None, nrec=0):
        a = self
        if const:
            a(f"s_add_u32 s{d}, s{p}, {const}")
            a(f"s_addc_u32 s{d+1}, s{p+1}, 0")
        else:
            a(f"s_mov_b32 s{d}, s{p}")
            a(f"s_mov_b32 s{d+1}, s{p+1}")
        if soff is not None:
            a(f"s_add_u32 s{d}, s{d}, {soff}")
            a(f"s_addc_u32 s{d+1}, s{d+1}, 0")
        a(f"s_and_b32 s{d+1}, s{d+1}, 0xffff")
        a(f"s_mov_b32 s{d+2}, {nrec}")
        a(f"s_mov_b32 s{d+3}, 0x20000")


def vr(b, n):
    return f"v[{b}:{b+n-1}]"


def ar(b, n):
    return f"a[{b}:{b+n-1}]"


def MFMA(d, a, b, c):
    return f"v_mfma_f32_16x16x32_bf16 {d}, {a}, {b}, {c}"


def weave(k, mfmas, fill):
    for i, m in enumerate(mfmas):
        k(m)
        for s in fill.get(i, []):
            k(s)


def interleave(k, groups, rest, skip):
    per = -(-len(rest) // (len(groups) - skip))
    pos = 0
    for n, grp in enumerate(groups):
        for x in grp: k(x)
        if n >= skip:
            end = min(len(rest), pos + per)
            while end < len(rest) and rest[end].startswith("s_addc"): end += 1
            for x in rest[pos:end]: k(x)
            pos = end
    for x in rest[pos:]: k(x)


def add_fill(fill, i, s):
    fill.setdefault(i, []).append(s)


def gen_ln():
    k = K("ln_kernel")
    k("s_cmp_ge_u32 s2, 256")
    k("s_cbranch_scc1 ln_done")
    k("s_load_dwordx2 s[4:5], s[0:1], 0")
    k("s_load_dwordx2 s[6:7], s[0:1], 80")
    k("s_load_dwordx2 s[20:21], s[0:1], 24")
    k("s_load_dwordx2 s[22:23], s[0:1], 48")
    k("v_lshrrev_b32 v1, 5, v0")
    k("v_and_b32 v2, 31, v0")
    k("s_lshl_b32 s3, s2, 3")
    k("v_add_u32 v1, s3, v1")
    k("v_lshlrev_b32 v3, 11, v1")
    k("v_lshl_add_u32 v3, v2, 4, v3")
    k("v_lshrrev_b32 v4, 4, v1")
    k("v_lshlrev_b32 v4, 15, v4")
    k("v_lshrrev_b32 v5, 2, v2")
    k("v_lshl_add_u32 v4, v5, 10, v4")
    k("v_and_b32 v5, 3, v2")
    k("v_lshl_add_u32 v4, v5, 8, v4")
    k("v_and_b32 v5, 15, v1")
    k("v_lshl_add_u32 v4, v5, 4, v4")
    k("s_waitcnt lgkmcnt(0)")
    k.srd(8, 4, nrec=2048 * 2048)
    k.srd(12, 6, const=XN_OFF, nrec=XN_SZ)
    for i in range(4):
        k(f"buffer_load_dwordx4 {vr(8+4*i,4)}, v3, s[8:11], 0 offen offset:{512*i}")
    if CFG["lnpf"]:
        k.srd(24, 20, nrec=8 << 20)
        k.srd(28, 22, nrec=7340032)
        if CFG["lnpf"] == 99:
            k("v_lshlrev_b32 v6, 6, v0")
            k("s_lshl_b32 s32, s2, 15")
            k("s_mul_i32 s33, s2, 28672")
            k("v_add_u32 v7, 16384, v6")
            k("buffer_load_dword v68, v6, s[24:27], s32 offen")
            k("buffer_load_dword v69, v7, s[24:27], s32 offen")
            k("buffer_load_dword v70, v6, s[28:31], s33 offen")
            k("buffer_load_dword v71, v7, s[28:31], s33 offen")
        else:
            NPF = CFG["lnpf"]
            k("v_lshlrev_b32 v6, 4, v0")
            k("s_lshl_b32 s32, s2, 12")
            k("s_mul_i32 s33, s2, 3584")
            for j in range(NPF):
                k("buffer_load_dwordx4 v[68:71], v6, s[24:27], s32 offen")
                k("buffer_load_dwordx4 v[68:71], v6, s[28:31], s33 offen")
                k(f"s_add_u32 s32, s32, {1 << 20}")
                k(f"s_add_u32 s33, s33, {917504}")
    k("s_mov_b32 s16, 8192")
    k("s_mov_b32 s17, 16384")
    k("s_mov_b32 s18, 24576")
    k(f"s_mov_b32 s19, {f32(1.0/1024)}")
    for i in range(4):
        k(f"s_waitcnt vmcnt({3-i + (2 * CFG['lnpf'])})")
        for r in range(4):
            R = 8 + 4 * i + r
            k(f"v_lshlrev_b32 v{32+8*i+2*r}, 16, v{R}")
            k(f"v_and_b32 v{33+8*i+2*r}, 0xffff0000, v{R}")

    def reduce32(s, t):
        for p in ("quad_perm:[1,0,3,2]", "quad_perm:[2,3,0,1]", "row_half_mirror", "row_mirror"):
            k("s_nop 1")
            k(f"v_add_f32_dpp v{s}, v{s}, v{s} {p} row_mask:0xf bank_mask:0xf")
        k(f"v_mov_b32 v{t}, v{s}")
        k("s_nop 1")
        k(f"v_permlane16_swap_b32 v{s}, v{t}")
        k("s_nop 1")
        k(f"v_add_f32 v{s}, v{s}, v{t}")

    for i in range(4):
        k(f"v_add_f32 v{24+i}, v{32+i}, v{36+i}")
    for j in range(8, 32, 4):
        for i in range(4):
            k(f"v_add_f32 v{24+i}, v{24+i}, v{32+j+i}")
    k("v_add_f32 v24, v24, v25")
    k("v_add_f32 v26, v26, v27")
    k("v_add_f32 v24, v24, v26")
    reduce32(24, 25)
    k("v_mul_f32 v24, s19, v24")
    for i in range(4):
        k(f"v_sub_f32 v{64+i}, v{32+i}, v24")
        k(f"v_mul_f32 v{26+i}, v{64+i}, v{64+i}")
    for j in range(4, 32):
        k(f"v_sub_f32 v{64+(j&3)}, v{32+j}, v24")
        k(f"v_fmac_f32 v{26+(j&3)}, v{64+(j&3)}, v{64+(j&3)}")
    k("v_add_f32 v26, v26, v27")
    k("v_add_f32 v28, v28, v29")
    k("v_add_f32 v26, v26, v28")
    reduce32(26, 27)
    k("v_mul_f32 v26, s19, v26")
    k("v_cvt_pk_bf16_f32 v24, v24, v26")
    k("v_and_b32 v26, 0xffff0000, v24")
    k("v_lshlrev_b32 v24, 16, v24")
    k(f"v_add_f32 v26, {f32(1e-5)}, v26")
    k("v_cvt_pk_bf16_f32 v26, v26, v26")
    k("v_lshlrev_b32 v26, 16, v26")
    k("v_sqrt_f32 v26, v26")
    k("s_nop 0")
    k("v_cvt_pk_bf16_f32 v26, v26, v26")
    k("v_lshlrev_b32 v26, 16, v26")
    k("v_rcp_f32 v26, v26")
    for i in range(4):
        for r in range(4):
            a, b = 32 + 8 * i + 2 * r, 33 + 8 * i + 2 * r
            k(f"v_sub_f32 v{a}, v{a}, v24")
            k(f"v_sub_f32 v{b}, v{b}, v24")
            k(f"v_cvt_pk_bf16_f32 v{b}, v{a}, v{b}")
            k(f"v_lshlrev_b32 v{a}, 16, v{b}")
            k(f"v_and_b32 v{b}, 0xffff0000, v{b}")
            k(f"v_mul_f32 v{a}, v{a}, v26")
            k(f"v_mul_f32 v{b}, v{b}, v26")
            k(f"v_cvt_pk_bf16_f32 v{8+4*i+r}, v{a}, v{b}")
        so = ["0", "s16", "s17", "s18"][i]
        k(f"buffer_store_dwordx4 {vr(8+4*i,4)}, v4, s[12:15], {so} offen")
    k.srd(36, 6, const=FL_OFF, nrec=65536)
    k("v_lshlrev_b32 v6, 7, v0")
    k("v_mov_b32 v7, 0")
    k("s_lshl_b32 s32, s2, 8")
    k("v_cmp_gt_u32 vcc, 2, v0")
    k("s_and_saveexec_b64 s[34:35], vcc")
    k("s_cbranch_execz ln_done")
    k("buffer_store_dword v7, v6, s[36:39], s32 offen")
    k.lab("ln_done")
    k("s_endpgm")
    return k, k.kd(72, 48, 72)


def lane_fields(k, vl, vrr, vc, vg, v15, sw):
    k(f"v_lshrrev_b32 v{vg}, 6, v0")
    k(f"v_and_b32 v{vl}, 63, v0")
    k(f"v_bfe_u32 v{vrr}, v0, 2, 2")
    k(f"v_readfirstlane_b32 s{sw}, v{vg}")
    k(f"v_and_b32 v{vc}, 3, v0")
    k(f"v_and_b32 v{v15}, 15, v0")
    k(f"v_bfe_u32 v{vg}, v0, 4, 2")


def silu_n(k, regs, temps, sneg):
    P = list(zip(regs, temps))
    for a, t in P: k(f"v_mul_f32 v{t}, s{sneg}, v{a}")
    for a, t in P: k(f"v_exp_f32 v{t}, v{t}")
    for a, t in P: k(f"v_add_f32 v{t}, 1.0, v{t}")
    for a, t in P: k(f"v_rcp_f32 v{t}, v{t}")
    for a, t in P: k(f"v_mul_f32 v{a}, v{a}, v{t}")


def reduce_g(k, op, regs, temps):
    for sw in ("v_permlane16_swap_b32", "v_permlane32_swap_b32"):
        for a, t in zip(regs, temps): k(f"v_mov_b32 v{t}, v{a}")
        k("s_nop 1")
        for a, t in zip(regs, temps): k(f"{sw} v{a}, v{t}")
        k("s_nop 1")
        for a, t in zip(regs, temps): k(f"{op} v{a}, v{a}, v{t}")


MARGIN = 60.0
LTHRESH = 2.0 ** 60


def gen_big():
    k = K("big_kernel")
    sW, sHEAD, sQB, sW2K, sSOW1, sW4K, sSOX, sSOWQ, sCNT = 20, 21, 22, 23, 24, 25, 26, 27, 28
    sT0, sT1, sC = 29, 30, 31
    SK, SV, SX, SO, SWQ, SW1, SH = 8, 12, 16, 36, 52, 56, 60
    sSOK, sSOV = 40, 41
    sH7 = list(range(93, 100))
    vl, vrr, vc, vg, v15, vL16 = 1, 2, 3, 4, 5, 6
    vWq = [10, 11, 12, 13]
    vW1 = list(range(14, 21))
    vDq, vD1 = [21, 22], [23, 24]
    vX = [25, 26, 27, 28]
    XR = lambda st, mb: 32 + st * 16 + mb * 4
    WF = lambda st, nb: 96 + st * 60 + nb * 4
    vKrd = [216, 217, 218, 219]
    vVrd = list(range(220, 228))
    vKdma = [228, 229, 230, 231]
    vVdma = [232, 233]
    acc = lambda nb, mb: (nb * 4 + mb) * 4
    KB, VB, WB = 0, 65536, 98304

    k("s_cmp_ge_u32 s2, 256")
    k("s_cbranch_scc1 big_done")
    k.stamp(0, True); k.stamp(1)
    k("s_load_dwordx4 s[4:7], s[0:1], 8")
    k("s_load_dwordx4 s[44:47], s[0:1], 24")
    k("s_load_dwordx4 s[48:51], s[0:1], 48")
    k("s_load_dwordx2 s[34:35], s[0:1], 80")
    lane_fields(k, vl, vrr, vc, vg, v15, sW)
    k("s_and_b32 s3, s2, 7")
    k("s_lshl_b32 s3, s3, 2")
    k(f"s_lshr_b32 s{sT0}, s2, 6")
    k(f"s_add_u32 s{sHEAD}, s3, s{sT0}")
    k(f"s_bfe_u32 s{sQB}, s2, 0x30003")
    k(f"s_lshl_b32 s{sW4K}, s{sW}, 12")
    k(f"s_lshl_b32 s{sW2K}, s{sW}, 11")
    k(f"v_lshlrev_b32 v{vL16}, 4, v{vl}")
    for mb in range(4):
        k(f"v_add_u32 v{vX[mb]}, {mb*32768}, v{vL16}")
    k(f"s_lshl_b32 s{sT0}, s{sW}, 3")
    k(f"v_add_u32 v7, s{sT0}, v{vg}")
    k(f"v_lshlrev_b32 v8, 2, v{vg}")
    k(f"v_xor_b32 v8, v8, v{v15}")
    k(f"v_lshlrev_b32 v9, 13, v7")
    k(f"v_lshl_add_u32 v{vDq[0]}, v8, 4, v9")
    k(f"v_add_u32 v{vDq[1]}, {4*8192-1024}, v{vDq[0]}")
    k(f"s_and_b32 s{sT0}, s{sW}, 1")
    k(f"s_lshl_b32 s{sT0}, s{sT0}, 2")
    k(f"v_or_b32 v8, s{sT0}, v{vg}")
    k(f"v_lshlrev_b32 v8, 1, v8")
    k(f"v_xor_b32 v8, v8, v{v15}")
    k(f"v_mul_u32_u24 v9, 7168, v7")
    k(f"v_lshl_add_u32 v9, v8, 4, v9")
    k(f"v_cmp_gt_u32 vcc, 14, v8")
    k(f"v_mov_b32 v8, 0x80000000")
    k("s_nop 0")
    k(f"v_cndmask_b32 v{vD1[0]}, v8, v9, vcc")
    k(f"v_add_u32 v{vD1[1]}, {4*7168-1024}, v{vD1[0]}")
    k("s_waitcnt lgkmcnt(0)")
    k(f"s_lshl_b32 s3, s{sQB}, 4")
    k(f"s_lshl_b32 s{sT0}, s{sW}, 2")
    k(f"s_add_u32 s33, s3, s{sT0}")
    k(f"s_lshl_b32 s3, s33, 15")
    k.srd(SX, 34, const=XN_OFF, soff="s3", nrec=4 * 32768)
    k(f"s_lshl_b32 s3, s{sHEAD}, 8")
    k(f"s_sub_u32 s{sT1}, {8 << 20}, s3")
    k.srd(SWQ, 44, soff="s3", nrec=f"s{sT1}")
    k(f"s_mul_i32 s3, s{sHEAD}, 224")
    k(f"s_sub_u32 s{sT1}, 7340032, s3")
    k.srd(SW1, 48, soff="s3", nrec=f"s{sT1}")
    k(f"s_mov_b32 s{sSOX}, 0")
    k(f"s_mov_b32 s{sSOWQ}, 0")
    k(f"s_mov_b32 s{sSOW1}, 0")
    PF, sPFS, sPFO, sPFC, sPFX, vPF = SH, 93, 94, 95, 96, 30
    if CFG["p1pf"]:
        k(f"s_cmp_lt_u32 s{sW}, 2")
        for i in range(3):
            k(f"s_cselect_b32 s{PF+i}, s{SWQ+i}, s{SW1+i}")
        k(f"s_mov_b32 s{PF+3}, 0x20000")
        k.csel2(sT0, 8192, 7168)
        k(f"s_lshl_b32 s{sPFS}, s{sT0}, 5")
        k(f"s_and_b32 s{sT1}, s{sW}, 1")
        k(f"s_lshl_b32 s{sT1}, s{sT1}, 4")
        k(f"v_lshrrev_b32 v7, 2, v{vl}")
        k(f"v_add_u32 v7, s{sT1}, v7")
        k(f"v_mul_lo_u32 v7, v7, s{sT0}")
        k(f"v_lshl_add_u32 v{vPF}, v{vc}, 6, v7")
        k(f"s_mul_i32 s{sPFX}, s{sPFS}, s{sQB}")
        k(f"s_lshl_b32 s{sPFO}, s{sPFS}, 3")
        k(f"s_sub_u32 s{sPFC}, 8, s{sQB}")
    pfl = f"buffer_load_dword v31, v{vPF}, s[{PF}:{PF+3}], s{sPFX} offen"
    pf_pre = [f"s_and_b32 s{sPFX}, s{sPFC}, 7", f"s_cselect_b32 s{sPFX}, 0x40000000, s{sPFO}"]
    pf_post = [f"s_add_u32 s{sPFO}, s{sPFO}, s{sPFS}", f"s_add_u32 s{sPFC}, s{sPFC}, 1"]

    def xload(st, mb, imm):
        return f"buffer_load_dwordx4 {vr(XR(st,mb),4)}, v{vX[mb]}, s[{SX}:{SX+3}], s{sSOX} offen offset:{imm}"

    dq = lambda i: f"buffer_load_dwordx4 v{vDq[i]}, s[{SWQ}:{SWQ+3}], s{sSOWQ} offen offset:{i*1024} lds"
    d1 = lambda i: f"buffer_load_dwordx4 v{vD1[i]}, s[{SW1}:{SW1+3}], s{sSOW1} offen offset:{i*1024} lds"
    m0q = lambda slot: f"s_add_u32 m0, s{sW2K}, {WB+slot*16384}"
    m01 = lambda slot: f"s_add_u32 m0, s{sW2K}, {WB+slot*16384+8192}"
    advw = [f"s_add_u32 s{sSOWQ}, s{sSOWQ}, {32*8192}", f"s_add_u32 s{sSOW1}, s{sSOW1}, {32*7168}"]

    def wdma_grp(slot):
        return [[m0q(slot), "s_nop 0", dq(0)], [dq(1)], [m01(slot), "s_nop 0", d1(0)], [d1(1)] + advw]

    xgrp = lambda st: [[xload(st, mb, st * 1024)] for mb in range(4)]
    vmem = xgrp(0) + wdma_grp(0) + wdma_grp(1) + xgrp(1) + wdma_grp(2) + xgrp(2) + wdma_grp(3)
    if CFG["p1pf"]:
        vmem += [[pfl, f"s_mov_b32 s{sPFX}, 0x40000000"], [pfl], [pfl]]
    k2 = K("tmp")
    k2(f"v_lshl_add_u32 v7, v{vg}, 3, v{vrr}")
    k2(f"v_lshlrev_b32 v7, 8, v7")
    k2(f"v_add_u32 v7, {WB}, v7")
    k2(f"v_lshl_add_u32 v8, v{vc}, 4, v7")
    for js in range(4):
        k2(f"v_xor_b32 v9, {js}, v{vrr}")
        k2(f"v_lshl_add_u32 v{vWq[js]}, v9, 6, v8")
    k2(f"v_lshl_add_u32 v8, v{vc}, 3, v7")
    k2(f"v_add_u32 v8, 8192, v8")
    k2(f"v_and_b32 v29, 1, v{vg}")
    k2(f"v_lshl_add_u32 v29, v29, 2, v{vrr}")
    for n7 in range(7):
        k2(f"v_xor_b32 v9, {n7}, v29")
        k2(f"v_lshl_add_u32 v{vW1[n7]}, v9, 5, v8")
    k2(f"s_lshl_b32 s3, s{sHEAD}, 19")
    k2.srd(SK, 4, soff="s3", nrec=524288)
    k2.srd(SV, 6, soff="s3", nrec=524288)
    k2(f"v_lshlrev_b32 v7, 8, v{v15}")
    for js in range(4):
        k2(f"v_add_u32 v9, {4*js}, v{vg}")
        k2(f"v_xor_b32 v9, v9, v{v15}")
        k2(f"v_lshl_add_u32 v{vKrd[js]}, v9, 4, v7")
    k2(f"v_lshl_add_u32 v7, v{vg}, 2, v{vrr}")
    k2(f"v_lshlrev_b32 v7, 8, v7")
    k2(f"v_add_u32 v7, {VB}, v7")
    k2(f"v_lshl_add_u32 v7, v{vc}, 3, v7")
    for db in range(8):
        k2(f"v_xor_b32 v9, {db}, v29")
        k2(f"v_lshl_add_u32 v{vVrd[db]}, v9, 5, v7")
    k2(f"v_lshlrev_b32 v7, 8, v{vg}")
    k2(f"v_add_u32 v7, s{sW4K}, v7")
    for p in range(4):
        k2(f"v_add_u32 v9, {4*p}, v{vg}")
        k2(f"v_xor_b32 v9, v9, v{v15}")
        k2(f"v_lshl_add_u32 v{vKdma[p]}, v9, 4, v7")
    for i in range(2):
        k2(f"v_add_u32 v9, {4*i}, v{vg}")
        k2(f"v_lshlrev_b32 v9, 1, v9")
        k2(f"v_xor_b32 v9, v9, v{v15}")
        k2(f"v_lshl_add_u32 v{vVdma[i]}, v9, 4, v7")
    k2(f"s_mov_b32 s{sSOK}, 0")
    k2(f"s_mov_b32 s{sSOV}, 0")
    for i in range(240):
        k2(f"v_accvgpr_write_b32 a{i}, 0")

    rest = [x.strip() for x in k2.L]
    interleave(k, vmem, rest, 7)

    dma_k = lambda p: f"buffer_load_dwordx4 v{vKdma[p]}, s[{SK}:{SK+3}], s{sSOK} offen offset:{p*1024} lds"
    dma_v = lambda p: f"buffer_load_dwordx4 v{vVdma[p&1]}, s[{SV}:{SV+3}], s{sSOV} offen offset:{p*1024} lds"
    m0k = lambda slot: f"s_add_u32 m0, s{sW4K}, {KB+slot*16384}"
    m0v = lambda slot: f"s_add_u32 m0, s{sW4K}, {VB+slot*16384}"
    advk = f"s_add_u32 s{sSOK}, s{sSOK}, 16384"
    advv = f"s_add_u32 s{sSOV}, s{sSOV}, 16384"

    def wreads(slot, st):
        R = []
        for nb in range(15):
            for q2 in range(2):
                if nb < 8:
                    R.append(f"ds_read_b64_tr_b16 {vr(WF(st,nb)+2*q2,2)}, v{vWq[nb>>1]} offset:{slot*16384+q2*1024+(nb&1)*8}")
                else:
                    R.append(f"ds_read_b64_tr_b16 {vr(WF(st,nb)+2*q2,2)}, v{vW1[nb-8]} offset:{slot*16384+q2*1024}")
        return R

    def p1_mfmas(u):
        return [MFMA(ar(acc(nb, mb), 4), vr(WF(u & 1, nb), 4), vr(XR(u, mb), 4), ar(acc(nb, mb), 4))
                for nb in range(15) for mb in range(4)]

    def p1_stage(u, vmcnt, vm_items, rd=True):
        k(f"s_waitcnt vmcnt({vmcnt}) lgkmcnt(0)")
        k("s_barrier")
        fill = {}
        if rd:
            for i, r in enumerate(wreads((u + 1) & 3, (u + 1) & 1)):
                add_fill(fill, i, r)
        for i, (pre, ins, post) in enumerate(vm_items):
            g = 31 + 3 * i
            for s in pre: add_fill(fill, g - 1, s)
            add_fill(fill, g, ins)
            for s in post: add_fill(fill, g + 1, s)
        weave(k, p1_mfmas(u), fill)

    X1 = 1 if CFG["p1pf"] else 0
    k(f"s_waitcnt vmcnt({20+3*X1})")
    k("s_barrier")
    k.stamp(2)
    for r in wreads(0, 0): k(r)
    k(f"s_mov_b32 s{sCNT}, 0")
    k.lab("big_p1_loop")
    for u in range(4):
        imm = 3072 if u == 0 else (u - 1) * 1024
        it = [([m0q(u)], dq(0), []), ([], dq(1), []), ([m01(u)], d1(0), []), ([], d1(1), advw)]
        it += [([], xload((u + 3) & 3, mb, imm), [f"s_add_u32 s{sSOX}, s{sSOX}, 4096"] if (u == 0 and mb == 3) else [])
               for mb in range(4)]
        if CFG["p1pf"]:
            it.append((pf_pre, pfl, pf_post))
        p1_stage(u, 16 + 3 * X1, it)
    k(f"s_add_u32 s{sCNT}, s{sCNT}, 1")
    k(f"s_cmp_lt_u32 s{sCNT}, 7")
    k("s_cbranch_scc1 big_p1_loop")

    def kv_items(kind, slot):
        L = []
        for p in range(4):
            pre = [m0k(slot) if kind == "k" else m0v(slot)] if p == 0 else []
            post = [advk if kind == "k" else advv] if p == 3 else []
            L.append((pre, dma_k(p) if kind == "k" else dma_v(p), post))
        return L

    p1_stage(0, 16 + 3 * X1, [([], xload(3, mb, 3072), []) for mb in range(4)] + kv_items("k", 0))
    p1_stage(1, 16 + 2 * X1, kv_items("k", 1) + kv_items("v", 0))
    p1_stage(2, 16 + X1, kv_items("k", 2) + kv_items("v", 1))
    p1_stage(3, 20, kv_items("k", 3), rd=False)
    k.stamp(3)

    k(f"s_mul_i32 s3, s33, {112*1024}")
    k.srd(SH, 34, const=H_OFF, soff="s3", nrec=4 * 112 * 1024)
    k(f"s_mul_i32 s{sT0}, s{sHEAD}, 7")
    for n7 in range(7):
        k(f"s_add_u32 s{sT1}, s{sT0}, {n7}")
        k(f"s_lshr_b32 s{sH7[n7]}, s{sT1}, 1")
        k(f"s_lshl_b32 s{sH7[n7]}, s{sH7[n7]}, 10")
        k(f"s_and_b32 s{sT1}, s{sT1}, 1")
        k(f"s_lshl_b32 s{sT1}, s{sT1}, 3")
        k(f"s_add_u32 s{sH7[n7]}, s{sH7[n7]}, s{sT1}")
    for mb in range(4):
        k(f"v_add_u32 v{vX[mb]}, {mb*112*1024}, v{vL16}")
    k(f"s_mov_b32 s{sC}, {f32(-LOG2E)}")
    nvm = 0
    if CFG["pf"]:
        k(f"s_lshl_b32 s3, s2, 2")
        k(f"s_add_u32 s3, s3, s{sW}")
        k.srd(SWQ, 46, nrec=8 << 20)
        k.srd(SW1, 50, nrec=7340032)
        k(f"s_lshl_b32 s{sSOWQ}, s3, 13")
        k(f"s_mul_i32 s{sSOW1}, s3, 7168")
    Q = lambda qb, js: 32 + (qb * 4 + js) * 4
    k(f"s_mov_b32 s{sC}, {f32(QSCALE)}")
    for js in range(4):
        T = 96 + (js & 1) * 32
        for b in range(2):
            for i in range(16):
                k(f"v_accvgpr_read_b32 v{T+16*b+i}, a{acc(2*js+b,0)+i}")
        for i in range(32):
            k(f"v_mul_f32 v{T+i}, s{sC}, v{T+i}")
        for qb in range(4):
            for b in range(2):
                for h2 in range(2):
                    k(f"v_cvt_pk_bf16_f32 v{Q(qb,js)+2*b+h2}, v{T+16*b+4*qb+2*h2}, v{T+16*b+4*qb+2*h2+1}")
    k.stamp(8)
    k("s_waitcnt vmcnt(0)")
    k(f"s_mov_b32 s{sC}, {f32(-LOG2E)}")
    for n7 in range(7):
        T = 96 + (n7 & 1) * 48
        for i in range(16):
            k(f"v_accvgpr_read_b32 v{T+i}, a{acc(8+n7,0)+i}")
        silu_n(k, list(range(T, T + 16)), list(range(T + 16, T + 32)), sC)
        for i in range(8):
            k(f"v_cvt_pk_bf16_f32 v{T+32+i}, v{T+2*i}, v{T+2*i+1}")
        for mb in range(4):
            k(f"buffer_store_dwordx2 {vr(T+32+2*mb,2)}, v{vX[mb]}, s[{SH}:{SH+3}], s{sH7[n7]} offen" + (" sc1" if CFG["hsc"] == 1 else " nt" if CFG["hsc"] == 2 else ""))
            nvm += 1
    k(f"s_lshl_b32 s3, s33, 7")
    k(f"s_lshl_b32 s{sT0}, s{sHEAD}, 2")
    k(f"s_add_u32 s3, s3, s{sT0}")
    k("s_lshl_b32 s3, s3, 10")
    k(f"s_sub_u32 s{sT1}, {O_SZ}, s3")
    k.srd(SO, 34, const=O_OFF, soff="s3", nrec=f"s{sT1}")

    Sb = lambda buf, kb, qb: 96 + buf * 32 + (kb * 4 + qb) * 4
    Pb = lambda buf, qb: 160 + buf * 16 + qb * 4
    NM = lambda qb: 192 + 4 * qb
    vLs = [208, 209, 210, 211]
    KF = lambda f: 192 + 4 * f
    VF = lambda db: 224 + 4 * db
    O = lambda db, qb: (db * 4 + qb) * 4

    def kread(f, slot, half):
        return f"ds_read_b128 {ar(KF(f),4)}, v{vKrd[f&3]} offset:{slot*16384+half*8192+(f>>2)*4096}"

    def vread(db, q2, slot, half):
        return f"ds_read_b64_tr_b16 {ar(VF(db)+2*q2,2)}, v{vVrd[db]} offset:{slot*16384+half*8192+q2*4096}"

    def qk(buf, first_c=None):
        M = []
        for f in range(8):
            for qb in range(4):
                d = vr(Sb(buf, f >> 2, qb), 4)
                c = d if (f & 3) else (first_c if first_c is not None else vr(NM(qb), 4))
                M.append(MFMA(d, ar(KF(f), 4), vr(Q(qb, f & 3), 4), c))
        return M

    def pv(buf):
        return [MFMA(ar(O(db, qb), 4), ar(VF(db), 4), vr(Pb(buf, qb), 4), ar(O(db, qb), 4))
                for db in range(8) for qb in range(4)]

    def sm_add(buf, i):
        kb, qb, r = i >> 4, (i >> 2) & 3, i & 3
        s = 96 + buf * 32 + i
        L = [f"v_add_f32 v{vLs[qb]}, v{vLs[qb]}, v{s}"]
        if i & 1:
            L.append(f"v_cvt_pk_bf16_f32 v{Pb(buf,qb)+2*kb+(r>>1)}, v{s-1}, v{s}")
        return L

    sm_exp = lambda buf, i: f"v_exp_f32 v{96+buf*32+i}, v{96+buf*32+i}"

    if not CFG["slow_only"]:
        for i in range(128):
            k(f"v_accvgpr_write_b32 a{i}, 0")
        for qb in range(4):
            k(f"v_mov_b32 v{vLs[qb]}, 0")
        k.stamp(9)
        k.stamp(10)
        k("s_barrier")
        k.stamp(4)
        for f in range(8): k(kread(f, 0, 0))
        k("s_waitcnt lgkmcnt(0)")
        fill = {}
        for f in range(8): add_fill(fill, 4 * f + 3, kread(f, 0, 1))
        weave(k, qk(0, "0"), fill)
        k("s_nop 7")
        tm, tt = [212, 213, 214, 215], [234, 235, 236, 237]
        for qb in range(4):
            k(f"v_max3_f32 v{tm[qb]}, v{Sb(0,0,qb)}, v{Sb(0,0,qb)+1}, v{Sb(0,0,qb)+2}")
        for qb in range(4):
            k(f"v_max3_f32 v{tm[qb]}, v{Sb(0,0,qb)+3}, v{Sb(0,1,qb)}, v{tm[qb]}")
        for qb in range(4):
            k(f"v_max3_f32 v{tm[qb]}, v{Sb(0,1,qb)+1}, v{Sb(0,1,qb)+2}, v{tm[qb]}")
        for qb in range(4):
            k(f"v_max_f32 v{tm[qb]}, v{Sb(0,1,qb)+3}, v{tm[qb]}")
        reduce_g(k, "v_max_f32", tm, tt)
        for qb in range(4):
            k(f"v_sub_f32 v{tm[qb]}, {f32(-MARGIN)}, v{tm[qb]}")
        for qb in range(4):
            for r in range(4):
                k(f"v_mov_b32 v{NM(qb)+r}, v{tm[qb]}")
        for i in range(32):
            k(f"v_add_f32 v{96+i}, v{96+i}, v{tm[(i>>2)&3]}")
        k("s_waitcnt lgkmcnt(0)")
        fill = {}
        for f in range(8): add_fill(fill, 4 * f + 3, kread(f, 1, 0))
        for i in range(32):
            if i >= 1:
                for x in sm_add(0, i - 1): add_fill(fill, i, x)
            add_fill(fill, i, sm_exp(0, i))
        weave(k, qk(1), fill)
        k(f"s_mov_b32 s{sCNT}, 0")

        def half(tt, par):
            vm, ds, va, ex, first, last = {}, {}, {}, {}, {}, {}
            M = qk(par) + pv(par)
            for db in range(8):
                for q2 in range(2):
                    add_fill(ds, 2 * db + q2, vread(db, q2, tt, par))
            for f in range(8):
                add_fill(ds, 16 + 2 * f, kread(f, (tt + 1 + par) & 3, 1 - par))
            add_fill(first, 7, "s_waitcnt lgkmcnt(7)")
            if par == 1:
                add_fill(first, 15, f"s_waitcnt vmcnt({9 if (CFG['pf'] and (tt & 1)) else 8}) lgkmcnt(7)")
                add_fill(last, 15, "s_barrier")
                if CFG["pf"] and tt == 0:
                    add_fill(vm, 16, f"buffer_load_dwordx4 v[244:247], v{vL16}, s[{SWQ}:{SWQ+3}], s{sSOWQ} offen")
                    add_fill(first, 19, f"s_add_u32 s{sSOWQ}, s{sSOWQ}, 1024")
                if CFG["pf"] and tt == 2:
                    add_fill(vm, 16, f"buffer_load_dwordx4 v[248:251], v{vL16}, s[{SW1}:{SW1+3}], s{sSOW1} offen")
                    add_fill(first, 19, f"s_add_u32 s{sSOW1}, s{sSOW1}, 1024")
                add_fill(first, 16, m0k(tt))
                for p in range(4): add_fill(vm, 17 + 4 * p, dma_k(p))
                add_fill(first, 31, advk)
            else:
                add_fill(first, 15, "s_waitcnt lgkmcnt(7)")
                add_fill(first, 16, m0v((tt + 2) & 3))
                for p in range(4): add_fill(vm, 17 + 4 * p, dma_v(p))
                add_fill(first, 31, advv)
            add_fill(first, 23, "s_waitcnt lgkmcnt(4)")
            add_fill(first, 31, "s_waitcnt lgkmcnt(4)")
            for x in sm_add(par, 31): add_fill(va, 0, x)
            for g in range(32):
                if g >= 1:
                    for x in sm_add(1 - par, g - 1): add_fill(va, g, x)
                add_fill(ex, g, sm_exp(1 - par, g))
            fill = {}
            for g in range(32):
                fill[2 * g] = first.get(g, []) + vm.get(g, []) + ds.get(g, []) + va.get(g, [])
                fill[2 * g + 1] = ex.get(g, []) + last.get(g, [])
            weave(k, M, fill)

        k("s_nop 3")
        k("s_waitcnt lgkmcnt(4)")
        k.lab("big_attn_loop")
        for i in range(8):
            if i == 6:
                k(f"s_cmp_eq_u32 s{sCNT}, 7")
                k("s_cbranch_scc1 big_attn_tail")
            half(i >> 1, i & 1)
        k(f"s_add_u32 s{sCNT}, s{sCNT}, 1")
        k("s_branch big_attn_loop")
        k.lab("big_attn_tail")
        for db in range(8):
            for q2 in range(2): k(vread(db, q2, 3, 0))
        for x in sm_add(0, 31): k(x)
        k("s_waitcnt lgkmcnt(0)")
        fill = {}
        for i in range(32):
            if i >= 1:
                for x in sm_add(1, i - 1): add_fill(fill, i, x)
            add_fill(fill, i, sm_exp(1, i))
            if (i & 3) == 3:
                for q2 in range(2): fill[i] = [vread(i >> 2, q2, 3, 1)] + fill[i]
        weave(k, pv(0), fill)
        k("s_nop 0")
        for x in sm_add(1, 31): k(x)
        k("s_waitcnt lgkmcnt(0)")
        k("s_nop 0")
        weave(k, pv(1), {})
        k(f"s_mov_b32 s{sT0}, {f32(LTHRESH if not CFG['force_slow'] else -1.0)}")
        k(f"v_add_f32 v213, v{vLs[0]}, v{vLs[1]}")
        k(f"v_add_f32 v214, v{vLs[2]}, v{vLs[3]}")
        k(f"v_add_f32 v212, v213, v214")
        k(f"s_lshl_b32 s{sT1}, s{sW}, 2")
        k(f"s_add_u32 s{sT1}, s{sT1}, 131072")
        k(f"v_cmp_nge_f32 vcc, s{sT0}, v212")
        k(f"v_mov_b32 v213, s{sT1}")
        k("s_cmp_lg_u64 vcc, 0")
        k("s_cselect_b32 s42, 1, 0")
        k("v_mov_b32 v214, s42")
        k("ds_write_b32 v213, v214")
        k("v_mov_b32 v213, 131072")
        k("s_waitcnt lgkmcnt(0)")
        k("s_barrier")
        k("ds_read_b128 v[236:239], v213")
        k("s_waitcnt lgkmcnt(0)")
        k("v_or_b32 v236, v236, v237")
        k("v_or3_b32 v236, v236, v238, v239")
        k("s_nop 0")
        k("v_readfirstlane_b32 s42, v236")
        k("s_nop 3")
        k("s_cmp_eq_u32 s42, 0")
        k("s_cbranch_scc1 big_epi")

    k.lab("big_slow")
    k("s_waitcnt vmcnt(0) lgkmcnt(0)")
    for i in range(128):
        k(f"v_accvgpr_write_b32 a{i}, 0")
    vM = [192, 193, 194, 195]
    tm, tt, al = [212, 213, 214, 215], [234, 235, 236, 237], [238, 239, 240, 241]
    for qb in range(4):
        k(f"v_mov_b32 v{vM[qb]}, {f32(-3.0e38)}")
        k(f"v_mov_b32 v{vLs[qb]}, 0")
    k(f"s_mov_b32 s{sSOK}, 0")
    k(f"s_mov_b32 s{sSOV}, 0")
    k.lab("big_slow_loop")
    k("s_barrier")
    k(m0k(0)); k("s_nop 0")
    for p in range(4): k(dma_k(p))
    k(m0v(0)); k("s_nop 0")
    for p in range(4): k(dma_v(p))
    k(advk); k(advv)
    k("s_waitcnt vmcnt(0)")
    k("s_barrier")
    for hf in range(2):
        for f in range(8): k(kread(f, 0, hf))
        for db in range(8):
            for q2 in range(2): k(vread(db, q2, 0, hf))
        k("s_waitcnt lgkmcnt(0)")
        for m in qk(0, "0"): k(m)
        k("s_nop 7")
        for qb in range(4):
            k(f"v_max3_f32 v{tm[qb]}, v{Sb(0,0,qb)}, v{Sb(0,0,qb)+1}, v{vM[qb]}")
        for a, b in (((0, 2), (0, 3)), ((1, 0), (1, 1)), ((1, 2), (1, 3))):
            for qb in range(4):
                k(f"v_max3_f32 v{tm[qb]}, v{Sb(0,a[0],qb)+a[1]}, v{Sb(0,b[0],qb)+b[1]}, v{tm[qb]}")
        reduce_g(k, "v_max_f32", tm, tt)
        for qb in range(4): k(f"v_sub_f32 v{al[qb]}, v{vM[qb]}, v{tm[qb]}")
        for qb in range(4): k(f"v_exp_f32 v{al[qb]}, v{al[qb]}")
        for qb in range(4): k(f"v_mov_b32 v{vM[qb]}, v{tm[qb]}")
        for qb in range(4): k(f"v_mul_f32 v{vLs[qb]}, v{vLs[qb]}, v{al[qb]}")
        for i in range(32): k(f"v_sub_f32 v{96+i}, v{96+i}, v{tm[(i>>2)&3]}")
        for i in range(32): k(sm_exp(0, i))
        k("s_nop 0")
        for i in range(32):
            for x in sm_add(0, i): k(x)
        for db in range(8):
            for i in range(16): k(f"v_accvgpr_read_b32 v{128+i}, a{O(db,0)+i}")
            for i in range(16): k(f"v_mul_f32 v{128+i}, v{128+i}, v{al[i>>2]}")
            for i in range(16): k(f"v_accvgpr_write_b32 a{O(db,0)+i}, v{128+i}")
        k("s_nop 1")
        for m in pv(0): k(m)
        k("s_nop 7")
    k(f"s_cmp_lt_u32 s{sSOK}, 524288")
    k("s_cbranch_scc1 big_slow_loop")

    k.lab("big_epi")
    k.stamp(5)
    reduce_g(k, "v_add_f32", vLs, [234, 235, 236, 237])
    for qb in range(4): k(f"v_rcp_f32 v{vLs[qb]}, v{vLs[qb]}")
    for qb in range(4):
        k(f"s_mov_b32 s{sH7[qb]}, {qb*128*1024}")
    for c in range(4):
        T = 96 + (c & 1) * 48
        for b in range(2):
            for i in range(16):
                k(f"v_accvgpr_read_b32 v{T+16*b+i}, a{O(2*c+b,0)+i}")
        for i in range(32):
            k(f"v_mul_f32 v{T+i}, v{T+i}, v{vLs[(i>>2)&3]}")
        for qb in range(4):
            for b in range(2):
                for h2 in range(2):
                    k(f"v_cvt_pk_bf16_f32 v{T+32+4*qb+2*b+h2}, v{T+16*b+4*qb+2*h2}, v{T+16*b+4*qb+2*h2+1}")
        for qb in range(4):
            k(f"buffer_store_dwordx4 {vr(T+32+4*qb,4)}, v{vL16}, s[{SO}:{SO+3}], s{sH7[qb]} offen offset:{c*1024}" + (" sc1" if CFG["osc"] == 1 else " nt" if CFG["osc"] == 2 else ""))
    k.stamp_out(1, 34, sW)
    k.lab("big_done")
    k("s_endpgm")
    return k, k.kd(512, 102, 256)


def gen_gemm2():
    k = K("gemm2_kernel")
    sW, sMT, sNT, sISS, sKH = 20, 21, 22, 24, 23
    sW2K, sSOA, sSOW, sCNT, sLAST = 25, 26, 27, 28, 29
    SA, SWT, SG, SXI, SOU, SE, SEP, SG2 = 8, 12, 16, 40, 44, 52, 56, 96
    sT0, sT1, sC, sNK = 31, 32, 33, 30
    vl, vrr, vc, vg, v15, vL16 = 1, 2, 3, 4, 5, 6
    vWrd = list(range(10, 18))
    vD = [18, 19]
    vX = [20, 21, 22, 23]
    vXo = [24, 25]
    X = 224
    XR = lambda st, mb: 32 + st * 16 + mb * 4
    WF = lambda st, nb: 160 + st * 32 + nb * 4
    acc = lambda nb, mb: (mb * 8 + nb) * 4

    k("s_cmp_ge_u32 s2, 256")
    k("s_cbranch_scc1 gemm2_done")
    k.stamp(0, True); k.stamp(1)
    k("s_load_dwordx2 s[4:5], s[0:1], 32")
    k("s_load_dwordx2 s[6:7], s[0:1], 56")
    k("s_load_dwordx2 s[34:35], s[0:1], 80")
    k("s_load_dwordx2 s[36:37], s[0:1], 64")
    k("s_load_dwordx2 s[48:49], s[0:1], 0")
    lane_fields(k, vl, vrr, vc, vg, v15, sW)
    k(f"s_bfe_u32 s{sISS}, s2, 0x10002")
    k(f"s_bfe_u32 s{sKH}, s2, 0x10001")
    k("s_and_b32 s3, s2, 1")
    k("s_lshl_b32 s3, s3, 2")
    k(f"s_lshr_b32 s{sMT}, s2, 6")
    k(f"s_add_u32 s{sMT}, s{sMT}, s3")
    k(f"s_bfe_u32 s{sNT}, s2, 0x30003")
    k(f"s_lshl_b32 s{sW2K}, s{sW}, 11")
    k(f"v_lshlrev_b32 v{vL16}, 4, v{vl}")
    k(f"s_cmp_eq_u32 s{sISS}, 1")
    k.csel2(sNK, 128, 112)
    k(f"s_cselect_b32 s{sLAST}, 7, 6")
    k.csel2(50, O_OFF, H_OFF)
    k.csel2(51, O_SZ, H_SZ)
    k.csel2(60, 8388608, 7340032)
    k("s_waitcnt lgkmcnt(0)")
    k("s_cselect_b32 s4, s4, s6")
    k("s_cselect_b32 s5, s5, s7")
    k(f"s_mul_i32 s{sT0}, s{sKH}, s{sNK}")
    k(f"s_lshl_b32 s3, s{sT0}, 15")
    k(f"s_lshl_b32 s{sT1}, s{sNT}, 8")
    k(f"s_add_u32 s3, s3, s{sT1}")
    k(f"s_sub_u32 s60, s60, s3")
    k.srd(SWT, 4, soff="s3", nrec="s60")
    k(f"s_lshl_b32 s3, s{sMT}, 4")
    k(f"s_lshl_b32 s{sT1}, s{sW}, 2")
    k(f"s_add_u32 s61, s3, s{sT1}")
    k(f"s_mul_i32 s3, s61, s{sNK}")
    k(f"s_lshr_b32 s{sT0}, s{sT0}, 1")
    k(f"s_add_u32 s3, s3, s{sT0}")
    k(f"s_lshl_b32 s3, s3, 10")
    k(f"s_sub_u32 s51, s51, s3")
    k(f"s_add_u32 s3, s3, s50")
    k.srd(SA, 34, soff="s3", nrec="s51")
    k(f"s_lshl_b32 s62, s{sKH}, 1")
    for j in range(4):
        k(f"s_xor_b32 s{sT0}, s62, {j}")
        k(f"s_mul_i32 s{sT0}, s{sT0}, s{sNK}")
        k(f"s_lshl_b32 s{sT0}, s{sT0}, 10")
        k(f"v_add_u32 v{vX[j]}, s{sT0}, v{vL16}")
    k(f"s_lshl_b32 s{sT0}, s{sW}, 14")
    k(f"v_lshlrev_b32 v7, 11, v{vg}")
    k(f"v_add_u32 v7, s{sT0}, v7")
    for i in range(2):
        k(f"v_add_u32 v8, {4*i}, v{vg}")
        k(f"v_lshlrev_b32 v8, 1, v8")
        k(f"v_xor_b32 v8, v8, v{v15}")
        k(f"v_lshl_add_u32 v8, v8, 4, v7")
        k(f"v_add_u32 v{vD[i]}, {i*(8192-1024)}, v8")
    k(f"s_mov_b32 s{sSOA}, 0")
    k(f"s_mov_b32 s{sSOW}, 0")

    xload = lambda st, mb: f"buffer_load_dwordx4 {vr(XR(st,mb),4)}, v{vX[mb]}, s[{SA}:{SA+3}], s{sSOA} offen offset:{(st&3)*1024}"
    dw = lambda i: f"buffer_load_dwordx4 v{vD[i]}, s[{SWT}:{SWT+3}], s{sSOW} offen offset:{i*1024} lds"
    m0w = lambda slot: f"s_add_u32 m0, s{sW2K}, {slot*8192}"
    advw = f"s_add_u32 s{sSOW}, s{sSOW}, {32*2048}"
    adva = f"s_add_u32 s{sSOA}, s{sSOA}, 4096"
    LA = CFG["g2la"]
    k(f"v_lshlrev_b32 v7, 11, v{v15}")
    k(f"v_lshl_add_u32 v7, v{vg}, 4, v7")
    k(f"s_add_u32 s3, s61, s62")
    k(f"s_lshl_b32 s3, s3, 15")
    k(f"s_lshl_b32 s{sT1}, s{sNT}, 8")
    k(f"s_add_u32 s3, s3, s{sT1}")
    k(f"v_add_u32 v{vXo[0]}, s3, v7")
    k(f"v_add_u32 v{vXo[1]}, 32768, v{vXo[0]}")
    vmem = []
    for st in range(LA):
        vmem += [[m0w(st), "s_nop 0", dw(0)], [dw(1), advw]]
        vmem += [[xload(st, mb)] + ([adva] if ((st & 3) == 3 and mb == 3) else []) for mb in range(4)]
    k2 = K("tmp")
    k2(f"v_lshl_add_u32 v7, v{vg}, 2, v{vrr}")
    k2(f"v_lshlrev_b32 v7, 8, v7")
    k2(f"v_lshl_add_u32 v7, v{vc}, 3, v7")
    k2(f"v_and_b32 v9, 1, v{vg}")
    k2(f"v_lshl_add_u32 v9, v9, 2, v{vrr}")
    for nb in range(8):
        k2(f"v_xor_b32 v8, {nb}, v9")
        k2(f"v_lshl_add_u32 v{vWrd[nb]}, v8, 5, v7")
    for i in range(128):
        k2(f"v_accvgpr_write_b32 a{i}, 0")
    rest = [x.strip() for x in k2.L]
    interleave(k, vmem, rest, 5)
    k(f"s_lshl_b32 s3, s2, 16")
    k(f"s_lshl_b32 s{sT1}, s{sW}, 14")
    k(f"s_add_u32 s3, s3, s{sT1}")
    k.srd(SE, 34, const=E_OFF, soff="s3", nrec=16384)
    k(f"s_xor_b32 s{sT0}, s3, {2 << 16}")
    k.srd(SEP, 34, const=E_OFF, soff=f"s{sT0}", nrec=8192)
    k(f"s_xor_b32 s{sT0}, s3, {4 << 16}")
    k.srd(SG, 34, const=E_OFF + 8192, soff=f"s{sT0}", nrec=8192)
    k(f"s_lshl_b32 s{sT1}, s{sISS}, 22")
    k.srd(SXI, 48, nrec=f"s{sT1}")
    k.srd(SOU, 36, nrec=2048 * 2048)
    k(f"s_add_u32 s38, s34, {FL_OFF}")
    k(f"s_addc_u32 s39, s35, 0")

    def wreads(slot, st):
        return [f"ds_read_b64_tr_b16 {vr(WF(st,nb)+2*q2,2)}, v{vWrd[nb]} offset:{slot*8192+q2*4096}"
                for nb in range(8) for q2 in range(2)]

    def mfmas(u):
        return [MFMA(ar(acc(nb, mb), 4), vr(WF(u & 1, nb), 4), vr(XR(u, mb), 4), ar(acc(nb, mb), 4))
                for mb in range(4) for nb in range(8)]

    k.stamp(2)
    k(f"s_waitcnt vmcnt({4 + 6*(LA-1)})")
    k("s_barrier")
    k.stamp(3)
    for r in wreads(0, 0): k(r)
    k(f"s_mov_b32 s{sCNT}, 0")
    def stage(u, vmcnt, look, extra=(), rd=True):
        k(f"s_waitcnt vmcnt({vmcnt}) lgkmcnt(0)")
        k("s_barrier")
        fill = {}
        t = (u + LA) & 7
        vg_ = [11, 16, 21, 26]
        if look:
            add_fill(fill, 0, m0w(t))
            add_fill(fill, 1, dw(0)); add_fill(fill, 6, dw(1)); add_fill(fill, 7, advw)
            for mb in range(4): add_fill(fill, vg_[mb], xload(t, mb))
            if (t & 3) == 3: add_fill(fill, 31, adva)
        for g, x in zip([28, 30], extra): add_fill(fill, g, x)
        if rd:
            slots = [g for g in range(32) if g not in [1, 6] + vg_]
            for r, g in zip(wreads((u + 1) & 7, (u + 1) & 1), slots): add_fill(fill, g, r)
        weave(k, mfmas(u), fill)

    k.lab("gemm2_loop")
    for u in range(8):
        stage(u, 4 + 6 * (LA - 2), True)
    k(f"s_add_u32 s{sCNT}, s{sCNT}, 1")
    k(f"s_cmp_lt_u32 s{sCNT}, s{sLAST}")
    k("s_cbranch_scc1 gemm2_loop")
    xl = [f"buffer_load_dwordx4 {vr(X+(j*4+c)*4,4)}, v{vXo[j]}, s[{SXI}:{SXI+3}], 0 offen offset:{c*64}"
          for j in range(2) for c in range(4)]
    q = []
    for st in range(-LA, 0): q += [("W", st + LA)] * 2 + [("X", st + LA)] * 4
    for u in range(8):
        need = [n for n, e in enumerate(q) if e in (("X", u), ("W", u + 1))]
        look = u + LA < 8
        ex = xl[2 * (u - 2):2 * (u - 2) + 2] if 2 <= u < 6 else []
        stage(u, len(q) - 1 - max(need), look, ex, rd=(u < 7))
        q += ([("W", u + LA)] * 2 + [("X", u + LA)] * 4) if look else []
        q += [("x", 0)] * len(ex)
    assert LA == 4
    k.stamp(4)

    def raise_flag(name, vflag):
        k("s_barrier")
        k(f"s_cmp_eq_u32 s{sW}, 0")
        k(f"s_cbranch_scc0 {name}")
        k("s_mov_b64 exec, 1")
        k(f"global_store_dword v{vflag}, v29, s[38:39] sc1")
        k("s_mov_b64 exec, -1")
        k.lab(name)

    def spin(name, vflag, vdst):
        k("s_mov_b32 s63, 0")
        k.lab(name)
        k("s_waitcnt vmcnt(0)")
        k(f"v_readfirstlane_b32 s62, v{vdst}")
        k("s_add_u32 s63, s63, 1")
        k("s_nop 2")
        k("s_cmp_eq_u32 s62, 1")
        k(f"s_cbranch_scc1 {name}_ok")
        k("s_cmp_gt_u32 s63, 0x40000")
        k(f"s_cbranch_scc1 {name}_ok")
        k(f"global_load_dword v{vdst}, v{vflag}, s[38:39] sc1")
        k(f"s_branch {name}")
        k.lab(f"{name}_ok")

    for i in range(1, 4):
        k(f"s_mov_b32 s{92+i}, {4096*i}")
    so4 = lambda i: "0" if i == 0 else f"s{92+i}"
    k(f"s_lshl_b32 s3, s2, 8")
    k(f"v_mov_b32 v26, s3")
    k(f"v_xor_b32 v27, {2 << 8}, v26")
    k(f"s_and_b32 s3, s3, {(0xff & ~4) << 8}")
    k(f"s_add_u32 s3, s3, 128")
    k(f"v_mov_b32 v28, s3")
    k("v_mov_b32 v29, 1")
    T = 32
    for q in range(2):
        R, U = 96 + 32 * q, 160 + 16 * q
        for i in range(32):
            k(f"v_accvgpr_read_b32 v{R+i}, a{64+32*q+i}")
        for i in range(16):
            k(f"v_cvt_pk_bf16_f32 v{U+i}, v{R+2*i}, v{R+2*i+1}")
        for i in range(4):
            k(f"buffer_store_dwordx4 {vr(U+4*i,4)}, v{vL16}, s[{SE}:{SE+3}], {so4(q)} offen offset:{i*1024} sc1")
    for i in range(64):
        k(f"v_accvgpr_read_b32 v{T+i}, a{i}")
    k(f"s_mov_b32 s{sC}, {f32(-LOG2E)}")
    k.stamp(8)
    k("s_waitcnt vmcnt(0)")
    raise_flag("gemm2_pub1", 26)
    k.stamp(9)
    k("global_load_dword v12, v27, s[38:39] sc1")
    for sw in ("v_permlane16_swap_b32", "v_permlane32_swap_b32"):
        for c in range(8):
            for h2 in range(2):
                k(f"{sw} v{X+4*c+h2}, v{X+4*c+2+h2}")
        k("s_nop 1")
    for i in range(32):
        k(f"v_lshlrev_b32 v{160+2*i}, 16, v{X+i}")
        k(f"v_and_b32 v{161+2*i}, 0xffff0000, v{X+i}")
    spin("gemm2_w1", 27, 12)
    k.stamp(5)
    for i in range(8):
        k(f"buffer_load_dwordx4 {vr(128+4*i,4)}, v{vL16}, s[{SEP}:{SEP+3}], {so4(i>>2)} offen offset:{(i&3)*1024} sc1")
    k("global_load_dword v12, v28, s[38:39] sc1")
    for q in range(4):
        k(f"s_waitcnt vmcnt({7-2*q})")
        for i in range(8 * q, 8 * q + 8):
            k(f"v_lshlrev_b32 v8, 16, v{128+i}")
            k(f"v_and_b32 v9, 0xffff0000, v{128+i}")
            k(f"v_add_f32 v{T+2*i}, v{T+2*i}, v8")
            k(f"v_add_f32 v{T+2*i+1}, v{T+2*i+1}, v9")
    k.stamp(10)
    k(f"s_cmp_eq_u32 s{sISS}, 1")
    k("s_cbranch_scc1 gemm2_epi_s")
    for j in range(2):
        silu_n(k, list(range(T + 32 * j, T + 32 * j + 32)), list(range(96, 128)), sC)
        for i in range(16):
            k(f"v_cvt_pk_bf16_f32 v{160+16*j+i}, v{T+32*j+2*i}, v{T+32*j+2*i+1}")
        for c in range(4):
            k(f"buffer_store_dwordx4 {vr(160+16*j+4*c,4)}, v{vL16}, s[{SE}:{SE+3}], {so4(2+j)} offen offset:{c*1024} sc1")
    k("s_waitcnt vmcnt(0)")
    raise_flag("gemm2_pub2", 28)
    k.stamp(2)
    k.stamp_out(2, 34, sW)
    k("s_endpgm")
    k.lab("gemm2_epi_s")
    spin("gemm2_w2", 28, 12)
    k.stamp(2)
    for i in range(8):
        k(f"buffer_load_dwordx4 {vr(128+4*i,4)}, v{vL16}, s[{SG}:{SG+3}], {so4(i>>2)} offen offset:{(i&3)*1024} sc1")
    for j in range(2):
        U = 96 + 16 * j
        k(f"s_waitcnt vmcnt({4 if j == 0 else 0})")
        for i in range(16 * j, 16 * j + 16):
            a = T + 2 * i
            k(f"v_lshlrev_b32 v8, 16, v{128+i}")
            k(f"v_and_b32 v9, 0xffff0000, v{128+i}")
            k(f"v_fma_f32 v{a}, v{a}, v8, v{160+2*i}")
            k(f"v_fma_f32 v{a+1}, v{a+1}, v9, v{161+2*i}")
            k(f"v_cvt_pk_bf16_f32 v{96+i}, v{a}, v{a+1}")
        k("s_nop 1")
        for sw in ("v_permlane32_swap_b32", "v_permlane16_swap_b32"):
            for c in range(4):
                for h2 in range(2):
                    k(f"{sw} v{U+4*c+h2}, v{U+4*c+2+h2}")
            k("s_nop 1")
    for j in range(2):
        for c in range(4):
            k(f"buffer_store_dwordx4 {vr(96+16*j+4*c,4)}, v{vXo[j]}, s[{SOU}:{SOU+3}], 0 offen offset:{c*64}")
    k.stamp_out(2, 34, sW)
    k.lab("gemm2_done")
    k("s_endpgm")
    return k, k.kd(384, 102, 256)


HEADER = """; Kernarg layout (88 bytes): A_x@0 A_k_cache@8 A_v_cache@16 A_wq@24 A_wo@32 B_x@40 B_w1@48 B_w2@56 out@64 dbg@72 ws@80
"""


def main(path):
    ks = [(gen_ln(), (256, 256, 0)), (gen_big(), (256, 256, 163840)), (gen_gemm2(), (256, 256, 65536))]
    out = [HEADER.rstrip("\n")]
    for (k, kd), (g, b, lds) in ks:
        out.append(f"; @launch kernel={k.name} grid=({g},1,1) block=({b},1,1) lds={lds}")
    out.append('.amdgcn_target "amdgcn-amd-amdhsa--gfx950"')
    out.append(".text")
    for (k, kd), _ in ks:
        out.append(k.text())
    out.append('.section .rodata,"a"')
    for (k, kd), _ in ks:
        out.append(kd)
    open(path, "w").write("\n".join(out) + "\n")


if __name__ == "__main__":
    path = f"cdna_kernels/{NAME}.s"
    for a in sys.argv[1:]:
        if "=" in a:
            kk, v = a.split("=")
            if kk == "o":
                path = v
            else:
                CFG[kk] = int(v)
    main(path)
```

```python
import sys, struct, math

NAME = "recurrent_scan__mha_block_cached__dense_activation_silu__prompt"

XN_OFF = 0
H_OFF = 4 << 20
O_OFF = 20 << 20
E_OFF = 36 << 20
FL_OFF = 60 << 20
XN_SZ, H_SZ, O_SZ = 4 << 20, 128 * 112 * 1024, 16 << 20

LOG2E = 1.4426950408889634
QSCALE = (128 ** -0.5) * LOG2E


def f32(x):
    return "0x%08x" % struct.unpack("<I", struct.pack("<f", x))[0]


CFG = dict(slow_only=0, stamps=0, abl=0, pf=1, force_slow=0, lnpf=1, p1pf=1, g2pf=0, hsc=0, osc=0, g2map=0, xbf=1, g2la=4, cpf=1)
ST_OFF = 64 << 20


class K:
    def __init__(self, name):
        self.name = name
        self.L = []

    def __call__(self, s):
        self.L.append("    " + s)

    def lab(self, s):
        self.L.append(s + ":")

    def head(self):
        n = self.name
        return f".globl {n}\n.p2align 8\n.type {n},@function\n{n}:"

    def text(self):
        return self.head() + "\n" + "\n".join(self.L)

    def kd(self, vgpr, sgpr, accum):
        return f""".p2align 6
.amdhsa_kernel {self.name}
  .amdhsa_next_free_vgpr {vgpr}
  .amdhsa_next_free_sgpr {sgpr}
  .amdhsa_accum_offset {accum}
  .amdhsa_group_segment_fixed_size 0
  .amdhsa_kernarg_size 88
  .amdhsa_user_sgpr_count 2
  .amdhsa_user_sgpr_kernarg_segment_ptr 1
  .amdhsa_system_sgpr_workgroup_id_x 1
.end_amdhsa_kernel"""

    def stamp(self, i, real=False):
        if CFG["stamps"]:
            self(f"{'s_memrealtime' if real else 's_memtime'} s[{64+2*i}:{65+2*i}]")

    def stamp_out(self, kidx, sws, sw):
        if not CFG["stamps"]:
            return
        self("s_waitcnt vmcnt(0)")
        self.stamp(6)
        self.stamp(7, True)
        self("s_waitcnt lgkmcnt(0)")
        self(f"s_lshl_b32 s92, s2, 2")
        self(f"s_add_u32 s92, s92, s{sw}")
        self(f"s_lshl_b32 s92, s92, 6")
        self(f"s_add_u32 s92, s92, {ST_OFF + kidx*65536}")
        self(f"s_add_u32 s88, s{sws}, s92")
        self(f"s_addc_u32 s89, s{sws+1}, 0")
        self("s_getreg_b32 s90, hwreg(HW_REG_XCC_ID)")
        self("s_mov_b32 s86, s90")
        self("v_mov_b32 v186, 0")
        for h in range(3):
            for i in range(4):
                self(f"v_mov_b32 v{188+i}, s{64+2*(4*h+i)}")
            self(f"global_store_dwordx4 v186, v[188:191], s[88:89] offset:{16*h}")
            self("s_nop 1")

    def code_pf_setup(self, sp, start, end, vo, vt, swave):
        lab = f"{self.name}_pc"
        self(f"s_getpc_b64 s[{sp}:{sp+1}]")
        self.lab(lab)
        self(f"s_add_u32 s{sp}, s{sp}, {start}-{lab}")
        self(f"s_addc_u32 s{sp+1}, s{sp+1}, 0")
        self(f"s_and_b32 s{sp}, s{sp}, -16")
        self(f"v_and_b32 v{vo}, 0xff, v0")
        self(f"v_lshlrev_b32 v{vo}, 4, v{vo}")
        self(f"s_lshr_b32 s{swave}, s2, 3")
        self(f"s_lshl_b32 s{swave}, s{swave}, 12")
        self(f"v_add_u32 v{vo}, s{swave}, v{vo}")
        self(f"v_min_u32 v{vo}, ({end}-{start}-16)&~15, v{vo}")
        return f"global_load_dwordx4 v[{vt}:{vt+3}], v{vo}, s[{sp}:{sp+1}]"

    def csel2(self, d, a, b):
        self(f"s_mov_b32 s{d}, {b}")
        self(f"s_cselect_b32 s{d}, {a}, s{d}")

    def srd(self, d, p, const=0, soff=None, nrec=0):
        a = self
        if const:
            a(f"s_add_u32 s{d}, s{p}, {const}")
            a(f"s_addc_u32 s{d+1}, s{p+1}, 0")
        else:
            a(f"s_mov_b32 s{d}, s{p}")
            a(f"s_mov_b32 s{d+1}, s{p+1}")
        if soff is not None:
            a(f"s_add_u32 s{d}, s{d}, {soff}")
            a(f"s_addc_u32 s{d+1}, s{d+1}, 0")
        a(f"s_and_b32 s{d+1}, s{d+1}, 0xffff")
        a(f"s_mov_b32 s{d+2}, {nrec}")
        a(f"s_mov_b32 s{d+3}, 0x20000")


def vr(b, n):
    return f"v[{b}:{b+n-1}]"


def ar(b, n):
    return f"a[{b}:{b+n-1}]"


def MFMA(d, a, b, c):
    return f"v_mfma_f32_16x16x32_bf16 {d}, {a}, {b}, {c}"


def weave(k, mfmas, fill):
    for i, m in enumerate(mfmas):
        k(m)
        for s in fill.get(i, []):
            k(s)


def interleave(k, groups, rest, skip):
    per = -(-len(rest) // (len(groups) - skip))
    pos = 0
    for n, grp in enumerate(groups):
        for x in grp: k(x)
        if n >= skip:
            end = min(len(rest), pos + per)
            while end < len(rest) and rest[end].startswith("s_addc"): end += 1
            for x in rest[pos:end]: k(x)
            pos = end
    for x in rest[pos:]: k(x)


def add_fill(fill, i, s):
    fill.setdefault(i, []).append(s)


def gen_ln():
    k = K("ln_kernel")
    k("s_cmp_ge_u32 s2, 256")
    k("s_cbranch_scc1 ln_done")
    k("s_load_dwordx2 s[4:5], s[0:1], 0")
    k("s_load_dwordx2 s[6:7], s[0:1], 80")
    k("s_load_dwordx2 s[20:21], s[0:1], 24")
    k("s_load_dwordx2 s[22:23], s[0:1], 48")
    k("v_lshrrev_b32 v1, 5, v0")
    k("v_and_b32 v2, 31, v0")
    k("s_lshl_b32 s3, s2, 3")
    k("v_add_u32 v1, s3, v1")
    k("v_lshlrev_b32 v3, 11, v1")
    k("v_lshl_add_u32 v3, v2, 4, v3")
    k("v_lshrrev_b32 v4, 4, v1")
    k("v_lshlrev_b32 v4, 15, v4")
    k("v_lshrrev_b32 v5, 2, v2")
    k("v_lshl_add_u32 v4, v5, 10, v4")
    k("v_and_b32 v5, 3, v2")
    k("v_lshl_add_u32 v4, v5, 8, v4")
    k("v_and_b32 v5, 15, v1")
    k("v_lshl_add_u32 v4, v5, 4, v4")
    k("s_waitcnt lgkmcnt(0)")
    k.srd(8, 4, nrec=2048 * 2048)
    k.srd(12, 6, const=XN_OFF, nrec=XN_SZ)
    for i in range(4):
        k(f"buffer_load_dwordx4 {vr(8+4*i,4)}, v3, s[8:11], 0 offen offset:{512*i}")
    if CFG["lnpf"]:
        k.srd(24, 20, nrec=8 << 20)
        k.srd(28, 22, nrec=7340032)
        if CFG["lnpf"] == 99:
            k("v_lshlrev_b32 v6, 6, v0")
            k("s_lshl_b32 s32, s2, 15")
            k("s_mul_i32 s33, s2, 28672")
            k("v_add_u32 v7, 16384, v6")
            k("buffer_load_dword v68, v6, s[24:27], s32 offen")
            k("buffer_load_dword v69, v7, s[24:27], s32 offen")
            k("buffer_load_dword v70, v6, s[28:31], s33 offen")
            k("buffer_load_dword v71, v7, s[28:31], s33 offen")
        else:
            NPF = CFG["lnpf"]
            k("v_lshlrev_b32 v6, 4, v0")
            k("s_lshl_b32 s32, s2, 12")
            k("s_mul_i32 s33, s2, 3584")
            for j in range(NPF):
                k("buffer_load_dwordx4 v[68:71], v6, s[24:27], s32 offen")
                k("buffer_load_dwordx4 v[68:71], v6, s[28:31], s33 offen")
                k(f"s_add_u32 s32, s32, {1 << 20}")
                k(f"s_add_u32 s33, s33, {917504}")
    if CFG["cpf"]:
        k(k.code_pf_setup(40, "big_kernel", "big_p1_end", 30, 68, 42))
    k("s_mov_b32 s16, 8192")
    k("s_mov_b32 s17, 16384")
    k("s_mov_b32 s18, 24576")
    k(f"s_mov_b32 s19, {f32(1.0/1024)}")
    for i in range(4):
        k(f"s_waitcnt vmcnt({3-i + (2 * CFG['lnpf'] + CFG['cpf'])})")
        for r in range(4):
            R = 8 + 4 * i + r
            k(f"v_lshlrev_b32 v{32+8*i+2*r}, 16, v{R}")
            k(f"v_and_b32 v{33+8*i+2*r}, 0xffff0000, v{R}")

    def reduce32(s, t):
        for p in ("quad_perm:[1,0,3,2]", "quad_perm:[2,3,0,1]", "row_half_mirror", "row_mirror"):
            k("s_nop 1")
            k(f"v_add_f32_dpp v{s}, v{s}, v{s} {p} row_mask:0xf bank_mask:0xf")
        k(f"v_mov_b32 v{t}, v{s}")
        k("s_nop 1")
        k(f"v_permlane16_swap_b32 v{s}, v{t}")
        k("s_nop 1")
        k(f"v_add_f32 v{s}, v{s}, v{t}")

    for i in range(4):
        k(f"v_add_f32 v{24+i}, v{32+i}, v{36+i}")
    for j in range(8, 32, 4):
        for i in range(4):
            k(f"v_add_f32 v{24+i}, v{24+i}, v{32+j+i}")
    k("v_add_f32 v24, v24, v25")
    k("v_add_f32 v26, v26, v27")
    k("v_add_f32 v24, v24, v26")
    reduce32(24, 25)
    k("v_mul_f32 v24, s19, v24")
    for i in range(4):
        k(f"v_sub_f32 v{64+i}, v{32+i}, v24")
        k(f"v_mul_f32 v{26+i}, v{64+i}, v{64+i}")
    for j in range(4, 32):
        k(f"v_sub_f32 v{64+(j&3)}, v{32+j}, v24")
        k(f"v_fmac_f32 v{26+(j&3)}, v{64+(j&3)}, v{64+(j&3)}")
    k("v_add_f32 v26, v26, v27")
    k("v_add_f32 v28, v28, v29")
    k("v_add_f32 v26, v26, v28")
    reduce32(26, 27)
    k("v_mul_f32 v26, s19, v26")
    k("v_cvt_pk_bf16_f32 v24, v24, v26")
    k("v_and_b32 v26, 0xffff0000, v24")
    k("v_lshlrev_b32 v24, 16, v24")
    k(f"v_add_f32 v26, {f32(1e-5)}, v26")
    k("v_cvt_pk_bf16_f32 v26, v26, v26")
    k("v_lshlrev_b32 v26, 16, v26")
    k("v_sqrt_f32 v26, v26")
    k("s_nop 0")
    k("v_cvt_pk_bf16_f32 v26, v26, v26")
    k("v_lshlrev_b32 v26, 16, v26")
    k("v_rcp_f32 v26, v26")
    for i in range(4):
        for r in range(4):
            a, b = 32 + 8 * i + 2 * r, 33 + 8 * i + 2 * r
            k(f"v_sub_f32 v{a}, v{a}, v24")
            k(f"v_sub_f32 v{b}, v{b}, v24")
            k(f"v_cvt_pk_bf16_f32 v{b}, v{a}, v{b}")
            k(f"v_lshlrev_b32 v{a}, 16, v{b}")
            k(f"v_and_b32 v{b}, 0xffff0000, v{b}")
            k(f"v_mul_f32 v{a}, v{a}, v26")
            k(f"v_mul_f32 v{b}, v{b}, v26")
            k(f"v_cvt_pk_bf16_f32 v{8+4*i+r}, v{a}, v{b}")
        so = ["0", "s16", "s17", "s18"][i]
        k(f"buffer_store_dwordx4 {vr(8+4*i,4)}, v4, s[12:15], {so} offen")
    k.srd(36, 6, const=FL_OFF, nrec=65536)
    k("v_lshlrev_b32 v6, 7, v0")
    k("v_mov_b32 v7, 0")
    k("s_lshl_b32 s32, s2, 8")
    k("v_cmp_gt_u32 vcc, 2, v0")
    k("s_and_saveexec_b64 s[34:35], vcc")
    k("s_cbranch_execz ln_done")
    k("buffer_store_dword v7, v6, s[36:39], s32 offen")
    k.lab("ln_done")
    k("s_endpgm")
    return k, k.kd(72, 48, 72)


def lane_fields(k, vl, vrr, vc, vg, v15, sw):
    k(f"v_lshrrev_b32 v{vg}, 6, v0")
    k(f"v_and_b32 v{vl}, 63, v0")
    k(f"v_bfe_u32 v{vrr}, v0, 2, 2")
    k(f"v_readfirstlane_b32 s{sw}, v{vg}")
    k(f"v_and_b32 v{vc}, 3, v0")
    k(f"v_and_b32 v{v15}, 15, v0")
    k(f"v_bfe_u32 v{vg}, v0, 4, 2")


def silu_n(k, regs, temps, sneg):
    P = list(zip(regs, temps))
    for a, t in P: k(f"v_mul_f32 v{t}, s{sneg}, v{a}")
    for a, t in P: k(f"v_exp_f32 v{t}, v{t}")
    for a, t in P: k(f"v_add_f32 v{t}, 1.0, v{t}")
    for a, t in P: k(f"v_rcp_f32 v{t}, v{t}")
    for a, t in P: k(f"v_mul_f32 v{a}, v{a}, v{t}")


def reduce_g(k, op, regs, temps):
    for sw in ("v_permlane16_swap_b32", "v_permlane32_swap_b32"):
        for a, t in zip(regs, temps): k(f"v_mov_b32 v{t}, v{a}")
        k("s_nop 1")
        for a, t in zip(regs, temps): k(f"{sw} v{a}, v{t}")
        k("s_nop 1")
        for a, t in zip(regs, temps): k(f"{op} v{a}, v{a}, v{t}")


MARGIN = 60.0
LTHRESH = 2.0 ** 60


def gen_big():
    k = K("big_kernel")
    sW, sHEAD, sQB, sW2K, sSOW1, sW4K, sSOX, sSOWQ, sCNT = 20, 21, 22, 23, 24, 25, 26, 27, 28
    sT0, sT1, sC = 29, 30, 31
    SK, SV, SX, SO, SWQ, SW1, SH = 8, 12, 16, 36, 52, 56, 60
    sSOK, sSOV = 40, 41
    sH7 = list(range(93, 100))
    vl, vrr, vc, vg, v15, vL16 = 1, 2, 3, 4, 5, 6
    vWq = [10, 11, 12, 13]
    vW1 = list(range(14, 21))
    vDq, vD1 = [21, 22], [23, 24]
    vX = [25, 26, 27, 28]
    XR = lambda st, mb: 32 + st * 16 + mb * 4
    WF = lambda st, nb: 96 + st * 60 + nb * 4
    vKrd = [216, 217, 218, 219]
    vVrd = list(range(220, 228))
    vKdma = [228, 229, 230, 231]
    vVdma = [232, 233]
    acc = lambda nb, mb: (nb * 4 + mb) * 4
    KB, VB, WB = 0, 65536, 98304

    k("s_cmp_ge_u32 s2, 256")
    k("s_cbranch_scc1 big_done")
    k.stamp(0, True); k.stamp(1)
    k("s_load_dwordx4 s[4:7], s[0:1], 8")
    k("s_load_dwordx4 s[44:47], s[0:1], 24")
    k("s_load_dwordx4 s[48:51], s[0:1], 48")
    k("s_load_dwordx2 s[34:35], s[0:1], 80")
    lane_fields(k, vl, vrr, vc, vg, v15, sW)
    k("s_and_b32 s3, s2, 7")
    k("s_lshl_b32 s3, s3, 2")
    k(f"s_lshr_b32 s{sT0}, s2, 6")
    k(f"s_add_u32 s{sHEAD}, s3, s{sT0}")
    k(f"s_bfe_u32 s{sQB}, s2, 0x30003")
    k(f"s_lshl_b32 s{sW4K}, s{sW}, 12")
    k(f"s_lshl_b32 s{sW2K}, s{sW}, 11")
    k(f"v_lshlrev_b32 v{vL16}, 4, v{vl}")
    for mb in range(4):
        k(f"v_add_u32 v{vX[mb]}, {mb*32768}, v{vL16}")
    k(f"s_lshl_b32 s{sT0}, s{sW}, 3")
    k(f"v_add_u32 v7, s{sT0}, v{vg}")
    k(f"v_lshlrev_b32 v8, 2, v{vg}")
    k(f"v_xor_b32 v8, v8, v{v15}")
    k(f"v_lshlrev_b32 v9, 13, v7")
    k(f"v_lshl_add_u32 v{vDq[0]}, v8, 4, v9")
    k(f"v_add_u32 v{vDq[1]}, {4*8192-1024}, v{vDq[0]}")
    k(f"s_and_b32 s{sT0}, s{sW}, 1")
    k(f"s_lshl_b32 s{sT0}, s{sT0}, 2")
    k(f"v_or_b32 v8, s{sT0}, v{vg}")
    k(f"v_lshlrev_b32 v8, 1, v8")
    k(f"v_xor_b32 v8, v8, v{v15}")
    k(f"v_mul_u32_u24 v9, 7168, v7")
    k(f"v_lshl_add_u32 v9, v8, 4, v9")
    k(f"v_cmp_gt_u32 vcc, 14, v8")
    k(f"v_mov_b32 v8, 0x80000000")
    k("s_nop 0")
    k(f"v_cndmask_b32 v{vD1[0]}, v8, v9, vcc")
    k(f"v_add_u32 v{vD1[1]}, {4*7168-1024}, v{vD1[0]}")
    k("s_waitcnt lgkmcnt(0)")
    k(f"s_lshl_b32 s3, s{sQB}, 4")
    k(f"s_lshl_b32 s{sT0}, s{sW}, 2")
    k(f"s_add_u32 s33, s3, s{sT0}")
    k(f"s_lshl_b32 s3, s33, 15")
    k.srd(SX, 34, const=XN_OFF, soff="s3", nrec=4 * 32768)
    k(f"s_lshl_b32 s3, s{sHEAD}, 8")
    k(f"s_sub_u32 s{sT1}, {8 << 20}, s3")
    k.srd(SWQ, 44, soff="s3", nrec=f"s{sT1}")
    k(f"s_mul_i32 s3, s{sHEAD}, 224")
    k(f"s_sub_u32 s{sT1}, 7340032, s3")
    k.srd(SW1, 48, soff="s3", nrec=f"s{sT1}")
    k(f"s_mov_b32 s{sSOX}, 0")
    k(f"s_mov_b32 s{sSOWQ}, 0")
    k(f"s_mov_b32 s{sSOW1}, 0")
    PF, sPFS, sPFO, sPFC, sPFX, vPF = SH, 93, 94, 95, 96, 30
    if CFG["p1pf"]:
        k(f"s_cmp_lt_u32 s{sW}, 2")
        for i in range(3):
            k(f"s_cselect_b32 s{PF+i}, s{SWQ+i}, s{SW1+i}")
        k(f"s_mov_b32 s{PF+3}, 0x20000")
        k.csel2(sT0, 8192, 7168)
        k(f"s_lshl_b32 s{sPFS}, s{sT0}, 5")
        k(f"s_and_b32 s{sT1}, s{sW}, 1")
        k(f"s_lshl_b32 s{sT1}, s{sT1}, 4")
        k(f"v_lshrrev_b32 v7, 2, v{vl}")
        k(f"v_add_u32 v7, s{sT1}, v7")
        k(f"v_mul_lo_u32 v7, v7, s{sT0}")
        k(f"v_lshl_add_u32 v{vPF}, v{vc}, 6, v7")
        k(f"s_mul_i32 s{sPFX}, s{sPFS}, s{sQB}")
        k(f"s_lshl_b32 s{sPFO}, s{sPFS}, 3")
        k(f"s_sub_u32 s{sPFC}, 8, s{sQB}")
    pfl = f"buffer_load_dword v31, v{vPF}, s[{PF}:{PF+3}], s{sPFX} offen"
    pf_pre = [f"s_and_b32 s{sPFX}, s{sPFC}, 7", f"s_cselect_b32 s{sPFX}, 0x40000000, s{sPFO}"]
    pf_post = [f"s_add_u32 s{sPFO}, s{sPFO}, s{sPFS}", f"s_add_u32 s{sPFC}, s{sPFC}, 1"]

    def xload(st, mb, imm):
        return f"buffer_load_dwordx4 {vr(XR(st,mb),4)}, v{vX[mb]}, s[{SX}:{SX+3}], s{sSOX} offen offset:{imm}"

    dq = lambda i: f"buffer_load_dwordx4 v{vDq[i]}, s[{SWQ}:{SWQ+3}], s{sSOWQ} offen offset:{i*1024} lds"
    d1 = lambda i: f"buffer_load_dwordx4 v{vD1[i]}, s[{SW1}:{SW1+3}], s{sSOW1} offen offset:{i*1024} lds"
    m0q = lambda slot: f"s_add_u32 m0, s{sW2K}, {WB+slot*16384}"
    m01 = lambda slot: f"s_add_u32 m0, s{sW2K}, {WB+slot*16384+8192}"
    advw = [f"s_add_u32 s{sSOWQ}, s{sSOWQ}, {32*8192}", f"s_add_u32 s{sSOW1}, s{sSOW1}, {32*7168}"]

    def wdma_grp(slot):
        return [[m0q(slot), "s_nop 0", dq(0)], [dq(1)], [m01(slot), "s_nop 0", d1(0)], [d1(1)] + advw]

    xgrp = lambda st: [[xload(st, mb, st * 1024)] for mb in range(4)]
    vmem = xgrp(0) + wdma_grp(0) + wdma_grp(1) + xgrp(1) + wdma_grp(2) + xgrp(2) + wdma_grp(3)
    if CFG["p1pf"]:
        cp = k.code_pf_setup(42, "big_p1_end", "code_end", 234, 236, sT0) if CFG["cpf"] else pfl
        vmem += [[pfl, f"s_mov_b32 s{sPFX}, 0x40000000"], [cp], [pfl]]
    k2 = K("tmp")
    k2(f"v_lshl_add_u32 v7, v{vg}, 3, v{vrr}")
    k2(f"v_lshlrev_b32 v7, 8, v7")
    k2(f"v_add_u32 v7, {WB}, v7")
    k2(f"v_lshl_add_u32 v8, v{vc}, 4, v7")
    for js in range(4):
        k2(f"v_xor_b32 v9, {js}, v{vrr}")
        k2(f"v_lshl_add_u32 v{vWq[js]}, v9, 6, v8")
    k2(f"v_lshl_add_u32 v8, v{vc}, 3, v7")
    k2(f"v_add_u32 v8, 8192, v8")
    k2(f"v_and_b32 v29, 1, v{vg}")
    k2(f"v_lshl_add_u32 v29, v29, 2, v{vrr}")
    for n7 in range(7):
        k2(f"v_xor_b32 v9, {n7}, v29")
        k2(f"v_lshl_add_u32 v{vW1[n7]}, v9, 5, v8")
    k2(f"s_lshl_b32 s3, s{sHEAD}, 19")
    k2.srd(SK, 4, soff="s3", nrec=524288)
    k2.srd(SV, 6, soff="s3", nrec=524288)
    k2(f"v_lshlrev_b32 v7, 8, v{v15}")
    for js in range(4):
        k2(f"v_add_u32 v9, {4*js}, v{vg}")
        k2(f"v_xor_b32 v9, v9, v{v15}")
        k2(f"v_lshl_add_u32 v{vKrd[js]}, v9, 4, v7")
    k2(f"v_lshl_add_u32 v7, v{vg}, 2, v{vrr}")
    k2(f"v_lshlrev_b32 v7, 8, v7")
    k2(f"v_add_u32 v7, {VB}, v7")
    k2(f"v_lshl_add_u32 v7, v{vc}, 3, v7")
    for db in range(8):
        k2(f"v_xor_b32 v9, {db}, v29")
        k2(f"v_lshl_add_u32 v{vVrd[db]}, v9, 5, v7")
    k2(f"v_lshlrev_b32 v7, 8, v{vg}")
    k2(f"v_add_u32 v7, s{sW4K}, v7")
    for p in range(4):
        k2(f"v_add_u32 v9, {4*p}, v{vg}")
        k2(f"v_xor_b32 v9, v9, v{v15}")
        k2(f"v_lshl_add_u32 v{vKdma[p]}, v9, 4, v7")
    for i in range(2):
        k2(f"v_add_u32 v9, {4*i}, v{vg}")
        k2(f"v_lshlrev_b32 v9, 1, v9")
        k2(f"v_xor_b32 v9, v9, v{v15}")
        k2(f"v_lshl_add_u32 v{vVdma[i]}, v9, 4, v7")
    k2(f"s_mov_b32 s{sSOK}, 0")
    k2(f"s_mov_b32 s{sSOV}, 0")
    for i in range(240):
        k2(f"v_accvgpr_write_b32 a{i}, 0")

    rest = [x.strip() for x in k2.L]
    interleave(k, vmem, rest, 7)

    dma_k = lambda p: f"buffer_load_dwordx4 v{vKdma[p]}, s[{SK}:{SK+3}], s{sSOK} offen offset:{p*1024} lds"
    dma_v = lambda p: f"buffer_load_dwordx4 v{vVdma[p&1]}, s[{SV}:{SV+3}], s{sSOV} offen offset:{p*1024} lds"
    m0k = lambda slot: f"s_add_u32 m0, s{sW4K}, {KB+slot*16384}"
    m0v = lambda slot: f"s_add_u32 m0, s{sW4K}, {VB+slot*16384}"
    advk = f"s_add_u32 s{sSOK}, s{sSOK}, 16384"
    advv = f"s_add_u32 s{sSOV}, s{sSOV}, 16384"

    def wreads(slot, st):
        R = []
        for nb in range(15):
            for q2 in range(2):
                if nb < 8:
                    R.append(f"ds_read_b64_tr_b16 {vr(WF(st,nb)+2*q2,2)}, v{vWq[nb>>1]} offset:{slot*16384+q2*1024+(nb&1)*8}")
                else:
                    R.append(f"ds_read_b64_tr_b16 {vr(WF(st,nb)+2*q2,2)}, v{vW1[nb-8]} offset:{slot*16384+q2*1024}")
        return R

    def p1_mfmas(u):
        return [MFMA(ar(acc(nb, mb), 4), vr(WF(u & 1, nb), 4), vr(XR(u, mb), 4), ar(acc(nb, mb), 4))
                for nb in range(15) for mb in range(4)]

    def p1_stage(u, vmcnt, vm_items, rd=True):
        k(f"s_waitcnt vmcnt({vmcnt}) lgkmcnt(0)")
        k("s_barrier")
        fill = {}
        if rd:
            for i, r in enumerate(wreads((u + 1) & 3, (u + 1) & 1)):
                add_fill(fill, i, r)
        for i, (pre, ins, post) in enumerate(vm_items):
            g = 31 + 3 * i
            for s in pre: add_fill(fill, g - 1, s)
            add_fill(fill, g, ins)
            for s in post: add_fill(fill, g + 1, s)
        weave(k, p1_mfmas(u), fill)

    X1 = 1 if CFG["p1pf"] else 0
    k(f"s_waitcnt vmcnt({20+3*X1})")
    k("s_barrier")
    k.stamp(2)
    for r in wreads(0, 0): k(r)
    k(f"s_mov_b32 s{sCNT}, 0")
    k.lab("big_p1_loop")
    for u in range(4):
        imm = 3072 if u == 0 else (u - 1) * 1024
        it = [([m0q(u)], dq(0), []), ([], dq(1), []), ([m01(u)], d1(0), []), ([], d1(1), advw)]
        it += [([], xload((u + 3) & 3, mb, imm), [f"s_add_u32 s{sSOX}, s{sSOX}, 4096"] if (u == 0 and mb == 3) else [])
               for mb in range(4)]
        if CFG["p1pf"]:
            it.append((pf_pre, pfl, pf_post))
        p1_stage(u, 16 + 3 * X1, it)
    k(f"s_add_u32 s{sCNT}, s{sCNT}, 1")
    k(f"s_cmp_lt_u32 s{sCNT}, 7")
    k("s_cbranch_scc1 big_p1_loop")

    def kv_items(kind, slot):
        L = []
        for p in range(4):
            pre = [m0k(slot) if kind == "k" else m0v(slot)] if p == 0 else []
            post = [advk if kind == "k" else advv] if p == 3 else []
            L.append((pre, dma_k(p) if kind == "k" else dma_v(p), post))
        return L

    k.lab("big_p1_end")
    p1_stage(0, 16 + 3 * X1, [([], xload(3, mb, 3072), []) for mb in range(4)] + kv_items("k", 0))
    p1_stage(1, 16 + 2 * X1, kv_items("k", 1) + kv_items("v", 0))
    p1_stage(2, 16 + X1, kv_items("k", 2) + kv_items("v", 1))
    p1_stage(3, 20, kv_items("k", 3), rd=False)
    k.stamp(3)

    k(f"s_mul_i32 s3, s33, {112*1024}")
    k.srd(SH, 34, const=H_OFF, soff="s3", nrec=4 * 112 * 1024)
    k(f"s_mul_i32 s{sT0}, s{sHEAD}, 7")
    for n7 in range(7):
        k(f"s_add_u32 s{sT1}, s{sT0}, {n7}")
        k(f"s_lshr_b32 s{sH7[n7]}, s{sT1}, 1")
        k(f"s_lshl_b32 s{sH7[n7]}, s{sH7[n7]}, 10")
        k(f"s_and_b32 s{sT1}, s{sT1}, 1")
        k(f"s_lshl_b32 s{sT1}, s{sT1}, 3")
        k(f"s_add_u32 s{sH7[n7]}, s{sH7[n7]}, s{sT1}")
    for mb in range(4):
        k(f"v_add_u32 v{vX[mb]}, {mb*112*1024}, v{vL16}")
    k(f"s_mov_b32 s{sC}, {f32(-LOG2E)}")
    nvm = 0
    if CFG["pf"]:
        k(f"s_lshl_b32 s3, s2, 2")
        k(f"s_add_u32 s3, s3, s{sW}")
        k.srd(SWQ, 46, nrec=8 << 20)
        k.srd(SW1, 50, nrec=7340032)
        k(f"s_lshl_b32 s{sSOWQ}, s3, 13")
        k(f"s_mul_i32 s{sSOW1}, s3, 7168")
    Q = lambda qb, js: 32 + (qb * 4 + js) * 4
    k(f"s_mov_b32 s{sC}, {f32(QSCALE)}")
    for js in range(4):
        T = 96 + (js & 1) * 32
        for b in range(2):
            for i in range(16):
                k(f"v_accvgpr_read_b32 v{T+16*b+i}, a{acc(2*js+b,0)+i}")
        for i in range(32):
            k(f"v_mul_f32 v{T+i}, s{sC}, v{T+i}")
        for qb in range(4):
            for b in range(2):
                for h2 in range(2):
                    k(f"v_cvt_pk_bf16_f32 v{Q(qb,js)+2*b+h2}, v{T+16*b+4*qb+2*h2}, v{T+16*b+4*qb+2*h2+1}")
    k.stamp(8)
    k("s_waitcnt vmcnt(0)")
    k(f"s_mov_b32 s{sC}, {f32(-LOG2E)}")
    for n7 in range(7):
        T = 96 + (n7 & 1) * 48
        for i in range(16):
            k(f"v_accvgpr_read_b32 v{T+i}, a{acc(8+n7,0)+i}")
        silu_n(k, list(range(T, T + 16)), list(range(T + 16, T + 32)), sC)
        for i in range(8):
            k(f"v_cvt_pk_bf16_f32 v{T+32+i}, v{T+2*i}, v{T+2*i+1}")
        for mb in range(4):
            k(f"buffer_store_dwordx2 {vr(T+32+2*mb,2)}, v{vX[mb]}, s[{SH}:{SH+3}], s{sH7[n7]} offen" + (" sc1" if CFG["hsc"] == 1 else " nt" if CFG["hsc"] == 2 else ""))
            nvm += 1
    k(f"s_lshl_b32 s3, s33, 7")
    k(f"s_lshl_b32 s{sT0}, s{sHEAD}, 2")
    k(f"s_add_u32 s3, s3, s{sT0}")
    k("s_lshl_b32 s3, s3, 10")
    k(f"s_sub_u32 s{sT1}, {O_SZ}, s3")
    k.srd(SO, 34, const=O_OFF, soff="s3", nrec=f"s{sT1}")

    Sb = lambda buf, kb, qb: 96 + buf * 32 + (kb * 4 + qb) * 4
    Pb = lambda buf, qb: 160 + buf * 16 + qb * 4
    NM = lambda qb: 192 + 4 * qb
    vLs = [208, 209, 210, 211]
    KF = lambda f: 192 + 4 * f
    VF = lambda db: 224 + 4 * db
    O = lambda db, qb: (db * 4 + qb) * 4

    def kread(f, slot, half):
        return f"ds_read_b128 {ar(KF(f),4)}, v{vKrd[f&3]} offset:{slot*16384+half*8192+(f>>2)*4096}"

    def vread(db, q2, slot, half):
        return f"ds_read_b64_tr_b16 {ar(VF(db)+2*q2,2)}, v{vVrd[db]} offset:{slot*16384+half*8192+q2*4096}"

    def qk(buf, first_c=None):
        M = []
        for f in range(8):
            for qb in range(4):
                d = vr(Sb(buf, f >> 2, qb), 4)
                c = d if (f & 3) else (first_c if first_c is not None else vr(NM(qb), 4))
                M.append(MFMA(d, ar(KF(f), 4), vr(Q(qb, f & 3), 4), c))
        return M

    def pv(buf):
        return [MFMA(ar(O(db, qb), 4), ar(VF(db), 4), vr(Pb(buf, qb), 4), ar(O(db, qb), 4))
                for db in range(8) for qb in range(4)]

    def sm_add(buf, i):
        kb, qb, r = i >> 4, (i >> 2) & 3, i & 3
        s = 96 + buf * 32 + i
        L = [f"v_add_f32 v{vLs[qb]}, v{vLs[qb]}, v{s}"]
        if i & 1:
            L.append(f"v_cvt_pk_bf16_f32 v{Pb(buf,qb)+2*kb+(r>>1)}, v{s-1}, v{s}")
        return L

    sm_exp = lambda buf, i: f"v_exp_f32 v{96+buf*32+i}, v{96+buf*32+i}"

    if not CFG["slow_only"]:
        for i in range(128):
            k(f"v_accvgpr_write_b32 a{i}, 0")
        for qb in range(4):
            k(f"v_mov_b32 v{vLs[qb]}, 0")
        k.stamp(9)
        k.stamp(10)
        k("s_barrier")
        k.stamp(4)
        for f in range(8): k(kread(f, 0, 0))
        k("s_waitcnt lgkmcnt(0)")
        fill = {}
        for f in range(8): add_fill(fill, 4 * f + 3, kread(f, 0, 1))
        weave(k, qk(0, "0"), fill)
        k("s_nop 7")
        tm, tt = [212, 213, 214, 215], [234, 235, 236, 237]
        for qb in range(4):
            k(f"v_max3_f32 v{tm[qb]}, v{Sb(0,0,qb)}, v{Sb(0,0,qb)+1}, v{Sb(0,0,qb)+2}")
        for qb in range(4):
            k(f"v_max3_f32 v{tm[qb]}, v{Sb(0,0,qb)+3}, v{Sb(0,1,qb)}, v{tm[qb]}")
        for qb in range(4):
            k(f"v_max3_f32 v{tm[qb]}, v{Sb(0,1,qb)+1}, v{Sb(0,1,qb)+2}, v{tm[qb]}")
        for qb in range(4):
            k(f"v_max_f32 v{tm[qb]}, v{Sb(0,1,qb)+3}, v{tm[qb]}")
        reduce_g(k, "v_max_f32", tm, tt)
        for qb in range(4):
            k(f"v_sub_f32 v{tm[qb]}, {f32(-MARGIN)}, v{tm[qb]}")
        for qb in range(4):
            for r in range(4):
                k(f"v_mov_b32 v{NM(qb)+r}, v{tm[qb]}")
        for i in range(32):
            k(f"v_add_f32 v{96+i}, v{96+i}, v{tm[(i>>2)&3]}")
        k("s_waitcnt lgkmcnt(0)")
        fill = {}
        for f in range(8): add_fill(fill, 4 * f + 3, kread(f, 1, 0))
        for i in range(32):
            if i >= 1:
                for x in sm_add(0, i - 1): add_fill(fill, i, x)
            add_fill(fill, i, sm_exp(0, i))
        weave(k, qk(1), fill)
        k(f"s_mov_b32 s{sCNT}, 0")

        def half(tt, par):
            vm, ds, va, ex, first, last = {}, {}, {}, {}, {}, {}
            M = qk(par) + pv(par)
            for db in range(8):
                for q2 in range(2):
                    add_fill(ds, 2 * db + q2, vread(db, q2, tt, par))
            for f in range(8):
                add_fill(ds, 16 + 2 * f, kread(f, (tt + 1 + par) & 3, 1 - par))
            add_fill(first, 7, "s_waitcnt lgkmcnt(7)")
            if par == 1:
                add_fill(first, 15, f"s_waitcnt vmcnt({9 if (CFG['pf'] and (tt & 1)) else 8}) lgkmcnt(7)")
                add_fill(last, 15, "s_barrier")
                if CFG["pf"] and tt == 0:
                    add_fill(vm, 16, f"buffer_load_dwordx4 v[244:247], v{vL16}, s[{SWQ}:{SWQ+3}], s{sSOWQ} offen")
                    add_fill(first, 19, f"s_add_u32 s{sSOWQ}, s{sSOWQ}, 1024")
                if CFG["pf"] and tt == 2:
                    add_fill(vm, 16, f"buffer_load_dwordx4 v[248:251], v{vL16}, s[{SW1}:{SW1+3}], s{sSOW1} offen")
                    add_fill(first, 19, f"s_add_u32 s{sSOW1}, s{sSOW1}, 1024")
                add_fill(first, 16, m0k(tt))
                for p in range(4): add_fill(vm, 17 + 4 * p, dma_k(p))
                add_fill(first, 31, advk)
            else:
                add_fill(first, 15, "s_waitcnt lgkmcnt(7)")
                add_fill(first, 16, m0v((tt + 2) & 3))
                for p in range(4): add_fill(vm, 17 + 4 * p, dma_v(p))
                add_fill(first, 31, advv)
            add_fill(first, 23, "s_waitcnt lgkmcnt(4)")
            add_fill(first, 31, "s_waitcnt lgkmcnt(4)")
            for x in sm_add(par, 31): add_fill(va, 0, x)
            for g in range(32):
                if g >= 1:
                    for x in sm_add(1 - par, g - 1): add_fill(va, g, x)
                add_fill(ex, g, sm_exp(1 - par, g))
            fill = {}
            for g in range(32):
                fill[2 * g] = first.get(g, []) + vm.get(g, []) + ds.get(g, []) + va.get(g, [])
                fill[2 * g + 1] = ex.get(g, []) + last.get(g, [])
            weave(k, M, fill)

        k("s_nop 3")
        k("s_waitcnt lgkmcnt(4)")
        k.lab("big_attn_loop")
        for i in range(8):
            if i == 6:
                k(f"s_cmp_eq_u32 s{sCNT}, 7")
                k("s_cbranch_scc1 big_attn_tail")
            half(i >> 1, i & 1)
        k(f"s_add_u32 s{sCNT}, s{sCNT}, 1")
        k("s_branch big_attn_loop")
        k.lab("big_attn_tail")
        for db in range(8):
            for q2 in range(2): k(vread(db, q2, 3, 0))
        for x in sm_add(0, 31): k(x)
        k("s_waitcnt lgkmcnt(0)")
        fill = {}
        for i in range(32):
            if i >= 1:
                for x in sm_add(1, i - 1): add_fill(fill, i, x)
            add_fill(fill, i, sm_exp(1, i))
            if (i & 3) == 3:
                for q2 in range(2): fill[i] = [vread(i >> 2, q2, 3, 1)] + fill[i]
        weave(k, pv(0), fill)
        k("s_nop 0")
        for x in sm_add(1, 31): k(x)
        k("s_waitcnt lgkmcnt(0)")
        k("s_nop 0")
        weave(k, pv(1), {})
        k(f"s_mov_b32 s{sT0}, {f32(LTHRESH if not CFG['force_slow'] else -1.0)}")
        k(f"v_add_f32 v213, v{vLs[0]}, v{vLs[1]}")
        k(f"v_add_f32 v214, v{vLs[2]}, v{vLs[3]}")
        k(f"v_add_f32 v212, v213, v214")
        k(f"s_lshl_b32 s{sT1}, s{sW}, 2")
        k(f"s_add_u32 s{sT1}, s{sT1}, 131072")
        k(f"v_cmp_nge_f32 vcc, s{sT0}, v212")
        k(f"v_mov_b32 v213, s{sT1}")
        k("s_cmp_lg_u64 vcc, 0")
        k("s_cselect_b32 s42, 1, 0")
        k("v_mov_b32 v214, s42")
        k("ds_write_b32 v213, v214")
        k("v_mov_b32 v213, 131072")
        k("s_waitcnt lgkmcnt(0)")
        k("s_barrier")
        k("ds_read_b128 v[236:239], v213")
        k("s_waitcnt lgkmcnt(0)")
        k("v_or_b32 v236, v236, v237")
        k("v_or3_b32 v236, v236, v238, v239")
        k("s_nop 0")
        k("v_readfirstlane_b32 s42, v236")
        k("s_nop 3")
        k("s_cmp_eq_u32 s42, 0")
        k("s_cbranch_scc1 big_epi")

    k.lab("big_slow")
    k("s_waitcnt vmcnt(0) lgkmcnt(0)")
    for i in range(128):
        k(f"v_accvgpr_write_b32 a{i}, 0")
    vM = [192, 193, 194, 195]
    tm, tt, al = [212, 213, 214, 215], [234, 235, 236, 237], [238, 239, 240, 241]
    for qb in range(4):
        k(f"v_mov_b32 v{vM[qb]}, {f32(-3.0e38)}")
        k(f"v_mov_b32 v{vLs[qb]}, 0")
    k(f"s_mov_b32 s{sSOK}, 0")
    k(f"s_mov_b32 s{sSOV}, 0")
    k.lab("big_slow_loop")
    k("s_barrier")
    k(m0k(0)); k("s_nop 0")
    for p in range(4): k(dma_k(p))
    k(m0v(0)); k("s_nop 0")
    for p in range(4): k(dma_v(p))
    k(advk); k(advv)
    k("s_waitcnt vmcnt(0)")
    k("s_barrier")
    for hf in range(2):
        for f in range(8): k(kread(f, 0, hf))
        for db in range(8):
            for q2 in range(2): k(vread(db, q2, 0, hf))
        k("s_waitcnt lgkmcnt(0)")
        for m in qk(0, "0"): k(m)
        k("s_nop 7")
        for qb in range(4):
            k(f"v_max3_f32 v{tm[qb]}, v{Sb(0,0,qb)}, v{Sb(0,0,qb)+1}, v{vM[qb]}")
        for a, b in (((0, 2), (0, 3)), ((1, 0), (1, 1)), ((1, 2), (1, 3))):
            for qb in range(4):
                k(f"v_max3_f32 v{tm[qb]}, v{Sb(0,a[0],qb)+a[1]}, v{Sb(0,b[0],qb)+b[1]}, v{tm[qb]}")
        reduce_g(k, "v_max_f32", tm, tt)
        for qb in range(4): k(f"v_sub_f32 v{al[qb]}, v{vM[qb]}, v{tm[qb]}")
        for qb in range(4): k(f"v_exp_f32 v{al[qb]}, v{al[qb]}")
        for qb in range(4): k(f"v_mov_b32 v{vM[qb]}, v{tm[qb]}")
        for qb in range(4): k(f"v_mul_f32 v{vLs[qb]}, v{vLs[qb]}, v{al[qb]}")
        for i in range(32): k(f"v_sub_f32 v{96+i}, v{96+i}, v{tm[(i>>2)&3]}")
        for i in range(32): k(sm_exp(0, i))
        k("s_nop 0")
        for i in range(32):
            for x in sm_add(0, i): k(x)
        for db in range(8):
            for i in range(16): k(f"v_accvgpr_read_b32 v{128+i}, a{O(db,0)+i}")
            for i in range(16): k(f"v_mul_f32 v{128+i}, v{128+i}, v{al[i>>2]}")
            for i in range(16): k(f"v_accvgpr_write_b32 a{O(db,0)+i}, v{128+i}")
        k("s_nop 1")
        for m in pv(0): k(m)
        k("s_nop 7")
    k(f"s_cmp_lt_u32 s{sSOK}, 524288")
    k("s_cbranch_scc1 big_slow_loop")

    k.lab("big_epi")
    k.stamp(5)
    reduce_g(k, "v_add_f32", vLs, [234, 235, 236, 237])
    for qb in range(4): k(f"v_rcp_f32 v{vLs[qb]}, v{vLs[qb]}")
    for qb in range(4):
        k(f"s_mov_b32 s{sH7[qb]}, {qb*128*1024}")
    for c in range(4):
        T = 96 + (c & 1) * 48
        for b in range(2):
            for i in range(16):
                k(f"v_accvgpr_read_b32 v{T+16*b+i}, a{O(2*c+b,0)+i}")
        for i in range(32):
            k(f"v_mul_f32 v{T+i}, v{T+i}, v{vLs[(i>>2)&3]}")
        for qb in range(4):
            for b in range(2):
                for h2 in range(2):
                    k(f"v_cvt_pk_bf16_f32 v{T+32+4*qb+2*b+h2}, v{T+16*b+4*qb+2*h2}, v{T+16*b+4*qb+2*h2+1}")
        for qb in range(4):
            k(f"buffer_store_dwordx4 {vr(T+32+4*qb,4)}, v{vL16}, s[{SO}:{SO+3}], s{sH7[qb]} offen offset:{c*1024}" + (" sc1" if CFG["osc"] == 1 else " nt" if CFG["osc"] == 2 else ""))
    k.stamp_out(1, 34, sW)
    k.lab("big_done")
    k("s_endpgm")
    return k, k.kd(512, 102, 256)


def gen_gemm2():
    k = K("gemm2_kernel")
    sW, sMT, sNT, sISS, sKH = 20, 21, 22, 24, 23
    sW2K, sSOA, sSOW, sCNT, sLAST = 25, 26, 27, 28, 29
    SA, SWT, SG, SXI, SOU, SE, SEP, SG2 = 8, 12, 16, 40, 44, 52, 56, 96
    sT0, sT1, sC, sNK = 31, 32, 33, 30
    vl, vrr, vc, vg, v15, vL16 = 1, 2, 3, 4, 5, 6
    vWrd = list(range(10, 18))
    vD = [18, 19]
    vX = [20, 21, 22, 23]
    vXo = [24, 25]
    X = 224
    XR = lambda st, mb: 32 + st * 16 + mb * 4
    WF = lambda st, nb: 160 + st * 32 + nb * 4
    acc = lambda nb, mb: (mb * 8 + nb) * 4

    k("s_cmp_ge_u32 s2, 256")
    k("s_cbranch_scc1 gemm2_done")
    k.stamp(0, True); k.stamp(1)
    k("s_load_dwordx2 s[4:5], s[0:1], 32")
    k("s_load_dwordx2 s[6:7], s[0:1], 56")
    k("s_load_dwordx2 s[34:35], s[0:1], 80")
    k("s_load_dwordx2 s[36:37], s[0:1], 64")
    k("s_load_dwordx2 s[48:49], s[0:1], 0")
    lane_fields(k, vl, vrr, vc, vg, v15, sW)
    k(f"s_bfe_u32 s{sISS}, s2, 0x10002")
    k(f"s_bfe_u32 s{sKH}, s2, 0x10001")
    k("s_and_b32 s3, s2, 1")
    k("s_lshl_b32 s3, s3, 2")
    k(f"s_lshr_b32 s{sMT}, s2, 6")
    k(f"s_add_u32 s{sMT}, s{sMT}, s3")
    k(f"s_bfe_u32 s{sNT}, s2, 0x30003")
    k(f"s_lshl_b32 s{sW2K}, s{sW}, 11")
    k(f"v_lshlrev_b32 v{vL16}, 4, v{vl}")
    k(f"s_cmp_eq_u32 s{sISS}, 1")
    k.csel2(sNK, 128, 112)
    k(f"s_cselect_b32 s{sLAST}, 7, 6")
    k.csel2(50, O_OFF, H_OFF)
    k.csel2(51, O_SZ, H_SZ)
    k.csel2(60, 8388608, 7340032)
    k("s_waitcnt lgkmcnt(0)")
    k("s_cselect_b32 s4, s4, s6")
    k("s_cselect_b32 s5, s5, s7")
    k(f"s_mul_i32 s{sT0}, s{sKH}, s{sNK}")
    k(f"s_lshl_b32 s3, s{sT0}, 15")
    k(f"s_lshl_b32 s{sT1}, s{sNT}, 8")
    k(f"s_add_u32 s3, s3, s{sT1}")
    k(f"s_sub_u32 s60, s60, s3")
    k.srd(SWT, 4, soff="s3", nrec="s60")
    k(f"s_lshl_b32 s3, s{sMT}, 4")
    k(f"s_lshl_b32 s{sT1}, s{sW}, 2")
    k(f"s_add_u32 s61, s3, s{sT1}")
    k(f"s_mul_i32 s3, s61, s{sNK}")
    k(f"s_lshr_b32 s{sT0}, s{sT0}, 1")
    k(f"s_add_u32 s3, s3, s{sT0}")
    k(f"s_lshl_b32 s3, s3, 10")
    k(f"s_sub_u32 s51, s51, s3")
    k(f"s_add_u32 s3, s3, s50")
    k.srd(SA, 34, soff="s3", nrec="s51")
    k(f"s_lshl_b32 s62, s{sKH}, 1")
    for j in range(4):
        k(f"s_xor_b32 s{sT0}, s62, {j}")
        k(f"s_mul_i32 s{sT0}, s{sT0}, s{sNK}")
        k(f"s_lshl_b32 s{sT0}, s{sT0}, 10")
        k(f"v_add_u32 v{vX[j]}, s{sT0}, v{vL16}")
    k(f"s_lshl_b32 s{sT0}, s{sW}, 14")
    k(f"v_lshlrev_b32 v7, 11, v{vg}")
    k(f"v_add_u32 v7, s{sT0}, v7")
    for i in range(2):
        k(f"v_add_u32 v8, {4*i}, v{vg}")
        k(f"v_lshlrev_b32 v8, 1, v8")
        k(f"v_xor_b32 v8, v8, v{v15}")
        k(f"v_lshl_add_u32 v8, v8, 4, v7")
        k(f"v_add_u32 v{vD[i]}, {i*(8192-1024)}, v8")
    k(f"s_mov_b32 s{sSOA}, 0")
    k(f"s_mov_b32 s{sSOW}, 0")

    xload = lambda st, mb: f"buffer_load_dwordx4 {vr(XR(st,mb),4)}, v{vX[mb]}, s[{SA}:{SA+3}], s{sSOA} offen offset:{(st&3)*1024}"
    dw = lambda i: f"buffer_load_dwordx4 v{vD[i]}, s[{SWT}:{SWT+3}], s{sSOW} offen offset:{i*1024} lds"
    m0w = lambda slot: f"s_add_u32 m0, s{sW2K}, {slot*8192}"
    advw = f"s_add_u32 s{sSOW}, s{sSOW}, {32*2048}"
    adva = f"s_add_u32 s{sSOA}, s{sSOA}, 4096"
    LA = CFG["g2la"]
    k(f"v_lshlrev_b32 v7, 11, v{v15}")
    k(f"v_lshl_add_u32 v7, v{vg}, 4, v7")
    k(f"s_add_u32 s3, s61, s62")
    k(f"s_lshl_b32 s3, s3, 15")
    k(f"s_lshl_b32 s{sT1}, s{sNT}, 8")
    k(f"s_add_u32 s3, s3, s{sT1}")
    k(f"v_add_u32 v{vXo[0]}, s3, v7")
    k(f"v_add_u32 v{vXo[1]}, 32768, v{vXo[0]}")
    vmem = []
    for st in range(LA):
        vmem += [[m0w(st), "s_nop 0", dw(0)], [dw(1), advw]]
        vmem += [[xload(st, mb)] + ([adva] if ((st & 3) == 3 and mb == 3) else []) for mb in range(4)]
    if CFG["cpf"]:
        vmem.append([k.code_pf_setup(98, "gemm2_loop", "code_end", 30, 224, sT0)])
    k2 = K("tmp")
    k2(f"v_lshl_add_u32 v7, v{vg}, 2, v{vrr}")
    k2(f"v_lshlrev_b32 v7, 8, v7")
    k2(f"v_lshl_add_u32 v7, v{vc}, 3, v7")
    k2(f"v_and_b32 v9, 1, v{vg}")
    k2(f"v_lshl_add_u32 v9, v9, 2, v{vrr}")
    for nb in range(8):
        k2(f"v_xor_b32 v8, {nb}, v9")
        k2(f"v_lshl_add_u32 v{vWrd[nb]}, v8, 5, v7")
    for i in range(128):
        k2(f"v_accvgpr_write_b32 a{i}, 0")
    rest = [x.strip() for x in k2.L]
    interleave(k, vmem, rest, 5)
    k(f"s_lshl_b32 s3, s2, 16")
    k(f"s_lshl_b32 s{sT1}, s{sW}, 14")
    k(f"s_add_u32 s3, s3, s{sT1}")
    k.srd(SE, 34, const=E_OFF, soff="s3", nrec=16384)
    k(f"s_xor_b32 s{sT0}, s3, {2 << 16}")
    k.srd(SEP, 34, const=E_OFF, soff=f"s{sT0}", nrec=8192)
    k(f"s_xor_b32 s{sT0}, s3, {4 << 16}")
    k.srd(SG, 34, const=E_OFF + 8192, soff=f"s{sT0}", nrec=8192)
    k(f"s_lshl_b32 s{sT1}, s{sISS}, 22")
    k.srd(SXI, 48, nrec=f"s{sT1}")
    k.srd(SOU, 36, nrec=2048 * 2048)
    k(f"s_add_u32 s38, s34, {FL_OFF}")
    k(f"s_addc_u32 s39, s35, 0")

    def wreads(slot, st):
        return [f"ds_read_b64_tr_b16 {vr(WF(st,nb)+2*q2,2)}, v{vWrd[nb]} offset:{slot*8192+q2*4096}"
                for nb in range(8) for q2 in range(2)]

    def mfmas(u):
        return [MFMA(ar(acc(nb, mb), 4), vr(WF(u & 1, nb), 4), vr(XR(u, mb), 4), ar(acc(nb, mb), 4))
                for mb in range(4) for nb in range(8)]

    k.stamp(2)
    k(f"s_waitcnt vmcnt({4 + 6*(LA-1) + CFG['cpf']})")
    k("s_barrier")
    k.stamp(3)
    for r in wreads(0, 0): k(r)
    k(f"s_mov_b32 s{sCNT}, 0")
    def stage(u, vmcnt, look, extra=(), rd=True):
        k(f"s_waitcnt vmcnt({vmcnt}) lgkmcnt(0)")
        k("s_barrier")
        fill = {}
        t = (u + LA) & 7
        vg_ = [11, 16, 21, 26]
        if look:
            add_fill(fill, 0, m0w(t))
            add_fill(fill, 1, dw(0)); add_fill(fill, 6, dw(1)); add_fill(fill, 7, advw)
            for mb in range(4): add_fill(fill, vg_[mb], xload(t, mb))
            if (t & 3) == 3: add_fill(fill, 31, adva)
        for g, x in zip([28, 30], extra): add_fill(fill, g, x)
        if rd:
            slots = [g for g in range(32) if g not in [1, 6] + vg_]
            for r, g in zip(wreads((u + 1) & 7, (u + 1) & 1), slots): add_fill(fill, g, r)
        weave(k, mfmas(u), fill)

    k.lab("gemm2_loop")
    for u in range(8):
        stage(u, 4 + 6 * (LA - 2), True)
    k(f"s_add_u32 s{sCNT}, s{sCNT}, 1")
    k(f"s_cmp_lt_u32 s{sCNT}, s{sLAST}")
    k("s_cbranch_scc1 gemm2_loop")
    xl = [f"buffer_load_dwordx4 {vr(X+(j*4+c)*4,4)}, v{vXo[j]}, s[{SXI}:{SXI+3}], 0 offen offset:{c*64}"
          for j in range(2) for c in range(4)]
    q = []
    for st in range(-LA, 0): q += [("W", st + LA)] * 2 + [("X", st + LA)] * 4
    for u in range(8):
        need = [n for n, e in enumerate(q) if e in (("X", u), ("W", u + 1))]
        look = u + LA < 8
        ex = xl[2 * (u - 2):2 * (u - 2) + 2] if 2 <= u < 6 else []
        stage(u, len(q) - 1 - max(need), look, ex, rd=(u < 7))
        q += ([("W", u + LA)] * 2 + [("X", u + LA)] * 4) if look else []
        q += [("x", 0)] * len(ex)
    assert LA == 4
    k.stamp(4)

    def raise_flag(name, vflag):
        k("s_barrier")
        k(f"s_cmp_eq_u32 s{sW}, 0")
        k(f"s_cbranch_scc0 {name}")
        k("s_mov_b64 exec, 1")
        k(f"global_store_dword v{vflag}, v29, s[38:39] sc1")
        k("s_mov_b64 exec, -1")
        k.lab(name)

    def spin(name, vflag, vdst):
        k("s_mov_b32 s63, 0")
        k.lab(name)
        k("s_waitcnt vmcnt(0)")
        k(f"v_readfirstlane_b32 s62, v{vdst}")
        k("s_add_u32 s63, s63, 1")
        k("s_nop 2")
        k("s_cmp_eq_u32 s62, 1")
        k(f"s_cbranch_scc1 {name}_ok")
        k("s_cmp_gt_u32 s63, 0x40000")
        k(f"s_cbranch_scc1 {name}_ok")
        k(f"global_load_dword v{vdst}, v{vflag}, s[38:39] sc1")
        k(f"s_branch {name}")
        k.lab(f"{name}_ok")

    for i in range(1, 4):
        k(f"s_mov_b32 s{92+i}, {4096*i}")
    so4 = lambda i: "0" if i == 0 else f"s{92+i}"
    k(f"s_lshl_b32 s3, s2, 8")
    k(f"v_mov_b32 v26, s3")
    k(f"v_xor_b32 v27, {2 << 8}, v26")
    k(f"s_and_b32 s3, s3, {(0xff & ~4) << 8}")
    k(f"s_add_u32 s3, s3, 128")
    k(f"v_mov_b32 v28, s3")
    k("v_mov_b32 v29, 1")
    T = 32
    for q in range(2):
        R, U = 96 + 32 * q, 160 + 16 * q
        for i in range(32):
            k(f"v_accvgpr_read_b32 v{R+i}, a{64+32*q+i}")
        for i in range(16):
            k(f"v_cvt_pk_bf16_f32 v{U+i}, v{R+2*i}, v{R+2*i+1}")
        for i in range(4):
            k(f"buffer_store_dwordx4 {vr(U+4*i,4)}, v{vL16}, s[{SE}:{SE+3}], {so4(q)} offen offset:{i*1024} sc1")
    for i in range(64):
        k(f"v_accvgpr_read_b32 v{T+i}, a{i}")
    k(f"s_mov_b32 s{sC}, {f32(-LOG2E)}")
    k.stamp(8)
    k("s_waitcnt vmcnt(0)")
    raise_flag("gemm2_pub1", 26)
    k.stamp(9)
    k("global_load_dword v12, v27, s[38:39] sc1")
    for sw in ("v_permlane16_swap_b32", "v_permlane32_swap_b32"):
        for c in range(8):
            for h2 in range(2):
                k(f"{sw} v{X+4*c+h2}, v{X+4*c+2+h2}")
        k("s_nop 1")
    for i in range(32):
        k(f"v_lshlrev_b32 v{160+2*i}, 16, v{X+i}")
        k(f"v_and_b32 v{161+2*i}, 0xffff0000, v{X+i}")
    spin("gemm2_w1", 27, 12)
    k.stamp(5)
    for i in range(8):
        k(f"buffer_load_dwordx4 {vr(128+4*i,4)}, v{vL16}, s[{SEP}:{SEP+3}], {so4(i>>2)} offen offset:{(i&3)*1024} sc1")
    k("global_load_dword v12, v28, s[38:39] sc1")
    for q in range(4):
        k(f"s_waitcnt vmcnt({7-2*q})")
        for i in range(8 * q, 8 * q + 8):
            k(f"v_lshlrev_b32 v8, 16, v{128+i}")
            k(f"v_and_b32 v9, 0xffff0000, v{128+i}")
            k(f"v_add_f32 v{T+2*i}, v{T+2*i}, v8")
            k(f"v_add_f32 v{T+2*i+1}, v{T+2*i+1}, v9")
    k.stamp(10)
    k(f"s_cmp_eq_u32 s{sISS}, 1")
    k("s_cbranch_scc1 gemm2_epi_s")
    for j in range(2):
        silu_n(k, list(range(T + 32 * j, T + 32 * j + 32)), list(range(96, 128)), sC)
        for i in range(16):
            k(f"v_cvt_pk_bf16_f32 v{160+16*j+i}, v{T+32*j+2*i}, v{T+32*j+2*i+1}")
        for c in range(4):
            k(f"buffer_store_dwordx4 {vr(160+16*j+4*c,4)}, v{vL16}, s[{SE}:{SE+3}], {so4(2+j)} offen offset:{c*1024} sc1")
    k("s_waitcnt vmcnt(0)")
    raise_flag("gemm2_pub2", 28)
    k.stamp(2)
    k.stamp_out(2, 34, sW)
    k("s_endpgm")
    k.lab("gemm2_epi_s")
    spin("gemm2_w2", 28, 12)
    k.stamp(2)
    for i in range(8):
        k(f"buffer_load_dwordx4 {vr(128+4*i,4)}, v{vL16}, s[{SG}:{SG+3}], {so4(i>>2)} offen offset:{(i&3)*1024} sc1")
    for j in range(2):
        U = 96 + 16 * j
        k(f"s_waitcnt vmcnt({4 if j == 0 else 0})")
        for i in range(16 * j, 16 * j + 16):
            a = T + 2 * i
            k(f"v_lshlrev_b32 v8, 16, v{128+i}")
            k(f"v_and_b32 v9, 0xffff0000, v{128+i}")
            k(f"v_fma_f32 v{a}, v{a}, v8, v{160+2*i}")
            k(f"v_fma_f32 v{a+1}, v{a+1}, v9, v{161+2*i}")
            k(f"v_cvt_pk_bf16_f32 v{96+i}, v{a}, v{a+1}")
        k("s_nop 1")
        for sw in ("v_permlane32_swap_b32", "v_permlane16_swap_b32"):
            for c in range(4):
                for h2 in range(2):
                    k(f"{sw} v{U+4*c+h2}, v{U+4*c+2+h2}")
            k("s_nop 1")
    for j in range(2):
        for c in range(4):
            k(f"buffer_store_dwordx4 {vr(96+16*j+4*c,4)}, v{vXo[j]}, s[{SOU}:{SOU+3}], 0 offen offset:{c*64}")
    k.stamp_out(2, 34, sW)
    k.lab("gemm2_done")
    k("s_endpgm")
    k.lab("code_end")
    return k, k.kd(384, 102, 256)


HEADER = """; Kernarg layout (88 bytes): A_x@0 A_k_cache@8 A_v_cache@16 A_wq@24 A_wo@32 B_x@40 B_w1@48 B_w2@56 out@64 dbg@72 ws@80
"""


def main(path):
    ks = [(gen_ln(), (256, 256, 0)), (gen_big(), (256, 256, 163840)), (gen_gemm2(), (256, 256, 65536))]
    out = [HEADER.rstrip("\n")]
    for (k, kd), (g, b, lds) in ks:
        out.append(f"; @launch kernel={k.name} grid=({g},1,1) block=({b},1,1) lds={lds}")
    out.append('.amdgcn_target "amdgcn-amd-amdhsa--gfx950"')
    out.append(".text")
    for (k, kd), _ in ks:
        out.append(k.text())
    out.append('.section .rodata,"a"')
    for (k, kd), _ in ks:
        out.append(kd)
    open(path, "w").write("\n".join(out) + "\n")


if __name__ == "__main__":
    path = f"cdna_kernels/{NAME}.s"
    for a in sys.argv[1:]:
        if "=" in a:
            kk, v = a.split("=")
            if kk == "o":
                path = v
            else:
                CFG[kk] = int(v)
    main(path)
```

```python
import sys, struct, math

NAME = "recurrent_scan__mha_block_cached__dense_activation_silu__prompt"

XN_OFF = 0
H_OFF = 4 << 20
O_OFF = 20 << 20
E_OFF = 96 << 20
FL_OFF = 60 << 20
EP_OFF = 256 << 10
XN_SZ, H_SZ, O_SZ = 4 << 20, 128 * 112 * 1024, 16 << 20

LOG2E = 1.4426950408889634
QSCALE = (128 ** -0.5) * LOG2E


def f32(x):
    return "0x%08x" % struct.unpack("<I", struct.pack("<f", x))[0]


CFG = dict(slow_only=0, stamps=0, pf=1, force_slow=0, g2la=4, cpf=1, g2ds=0, margin=60, pk=1, aslist=1, nw0=12, accpre=0)
ST_OFF = 64 << 20


class K:
    def __init__(self, name):
        self.name = name
        self.L = []

    def __call__(self, s):
        self.L.append("    " + s)

    def lab(self, s):
        self.L.append(s + ":")

    def head(self):
        n = self.name
        return f".globl {n}\n.p2align 8\n.type {n},@function\n{n}:"

    def text(self):
        return self.head() + "\n" + "\n".join(self.L)

    def kd(self, vgpr, sgpr, accum):
        return f""".p2align 6
.amdhsa_kernel {self.name}
  .amdhsa_next_free_vgpr {vgpr}
  .amdhsa_next_free_sgpr {sgpr}
  .amdhsa_accum_offset {accum}
  .amdhsa_group_segment_fixed_size 0
  .amdhsa_kernarg_size 88
  .amdhsa_user_sgpr_count 2
  .amdhsa_user_sgpr_kernarg_segment_ptr 1
  .amdhsa_system_sgpr_workgroup_id_x 1
.end_amdhsa_kernel"""

    def stamp(self, i, real=False, grp=1):
        if CFG["stamps"] and (CFG["stamps"] == grp or i in (0, 1, 6, 7)):
            self(f"{'s_memrealtime' if real else 's_memtime'} s[{64+2*i}:{65+2*i}]")

    def stamp_out(self, kidx, sws, sw):
        if not CFG["stamps"]:
            return
        self("s_waitcnt vmcnt(0)")
        self.stamp(6)
        self.stamp(7, True)
        self("s_waitcnt lgkmcnt(0)")
        self(f"s_lshl_b32 s43, s2, 2")
        self(f"s_add_u32 s43, s43, s{sw}")
        self(f"s_lshl_b32 s43, s43, 6")
        self(f"s_add_u32 s43, s43, {ST_OFF + kidx*65536}")
        self(f"s_add_u32 s40, s{sws}, s43")
        self(f"s_addc_u32 s41, s{sws+1}, 0")
        self("s_getreg_b32 s42, hwreg(HW_REG_XCC_ID)")
        self("s_mov_b32 s86, s42")
        self("v_mov_b32 v186, 0")
        for h in range(3):
            for i in range(4):
                self(f"v_mov_b32 v{188+i}, s{64+2*(4*h+i)}")
            self(f"global_store_dwordx4 v186, v[188:191], s[40:41] offset:{16*h}")
            self("s_nop 1")

    def code_pf_setup(self, sp, start, end, vo, vt, swave):
        lab = f"{self.name}_pc"
        self(f"s_getpc_b64 s[{sp}:{sp+1}]")
        self.lab(lab)
        if start is None:
            start = lab
        else:
            self(f"s_add_u32 s{sp}, s{sp}, {start}-{lab}")
            self(f"s_addc_u32 s{sp+1}, s{sp+1}, 0")
        self(f"s_and_b32 s{sp}, s{sp}, -16")
        self(f"v_and_b32 v{vo}, 0xff, v0")
        self(f"v_lshlrev_b32 v{vo}, 4, v{vo}")
        self(f"s_lshr_b32 s{swave}, s2, 3")
        self(f"s_lshl_b32 s{swave}, s{swave}, 12")
        self(f"v_add_u32 v{vo}, s{swave}, v{vo}")
        self(f"v_min_u32 v{vo}, ({end}-{start}-16)&~15, v{vo}")
        return f"global_load_dwordx4 v[{vt}:{vt+3}], v{vo}, s[{sp}:{sp+1}]"

    def csel2(self, d, a, b):
        self(f"s_mov_b32 s{d}, {b}")
        self(f"s_cselect_b32 s{d}, {a}, s{d}")

    def srd(self, d, p, const=0, soff=None, nrec=0):
        a = self
        if const:
            a(f"s_add_u32 s{d}, s{p}, {const}")
            a(f"s_addc_u32 s{d+1}, s{p+1}, 0")
        else:
            a(f"s_mov_b32 s{d}, s{p}")
            a(f"s_mov_b32 s{d+1}, s{p+1}")
        if soff is not None:
            a(f"s_add_u32 s{d}, s{d}, {soff}")
            a(f"s_addc_u32 s{d+1}, s{d+1}, 0")
        a(f"s_and_b32 s{d+1}, s{d+1}, 0xffff")
        a(f"s_mov_b32 s{d+2}, {nrec}")
        a(f"s_mov_b32 s{d+3}, 0x20000")


def vr(b, n):
    return f"v[{b}:{b+n-1}]"


def ar(b, n):
    return f"a[{b}:{b+n-1}]"


def MFMA(d, a, b, c):
    return f"v_mfma_f32_16x16x32_bf16 {d}, {a}, {b}, {c}"


def weave(k, mfmas, fill):
    for i, m in enumerate(mfmas):
        k(m)
        for s in fill.get(i, []):
            k(s)


def interleave(k, groups, rest, skip):
    per = -(-len(rest) // (len(groups) - skip))
    pos = 0
    for n, grp in enumerate(groups):
        for x in grp: k(x)
        if n >= skip:
            end = min(len(rest), pos + per)
            while end < len(rest) and rest[end].startswith("s_addc"): end += 1
            for x in rest[pos:end]: k(x)
            pos = end
    for x in rest[pos:]: k(x)


def add_fill(fill, i, s):
    fill.setdefault(i, []).append(s)


def lane_fields(k, vl, vrr, vc, vg, v15, sw):
    k(f"v_lshrrev_b32 v{vg}, 6, v0")
    k(f"v_and_b32 v{vl}, 63, v0")
    k(f"v_bfe_u32 v{vrr}, v0, 2, 2")
    k(f"v_readfirstlane_b32 s{sw}, v{vg}")
    k(f"v_and_b32 v{vc}, 3, v0")
    k(f"v_and_b32 v{v15}, 15, v0")
    k(f"v_bfe_u32 v{vg}, v0, 4, 2")


def silu_n(k, regs, temps, sneg):
    P = list(zip(regs, temps))
    if CFG["pk"]:
        for a, t in P[::2]: k(f"v_pk_mul_f32 {vr(t,2)}, {vr(a,2)}, s[{sneg}:{sneg+1}]")
        for a, t in P: k(f"v_exp_f32 v{t}, v{t}")
        for a, t in P[::2]: k(f"v_pk_add_f32 {vr(t,2)}, {vr(t,2)}, 1.0 op_sel_hi:[1,0]")
        for a, t in P: k(f"v_rcp_f32 v{t}, v{t}")
        for a, t in P[::2]: k(f"v_pk_mul_f32 {vr(a,2)}, {vr(a,2)}, {vr(t,2)}")
        return
    for a, t in P: k(f"v_mul_f32 v{t}, s{sneg}, v{a}")
    for a, t in P: k(f"v_exp_f32 v{t}, v{t}")
    for a, t in P: k(f"v_add_f32 v{t}, 1.0, v{t}")
    for a, t in P: k(f"v_rcp_f32 v{t}, v{t}")
    for a, t in P: k(f"v_mul_f32 v{a}, v{a}, v{t}")


def reduce_g(k, op, regs, temps):
    for sw in ("v_permlane16_swap_b32", "v_permlane32_swap_b32"):
        for a, t in zip(regs, temps): k(f"v_mov_b32 v{t}, v{a}")
        k("s_nop 1")
        for a, t in zip(regs, temps): k(f"{sw} v{a}, v{t}")
        k("s_nop 1")
        for a, t in zip(regs, temps): k(f"{op} v{a}, v{a}, v{t}")


LTHRESH = 2.0 ** 60
sW, sHEAD, sQB, sW2K, sW4K, sM16, sNONCE, sOWN = 20, 21, 22, 23, 25, 33, 100, 101
vl, vrr, vc, vg, v15, vL16 = 1, 2, 3, 4, 5, 6
F_LN, F_H, F_O, F_P, F_G = 0, 1, 2, 3, 4


def raise_flag(k, name, slot, extra=()):
    k("s_barrier")
    k(f"s_cmp_eq_u32 s{sW}, 0")
    k(f"s_cbranch_scc0 {name}")
    k(f"v_mov_b32 v7, s{sOWN}")
    k(f"v_mov_b32 v8, s{sNONCE}")
    k("s_mov_b64 exec, 1")
    k(f"global_store_dword v7, v8, s[98:99] offset:{slot*128} sc1")
    k("s_mov_b64 exec, -1")
    k.lab(name)


def spin(k, name, vflag, vdst, off, first=True):
    k("s_mov_b32 s3, 0")
    if first:
        k(f"global_load_dword v{vdst}, v{vflag}, s[98:99] offset:{off} sc1")
    k.lab(name)
    k("s_waitcnt vmcnt(0)")
    k(f"v_cmp_ne_u32 vcc, s{sNONCE}, v{vdst}")
    k("s_add_u32 s3, s3, 1")
    k(f"s_cbranch_vccz {name}_ok")
    k("s_cmp_gt_u32 s3, 0x40000")
    k(f"s_cbranch_scc1 {name}_ok")
    k(f"global_load_dword v{vdst}, v{vflag}, s[98:99] offset:{off} sc1")
    k(f"s_branch {name}")
    k.lab(f"{name}_ok")


def ln_rows(k, nyoung, vst, sxn):
    D, F, A, T = 96, 112, 144, 152
    k(f"s_mov_b32 s32, {f32(1.0/1024)}")
    for i in range(4):
        k(f"s_waitcnt vmcnt({3-i+nyoung})")
        if i == 3: k.stamp(3, grp=2)
        for r in range(4):
            k(f"v_lshlrev_b32 v{F+8*i+2*r}, 16, v{D+4*i+r}")
            k(f"v_and_b32 v{F+1+8*i+2*r}, 0xffff0000, v{D+4*i+r}")

    def reduce32(s, t):
        for p in ("quad_perm:[1,0,3,2]", "quad_perm:[2,3,0,1]", "row_half_mirror", "row_mirror"):
            k("s_nop 1")
            k(f"v_add_f32_dpp v{s}, v{s}, v{s} {p} row_mask:0xf bank_mask:0xf")
        k(f"v_mov_b32 v{t}, v{s}")
        k("s_nop 1")
        k(f"v_permlane16_swap_b32 v{s}, v{t}")
        k("s_nop 1")
        k(f"v_add_f32 v{s}, v{s}, v{t}")

    for i in range(2):
        k(f"v_pk_add_f32 {vr(A+2*i,2)}, {vr(F+2*i,2)}, {vr(F+4+2*i,2)}")
    for j in range(8, 32, 4):
        for i in range(2):
            k(f"v_pk_add_f32 {vr(A+2*i,2)}, {vr(A+2*i,2)}, {vr(F+j+2*i,2)}")
    k(f"v_pk_add_f32 {vr(A,2)}, {vr(A,2)}, {vr(A+2,2)}")
    k(f"v_add_f32 v{A}, v{A}, v{A+1}")
    reduce32(A, A + 1)
    k(f"v_mul_f32 v{A}, s32, v{A}")
    V = A + 2
    for j in range(0, 32, 2):
        t = T + (j & 2)
        k(f"v_pk_add_f32 {vr(t,2)}, {vr(F+j,2)}, {vr(A,2)} op_sel_hi:[1,0] neg_lo:[0,1] neg_hi:[0,1]")
        if j < 4:
            k(f"v_pk_mul_f32 {vr(V+(j&2),2)}, {vr(t,2)}, {vr(t,2)}")
        else:
            k(f"v_pk_fma_f32 {vr(V+(j&2),2)}, {vr(t,2)}, {vr(t,2)}, {vr(V+(j&2),2)}")
    k(f"v_pk_add_f32 {vr(V,2)}, {vr(V,2)}, {vr(V+2,2)}")
    k(f"v_add_f32 v{V}, v{V}, v{V+1}")
    reduce32(V, V + 1)
    k(f"v_mul_f32 v{V}, s32, v{V}")
    k(f"v_cvt_pk_bf16_f32 v{A}, v{A}, v{V}")
    k(f"v_and_b32 v{V}, 0xffff0000, v{A}")
    k(f"v_lshlrev_b32 v{A}, 16, v{A}")
    k(f"v_add_f32 v{V}, {f32(1e-5)}, v{V}")
    k(f"v_cvt_pk_bf16_f32 v{V}, v{V}, v{V}")
    k(f"v_lshlrev_b32 v{V}, 16, v{V}")
    k(f"v_sqrt_f32 v{V}, v{V}")
    k("s_nop 0")
    k(f"v_cvt_pk_bf16_f32 v{V}, v{V}, v{V}")
    k(f"v_lshlrev_b32 v{V}, 16, v{V}")
    k(f"v_rcp_f32 v{V}, v{V}")
    k("s_mov_b32 s32, 4096")
    for j in range(0, 32, 2):
        k(f"v_pk_add_f32 {vr(F+j,2)}, {vr(F+j,2)}, {vr(A,2)} op_sel_hi:[1,0] neg_lo:[0,1] neg_hi:[0,1]")
    for i in range(4):
        for r in range(4):
            a = F + 8 * i + 2 * r
            k(f"v_pk_mul_f32 {vr(a,2)}, {vr(a,2)}, {vr(V,2)} op_sel_hi:[1,0]")
        for r in range(4):
            a = F + 8 * i + 2 * r
            k(f"v_cvt_pk_bf16_f32 v{D+4*i+r}, v{a}, v{a+1}")
        k(f"ds_write_b128 v{vst+3}, {vr(D+4*i,4)} offset:{4096*i}")
    k("s_waitcnt lgkmcnt(0)")
    k("s_barrier")
    for i in range(4):
        k(f"ds_read_b128 {vr(D+4*i,4)}, v{vst+4} offset:{1024*i}")
    for i in range(4):
        k(f"s_waitcnt lgkmcnt({3-i})")
        k(f"buffer_store_dwordx4 {vr(D+4*i,4)}, v{vst}, s[{sxn}:{sxn+3}], {'s32' if i >= 2 else '0'} offen offset:{(i&1)*2048} sc1")


def part_a(k):
    sSOW1, sSOX, sSOWQ, sCNT = 24, 26, 27, 28
    sT0, sT1, sC = 29, 32, 30
    SK, SV, SX, SO, SWQ, SW1, SH = 8, 12, 16, 36, 52, 56, 60
    sSOK, sSOV = 40, 41
    vWq = [10, 11, 12, 13]
    vW1 = list(range(14, 21))
    vDq, vD1 = [21, 22], [23, 24]
    vX = [25, 26, 27, 28]
    XR = lambda st, mb: 32 + st * 16 + mb * 4
    WF = lambda st, nb: 96 + st * 60 + nb * 4
    vKrd = [216, 217, 218, 219]
    vVrd = list(range(220, 228))
    vKdma = [228, 229, 230, 231]
    vVdma = [232, 233]
    acc = lambda nb, mb: (nb * 4 + mb) * 4
    KB, VB, WB = 0, 65536, 98304

    k("s_cmp_ge_u32 s2, 256")
    k("s_cbranch_scc1 k_done")
    k.stamp(0, True); k.stamp(1)
    k("s_load_dwordx2 s[42:43], s[0:1], 0")
    k("s_load_dwordx2 s[34:35], s[0:1], 80")
    k("s_load_dwordx4 s[4:7], s[0:1], 8")
    k("s_load_dwordx4 s[44:47], s[0:1], 24")
    k("s_load_dwordx4 s[48:51], s[0:1], 48")
    lane_fields(k, vl, vrr, vc, vg, v15, sW)
    k("s_and_b32 s3, s2, 7")
    k("s_lshl_b32 s3, s3, 2")
    k(f"s_lshr_b32 s{sT0}, s2, 6")
    k(f"s_add_u32 s{sHEAD}, s3, s{sT0}")
    k(f"s_bfe_u32 s{sQB}, s2, 0x30003")
    k(f"s_lshl_b32 s{sOWN}, s{sQB}, 5")
    k(f"s_add_u32 s{sOWN}, s{sOWN}, s{sHEAD}")
    k(f"s_lshl_b32 s3, s{sOWN}, 3")
    k("v_lshrrev_b32 v7, 5, v0")
    k("v_add_u32 v7, s3, v7")
    k("v_and_b32 v8, 31, v0")
    k("v_lshlrev_b32 v156, 11, v7")
    k("v_lshl_add_u32 v156, v8, 4, v156")
    k(f"s_lshl_b32 s{sOWN}, s{sOWN}, 10")
    k(f"s_lshl_b32 s3, s{sQB}, 7")
    k(f"s_add_u32 s3, s3, {EP_OFF}")
    k("v_mov_b32 v158, s3")
    k("s_waitcnt lgkmcnt(0)")
    k.srd(SV, 42, nrec=2048 * 2048)
    for i in range(4):
        k(f"buffer_load_dwordx4 {vr(96+4*i,4)}, v156, s[{SV}:{SV+3}], 0 offen offset:{512*i}")
    k(f"s_add_u32 s98, s34, {FL_OFF}")
    k(f"s_addc_u32 s99, s35, 0")
    k("global_load_dword v159, v158, s[98:99] sc1")
    k(k.code_pf_setup(42, None, "code_end", 234, 236, sT0))
    k("v_lshrrev_b32 v9, 5, v0")
    k("v_lshlrev_b32 v160, 4, v9")
    k("v_lshl_add_u32 v160, v8, 7, v160")
    k("v_and_b32 v161, 63, v0")
    k("v_lshlrev_b32 v161, 4, v161")
    k("v_lshrrev_b32 v9, 6, v0")
    k("v_lshl_add_u32 v161, v9, 12, v161")
    k(f"s_lshr_b32 s3, s{sOWN}, 11")
    k("s_lshl_b32 s3, s3, 15")
    k(f"s_and_b32 s{sT0}, s{sHEAD}, 1")
    k(f"s_lshl_b32 s{sT0}, s{sT0}, 7")
    k(f"s_add_u32 s3, s3, s{sT0}")
    k("v_lshlrev_b32 v157, 13, v9")
    k("v_add_u32 v157, s3, v157")
    k("v_bfe_u32 v9, v0, 5, 1")
    k("v_lshl_add_u32 v157, v9, 10, v157")
    k("v_bfe_u32 v9, v0, 3, 2")
    k("v_lshl_add_u32 v157, v9, 8, v157")
    k("v_and_b32 v9, 7, v0")
    k("v_lshl_add_u32 v157, v9, 4, v157")
    k.srd(SO, 34, const=XN_OFF, nrec=XN_SZ)
    k(f"s_lshl_b32 s{sW4K}, s{sW}, 12")
    k(f"s_lshl_b32 s{sW2K}, s{sW}, 11")
    k(f"v_lshlrev_b32 v{vL16}, 4, v{vl}")
    k(f"s_lshl_b32 s{sT0}, s{sW}, 3")
    k(f"v_add_u32 v7, s{sT0}, v{vg}")
    k(f"v_lshlrev_b32 v8, 2, v{vg}")
    k(f"v_xor_b32 v8, v8, v{v15}")
    k(f"v_lshlrev_b32 v9, 13, v7")
    k(f"v_lshl_add_u32 v{vDq[0]}, v8, 4, v9")
    k(f"v_add_u32 v{vDq[1]}, {4*8192-1024}, v{vDq[0]}")
    k(f"s_and_b32 s{sT0}, s{sW}, 1")
    k(f"s_lshl_b32 s{sT0}, s{sT0}, 2")
    k(f"v_or_b32 v8, s{sT0}, v{vg}")
    k(f"v_lshlrev_b32 v8, 1, v8")
    k(f"v_xor_b32 v8, v8, v{v15}")
    k(f"v_mul_u32_u24 v9, 7168, v7")
    k(f"v_lshl_add_u32 v9, v8, 4, v9")
    k(f"v_cmp_gt_u32 vcc, 14, v8")
    k(f"v_mov_b32 v8, 0x80000000")
    k("s_nop 0")
    k(f"v_cndmask_b32 v{vD1[0]}, v8, v9, vcc")
    k(f"v_add_u32 v{vD1[1]}, {4*7168-1024}, v{vD1[0]}")
    k(f"s_lshl_b32 s3, s{sHEAD}, 8")
    k(f"s_sub_u32 s{sT1}, {8 << 20}, s3")
    k.srd(SWQ, 44, soff="s3", nrec=f"s{sT1}")
    k(f"s_mul_i32 s3, s{sHEAD}, 224")
    k(f"s_sub_u32 s{sT1}, 7340032, s3")
    k.srd(SW1, 48, soff="s3", nrec=f"s{sT1}")
    k(f"s_mov_b32 s{sSOX}, 0")
    k(f"s_mov_b32 s{sSOWQ}, 0")
    k(f"s_mov_b32 s{sSOW1}, 0")
    PF, sPFS, sPFO, sPFC, sPFX, vPF = SH, 93, 94, 95, 96, 30
    k(f"s_cmp_lt_u32 s{sW}, 2")
    for i in range(3):
        k(f"s_cselect_b32 s{PF+i}, s{SWQ+i}, s{SW1+i}")
    k(f"s_mov_b32 s{PF+3}, 0x20000")
    k.csel2(sT0, 8192, 7168)
    k(f"s_lshl_b32 s{sPFS}, s{sT0}, 5")
    k(f"s_and_b32 s{sT1}, s{sW}, 1")
    k(f"s_lshl_b32 s{sT1}, s{sT1}, 4")
    k(f"v_lshrrev_b32 v7, 2, v{vl}")
    k(f"v_add_u32 v7, s{sT1}, v7")
    k(f"v_mul_lo_u32 v7, v7, s{sT0}")
    k(f"v_lshl_add_u32 v{vPF}, v{vc}, 6, v7")
    k(f"s_mul_i32 s{sPFX}, s{sPFS}, s{sQB}")
    k(f"s_lshl_b32 s{sPFO}, s{sPFS}, 3")
    k(f"s_sub_u32 s{sPFC}, 8, s{sQB}")
    pfl = f"buffer_load_dword v31, v{vPF}, s[{PF}:{PF+3}], s{sPFX} offen"
    pf_pre = [f"s_and_b32 s{sPFX}, s{sPFC}, 7", f"s_cselect_b32 s{sPFX}, 0x40000000, s{sPFO}"]
    pf_post = [f"s_add_u32 s{sPFO}, s{sPFO}, s{sPFS}", f"s_add_u32 s{sPFC}, s{sPFC}, 1"]

    def xload(st, mb, imm):
        return f"buffer_load_dwordx4 {vr(XR(st,mb),4)}, v{vX[mb]}, s[{SX}:{SX+3}], s{sSOX} offen offset:{imm} sc1"

    dq = lambda i: f"buffer_load_dwordx4 v{vDq[i]}, s[{SWQ}:{SWQ+3}], s{sSOWQ} offen offset:{i*1024} lds"
    d1 = lambda i: f"buffer_load_dwordx4 v{vD1[i]}, s[{SW1}:{SW1+3}], s{sSOW1} offen offset:{i*1024} lds"
    m0q = lambda slot: f"s_add_u32 m0, s{sW2K}, {WB+slot*16384}"
    m01 = lambda slot: f"s_add_u32 m0, s{sW2K}, {WB+slot*16384+8192}"
    advw = [f"s_add_u32 s{sSOWQ}, s{sSOWQ}, {32*8192}", f"s_add_u32 s{sSOW1}, s{sSOW1}, {32*7168}"]

    def wdma_grp(slot):
        return [[m0q(slot), "s_nop 0", dq(0)], [dq(1)], [m01(slot), "s_nop 0", d1(0)], [d1(1)] + advw]

    vmem = wdma_grp(0) + wdma_grp(1) + wdma_grp(2) + wdma_grp(3)
    NW0 = CFG["nw0"]
    for grp in vmem[:NW0]:
        for x in grp: k(x)
    vmem = vmem[NW0:] + [[pfl, f"s_mov_b32 s{sPFX}, 0x40000000"]]
    k(f"s_lshl_b32 s3, s{sHEAD}, 19")
    k(f"s_cmp_lt_u32 s{sW}, 2")
    k("s_cselect_b32 s44, s4, s6")
    k("s_cselect_b32 s45, s5, s7")
    k.srd(44, 44, soff="s3", nrec=524288)
    k(f"s_and_b32 s3, s{sW}, 1")
    k(f"s_lshl_b32 s48, s{sQB}, 1")
    k("s_add_u32 s48, s48, s3")
    k("s_lshl_b32 s48, s48, 10")
    k.stamp(2, grp=2)
    ln_rows(k, 2 + NW0, 157, SO)
    k.stamp(4, grp=2)
    k2 = K("tmp")
    k2(f"s_lshl_b32 s3, s{sQB}, 4")
    k2(f"s_lshl_b32 s{sT0}, s{sW}, 2")
    k2(f"s_add_u32 s{sM16}, s3, s{sT0}")
    k2(f"s_lshl_b32 s3, s{sM16}, 15")
    k2.srd(SX, 34, const=XN_OFF, soff="s3", nrec=4 * 32768)
    for mb in range(4):
        k2(f"v_add_u32 v{vX[mb]}, {mb*32768}, v{vL16}")
    k2(f"v_lshl_add_u32 v7, v{vg}, 3, v{vrr}")
    k2(f"v_lshlrev_b32 v7, 8, v7")
    k2(f"v_add_u32 v7, {WB}, v7")
    k2(f"v_lshl_add_u32 v8, v{vc}, 4, v7")
    for js in range(4):
        k2(f"v_xor_b32 v9, {js}, v{vrr}")
        k2(f"v_lshl_add_u32 v{vWq[js]}, v9, 6, v8")
    k2(f"v_lshl_add_u32 v8, v{vc}, 3, v7")
    k2(f"v_add_u32 v8, 8192, v8")
    k2(f"v_and_b32 v29, 1, v{vg}")
    k2(f"v_lshl_add_u32 v29, v29, 2, v{vrr}")
    k2(f"s_and_b32 s97, s{sHEAD}, 1")
    for n7 in range(7):
        if n7 < 6:
            k2(f"s_add_u32 s{sT0}, s97, {n7}")
        else:
            k2(f"s_mul_i32 s{sT0}, s97, -6")
            k2(f"s_add_u32 s{sT0}, s{sT0}, 6")
        k2(f"v_xor_b32 v9, s{sT0}, v29")
        k2(f"v_lshl_add_u32 v{vW1[n7]}, v9, 5, v8")
    k2(f"s_lshl_b32 s3, s{sHEAD}, 19")
    k2.srd(SK, 4, soff="s3", nrec=524288)
    k2.srd(SV, 6, soff="s3", nrec=524288)
    k2(f"v_lshlrev_b32 v7, 8, v{v15}")
    for js in range(4):
        k2(f"v_add_u32 v9, {4*js}, v{vg}")
        k2(f"v_xor_b32 v9, v9, v{v15}")
        k2(f"v_lshl_add_u32 v{vKrd[js]}, v9, 4, v7")
    k2(f"v_lshl_add_u32 v7, v{vg}, 2, v{vrr}")
    k2(f"v_lshlrev_b32 v7, 8, v7")
    k2(f"v_add_u32 v7, {VB}, v7")
    k2(f"v_lshl_add_u32 v7, v{vc}, 3, v7")
    for db in range(8):
        k2(f"v_xor_b32 v9, {db}, v29")
        k2(f"v_lshl_add_u32 v{vVrd[db]}, v9, 5, v7")
    k2(f"v_lshlrev_b32 v7, 8, v{vg}")
    k2(f"v_add_u32 v7, s{sW4K}, v7")
    for p in range(4):
        k2(f"v_add_u32 v9, {4*p}, v{vg}")
        k2(f"v_xor_b32 v9, v9, v{v15}")
        k2(f"v_lshl_add_u32 v{vKdma[p]}, v9, 4, v7")
    for i in range(2):
        k2(f"v_add_u32 v9, {4*i}, v{vg}")
        k2(f"v_lshlrev_b32 v9, 1, v9")
        k2(f"v_xor_b32 v9, v9, v{v15}")
        k2(f"v_lshl_add_u32 v{vVdma[i]}, v9, 4, v7")
    k2(f"s_mov_b32 s{sSOK}, 0")
    k2(f"s_mov_b32 s{sSOV}, 0")
    for i in range(CFG["accpre"]):
        k2(f"v_accvgpr_write_b32 a{i}, 0")
    for x in k2.L: k(x.strip())
    k(f"s_lshl_b32 s3, s{sQB}, 15")
    k(f"v_and_b32 v156, 31, v{vl}")
    k(f"v_lshlrev_b32 v156, 10, v156")
    k(f"v_add_u32 v156, s3, v156")
    k.stamp(5, grp=2)
    k("s_waitcnt vmcnt(0)")
    k(f"v_readfirstlane_b32 s{sNONCE}, v159")
    k("s_nop 3")
    k(f"s_add_u32 s{sNONCE}, s{sNONCE}, 1")
    k(f"s_or_b32 s{sNONCE}, s{sNONCE}, 0x80000000")
    raise_flag(k, "k_ln_pub", F_LN)
    for i in range(CFG["accpre"], 240):
        k(f"v_accvgpr_write_b32 a{i}, 0")
    k.stamp(8, grp=2)
    k(f"s_cmp_eq_u32 s{sW}, 0")
    k("s_cbranch_scc0 k_ln_seen")
    spin(k, "k_ln_wait", 156, 155, F_LN * 128)
    k(f"s_cmp_eq_u32 s{sHEAD}, 0")
    k("s_cbranch_scc0 k_ln_seen")
    k(f"v_mov_b32 v8, s{sNONCE}")
    k("s_mov_b64 exec, 1")
    k("global_store_dword v158, v8, s[98:99] sc1")
    k("s_mov_b64 exec, -1")
    k.lab("k_ln_seen")
    k("s_barrier")
    k.stamp(2); k.stamp(9, grp=2)
    for st in range(3):
        for mb in range(4): k(xload(st, mb, st * 1024))
    for grp in vmem:
        for x in grp: k(x)
    for i in range(max(11 - len(vmem), 5)): k(pfl)

    dma_k = lambda p: f"buffer_load_dwordx4 v{vKdma[p]}, s[{SK}:{SK+3}], s{sSOK} offen offset:{p*1024} lds"
    dma_v = lambda p: f"buffer_load_dwordx4 v{vVdma[p&1]}, s[{SV}:{SV+3}], s{sSOV} offen offset:{p*1024} lds"
    m0k = lambda slot: f"s_add_u32 m0, s{sW4K}, {KB+slot*16384}"
    m0v = lambda slot: f"s_add_u32 m0, s{sW4K}, {VB+slot*16384}"
    advk = f"s_add_u32 s{sSOK}, s{sSOK}, 16384"
    advv = f"s_add_u32 s{sSOV}, s{sSOV}, 16384"

    def wreads(slot, st):
        R = []
        for nb in range(15):
            for q2 in range(2):
                if nb < 8:
                    R.append(f"ds_read_b64_tr_b16 {vr(WF(st,nb)+2*q2,2)}, v{vWq[nb>>1]} offset:{slot*16384+q2*1024+(nb&1)*8}")
                else:
                    R.append(f"ds_read_b64_tr_b16 {vr(WF(st,nb)+2*q2,2)}, v{vW1[nb-8]} offset:{slot*16384+q2*1024}")
        return R

    def p1_mfmas(u):
        return [MFMA(ar(acc(nb, mb), 4), vr(WF(u & 1, nb), 4), vr(XR(u, mb), 4), ar(acc(nb, mb), 4))
                for nb in range(15) for mb in range(4)]

    def p1_stage(u, vmcnt, vm_items, rd=True):
        k(f"s_waitcnt vmcnt({vmcnt}) lgkmcnt(0)")
        k("s_barrier")
        fill = {}
        if rd:
            for i, r in enumerate(wreads((u + 1) & 3, (u + 1) & 1)):
                add_fill(fill, i, r)
        for i, (pre, ins, post) in enumerate(vm_items):
            g = 31 + 3 * i
            for s in pre: add_fill(fill, g - 1, s)
            add_fill(fill, g, ins)
            for s in post: add_fill(fill, g + 1, s)
        weave(k, p1_mfmas(u), fill)

    for r in wreads(0, 0): k(r)
    k(f"s_mov_b32 s{sCNT}, 0")
    if CFG["stamps"] == 2:
        k("s_waitcnt vmcnt(19)")
        k.stamp(10, grp=2)
    k.lab("k_p1_loop")
    for u in range(4):
        imm = 3072 if u == 0 else (u - 1) * 1024
        it = [([m0q(u)], dq(0), []), ([], dq(1), []), ([m01(u)], d1(0), []), ([], d1(1), advw)]
        it += [([], xload((u + 3) & 3, mb, imm), [f"s_add_u32 s{sSOX}, s{sSOX}, 4096"] if (u == 0 and mb == 3) else [])
               for mb in range(4)]
        it.append((pf_pre, pfl, pf_post))
        if u == 1:
            it.append(([f"s_cmp_lt_u32 s{sCNT}, 4", "s_cselect_b32 s49, s48, 0x40000000"],
                       f"buffer_load_dwordx4 v[240:243], v{vL16}, s[44:47], s49 offen", ["s_add_u32 s48, s48, 16384"]))
        p1_stage(u, 19, it)
    k(f"s_add_u32 s{sCNT}, s{sCNT}, 1")
    k(f"s_cmp_lt_u32 s{sCNT}, 7")
    k("s_cbranch_scc1 k_p1_loop")

    def kv_items(kind, slot):
        L = []
        for p in range(4):
            pre = [m0k(slot) if kind == "k" else m0v(slot)] if p == 0 else []
            post = [advk if kind == "k" else advv] if p == 3 else []
            L.append((pre, dma_k(p) if kind == "k" else dma_v(p), post))
        return L

    kv = kv_items("k", 0) + kv_items("k", 1) + kv_items("v", 0) + kv_items("k", 2) + kv_items("v", 1) + kv_items("k", 3)
    p1_stage(0, 19, [([], xload(3, mb, 3072), []) for mb in range(4)] + kv[:5])
    p1_stage(1, 19, kv[5:14])
    p1_stage(2, 19, kv[14:23])
    p1_stage(3, 23, kv[23:], rd=False)
    k.stamp(3); k.stamp(2, grp=4)

    k(f"s_mul_i32 s3, s{sM16}, {112*1024}")
    k.srd(SH, 34, const=H_OFF, soff="s3", nrec=4 * 112 * 1024)
    sHP, sHS = 93, 94
    k(f"s_mul_i32 s{sHP}, s{sHEAD}, 7")
    k(f"s_add_u32 s{sHP}, s{sHP}, s97")
    k(f"s_lshl_b32 s{sHP}, s{sHP}, 9")
    k(f"s_mul_i32 s{sHS}, s97, {-4096+8}")
    k(f"s_add_u32 s{sHS}, s{sHS}, 3072")
    k(f"s_add_u32 s{sHS}, s{sHS}, s{sHP}")
    for mb in range(4):
        k(f"v_add_u32 v{vX[mb]}, {mb*112*1024}, v{vL16}")
    if CFG["pf"]:
        k("s_load_dwordx2 s[46:47], s[0:1], 32")
        k("s_load_dwordx2 s[50:51], s[0:1], 56")
        k(f"s_lshl_b32 s3, s2, 2")
        k(f"s_add_u32 s3, s3, s{sW}")
        k("s_waitcnt lgkmcnt(0)")
        k.srd(SWQ, 46, nrec=8 << 20)
        k.srd(SW1, 50, nrec=7340032)
        k(f"s_lshl_b32 s{sSOWQ}, s3, 13")
        k(f"s_mul_i32 s{sSOW1}, s3, 7168")
    k(f"s_mov_b32 s{sC}, {f32(-LOG2E)}")
    k(f"s_mov_b32 s{sC+1}, {f32(-LOG2E)}")
    for p in range(4):
        n = 32 if p < 3 else 16
        T, U = 96, 160 + (p & 1) * 16
        for i in range(n):
            k(f"v_accvgpr_read_b32 v{T+i}, a{acc(8+2*p,0)+i}")
        silu_n(k, list(range(T, T + n)), list(range(T + 32, T + 32 + n)), sC)
        for mb in range(4):
            for b in range(n // 16):
                for h2 in range(2):
                    k(f"v_cvt_pk_bf16_f32 v{U+4*mb+2*b+h2}, v{T+16*b+4*mb+2*h2}, v{T+16*b+4*mb+2*h2+1}")
        if p == 0:
            k.stamp(3, grp=4)
            k("s_waitcnt vmcnt(0)")
            k.stamp(4, grp=4)
        for mb in range(4):
            if p < 3:
                k(f"buffer_store_dwordx4 {vr(U+4*mb,4)}, v{vX[mb]}, s[{SH}:{SH+3}], s{sHP} offen offset:{p*1024} sc1")
            else:
                k(f"buffer_store_dwordx2 {vr(U+4*mb,2)}, v{vX[mb]}, s[{SH}:{SH+3}], s{sHS} offen sc1")
    k.stamp(5, grp=4)
    Q = lambda qb, js: 32 + (qb * 4 + js) * 4
    k(f"s_mov_b32 s{sC}, {f32(QSCALE)}")
    k(f"s_mov_b32 s{sC+1}, {f32(QSCALE)}")
    for js in range(4):
        T = 96 + (js & 1) * 32
        for b in range(2):
            for i in range(16):
                k(f"v_accvgpr_read_b32 v{T+16*b+i}, a{acc(2*js+b,0)+i}")
        if CFG["pk"]:
            for i in range(0, 32, 2):
                k(f"v_pk_mul_f32 {vr(T+i,2)}, {vr(T+i,2)}, s[{sC}:{sC+1}]")
        else:
            for i in range(32):
                k(f"v_mul_f32 v{T+i}, s{sC}, v{T+i}")
        for qb in range(4):
            for b in range(2):
                for h2 in range(2):
                    k(f"v_cvt_pk_bf16_f32 v{Q(qb,js)+2*b+h2}, v{T+16*b+4*qb+2*h2}, v{T+16*b+4*qb+2*h2+1}")
    k(f"s_lshl_b32 s3, s{sM16}, 7")
    k(f"s_lshl_b32 s{sT0}, s{sHEAD}, 2")
    k(f"s_add_u32 s3, s3, s{sT0}")
    k("s_lshl_b32 s3, s3, 10")
    k(f"s_sub_u32 s{sT1}, {O_SZ}, s3")
    k.srd(SO, 34, const=O_OFF, soff="s3", nrec=f"s{sT1}")
    for qb in range(4):
        k(f"s_mov_b32 s{93+qb}, {qb*128*1024}")

    Sb = lambda buf, kb, qb: 96 + buf * 32 + (kb * 4 + qb) * 4
    Pb = lambda buf, qb: 160 + buf * 16 + qb * 4
    NM = lambda qb: 192 + 4 * qb
    vLs = [208, 209, 210, 211]
    KF = lambda f: 192 + 4 * f
    VF = lambda db: 224 + 4 * db
    O = lambda db, qb: (db * 4 + qb) * 4

    def kread(f, slot, half):
        return f"ds_read_b128 {ar(KF(f),4)}, v{vKrd[f&3]} offset:{slot*16384+half*8192+(f>>2)*4096}"

    def vread(db, q2, slot, half):
        return f"ds_read_b64_tr_b16 {ar(VF(db)+2*q2,2)}, v{vVrd[db]} offset:{slot*16384+half*8192+q2*4096}"

    def qk(buf, first_c=None):
        M = []
        for f in range(8):
            for qb in range(4):
                d = vr(Sb(buf, f >> 2, qb), 4)
                c = d if (f & 3) else (first_c if first_c is not None else vr(NM(qb), 4))
                M.append(MFMA(d, ar(KF(f), 4), vr(Q(qb, f & 3), 4), c))
        return M

    def pv(buf):
        return [MFMA(ar(O(db, qb), 4), ar(VF(db), 4), vr(Pb(buf, qb), 4), ar(O(db, qb), 4))
                for db in range(8) for qb in range(4)]

    def sm_add(buf, i):
        kb, qb, r = i >> 4, (i >> 2) & 3, i & 3
        s = 96 + buf * 32 + i
        L = [f"v_add_f32 v{vLs[qb]}, v{vLs[qb]}, v{s}"]
        if i & 1:
            L.append(f"v_cvt_pk_bf16_f32 v{Pb(buf,qb)+2*kb+(r>>1)}, v{s-1}, v{s}")
        return L

    sm_exp = lambda buf, i: f"v_exp_f32 v{96+buf*32+i}, v{96+buf*32+i}"

    k.stamp(8, grp=4)
    k("s_barrier")
    k.stamp(4)
    for f in range(8): k(kread(f, 0, 0))
    for i in range(32):
        k(f"v_accvgpr_write_b32 a{i}, 0")
    for qb in range(4):
        k(f"v_mov_b32 v{vLs[qb]}, 0")
    k("s_waitcnt lgkmcnt(0)")
    fill = {}
    for f in range(8): add_fill(fill, 4 * f + 3, kread(f, 0, 1))
    for i in range(32, 128): add_fill(fill, (i - 32) // 3, f"v_accvgpr_write_b32 a{i}, 0")
    weave(k, qk(0, "0"), fill)
    k("s_nop 7")
    tm, tt = [212, 213, 214, 215], [234, 235, 236, 237]
    for qb in range(4):
        k(f"v_max3_f32 v{tm[qb]}, v{Sb(0,0,qb)}, v{Sb(0,0,qb)+1}, v{Sb(0,0,qb)+2}")
    for qb in range(4):
        k(f"v_max3_f32 v{tm[qb]}, v{Sb(0,0,qb)+3}, v{Sb(0,1,qb)}, v{tm[qb]}")
    for qb in range(4):
        k(f"v_max3_f32 v{tm[qb]}, v{Sb(0,1,qb)+1}, v{Sb(0,1,qb)+2}, v{tm[qb]}")
    for qb in range(4):
        k(f"v_max_f32 v{tm[qb]}, v{Sb(0,1,qb)+3}, v{tm[qb]}")
    reduce_g(k, "v_max_f32", tm, tt)
    for qb in range(4):
        k(f"v_sub_f32 v{tm[qb]}, {f32(-float(CFG['margin']))}, v{tm[qb]}")
    for qb in range(4):
        for r in range(4):
            k(f"v_mov_b32 v{NM(qb)+r}, v{tm[qb]}")
    for i in range(32):
        k(f"v_add_f32 v{96+i}, v{96+i}, v{tm[(i>>2)&3]}")
    k("s_waitcnt lgkmcnt(0)")
    fill = {}
    for f in range(8): add_fill(fill, 4 * f + 3, kread(f, 1, 0))
    for i in range(32):
        if i >= 1:
            for x in sm_add(0, i - 1): add_fill(fill, i, x)
        add_fill(fill, i, sm_exp(0, i))
    weave(k, qk(1), fill)
    k(f"s_mov_b32 s{sCNT}, 0")
    k.stamp(9, grp=4)
    k("s_waitcnt vmcnt(0)")
    raise_flag(k, "k_h_pub", F_H)
    k.stamp(10, grp=4)
    if CFG["stamps"] == 4: k("s_waitcnt lgkmcnt(0)")

    def half(tt, par):
        vm, ds, va, ex, first, last = {}, {}, {}, {}, {}, {}
        M = qk(par) + pv(par)
        for db in range(8):
            for q2 in range(2):
                add_fill(ds, 2 * db + q2, vread(db, q2, tt, par))
        for f in range(8):
            add_fill(ds, 16 + 2 * f, kread(f, (tt + 1 + par) & 3, 1 - par))
        add_fill(first, 7, "s_waitcnt lgkmcnt(7)")
        if par == 1:
            add_fill(first, 15, f"s_waitcnt vmcnt({9 if (CFG['pf'] and (tt & 1)) else 8}) lgkmcnt(7)")
            add_fill(last, 15, "s_barrier")
            if CFG["pf"] and tt == 0:
                add_fill(vm, 16, f"buffer_load_dwordx4 v[244:247], v{vL16}, s[{SWQ}:{SWQ+3}], s{sSOWQ} offen")
                add_fill(first, 19, f"s_add_u32 s{sSOWQ}, s{sSOWQ}, 1024")
            if CFG["pf"] and tt == 2:
                add_fill(vm, 16, f"buffer_load_dwordx4 v[248:251], v{vL16}, s[{SW1}:{SW1+3}], s{sSOW1} offen")
                add_fill(first, 19, f"s_add_u32 s{sSOW1}, s{sSOW1}, 1024")
            add_fill(first, 16, m0k(tt))
            for p in range(4): add_fill(vm, 17 + 4 * p, dma_k(p))
            add_fill(first, 31, advk)
        else:
            add_fill(first, 15, "s_waitcnt lgkmcnt(7)")
            add_fill(first, 16, m0v((tt + 2) & 3))
            for p in range(4): add_fill(vm, 17 + 4 * p, dma_v(p))
            add_fill(first, 31, advv)
        add_fill(first, 23, "s_waitcnt lgkmcnt(4)")
        add_fill(first, 31, "s_waitcnt lgkmcnt(4)")
        for x in sm_add(par, 31): add_fill(va, 0, x)
        for g in range(32):
            if g >= 1:
                for x in sm_add(1 - par, g - 1): add_fill(va, g, x)
            add_fill(ex, g, sm_exp(1 - par, g))
        fill = {}
        for g in range(32):
            fill[2 * g] = first.get(g, []) + vm.get(g, []) + ds.get(g, []) + va.get(g, [])
            fill[2 * g + 1] = ex.get(g, []) + last.get(g, [])
        weave(k, M, fill)

    k("s_waitcnt lgkmcnt(4)")
    k.lab("k_attn_loop")
    for i in range(8):
        if i == 6:
            k(f"s_cmp_eq_u32 s{sCNT}, 7")
            k("s_cbranch_scc1 k_attn_tail")
        half(i >> 1, i & 1)
    k(f"s_add_u32 s{sCNT}, s{sCNT}, 1")
    k("s_branch k_attn_loop")
    k.lab("k_attn_tail")
    for db in range(8):
        for q2 in range(2): k(vread(db, q2, 3, 0))
    for x in sm_add(0, 31): k(x)
    k("s_waitcnt lgkmcnt(0)")
    fill = {}
    for i in range(32):
        if i >= 1:
            for x in sm_add(1, i - 1): add_fill(fill, i, x)
        add_fill(fill, i, sm_exp(1, i))
        if (i & 3) == 3:
            for q2 in range(2): fill[i] = [vread(i >> 2, q2, 3, 1)] + fill[i]
    weave(k, pv(0), fill)
    k("s_nop 0")
    for x in sm_add(1, 31): k(x)
    k("s_waitcnt lgkmcnt(0)")
    fill = {}
    chk = [f"s_mov_b32 s{sT0}, {f32(LTHRESH if not CFG['force_slow'] else -1.0)}",
           f"v_add_f32 v213, v{vLs[0]}, v{vLs[1]}", f"v_add_f32 v214, v{vLs[2]}, v{vLs[3]}",
           "v_add_f32 v212, v213, v214",
           f"v_cmp_nge_f32 vcc, s{sT0}, v212", "s_nop 0",
           "s_cmp_lg_u64 vcc, 0", "s_cselect_b32 s42, 1, 0"]
    for i, x in enumerate(chk[:6]): add_fill(fill, 2 + i, x)
    add_fill(fill, 9, chk[6]); add_fill(fill, 9, chk[7])
    weave(k, pv(1), fill)
    k.stamp(5)
    k("s_branch k_attn_epi")

    k.lab("k_slow")
    k("s_waitcnt vmcnt(0) lgkmcnt(0)")
    k("s_mov_b32 s42, 0")
    for i in range(128):
        k(f"v_accvgpr_write_b32 a{i}, 0")
    vM = [192, 193, 194, 195]
    tm, tt, al = [212, 213, 214, 215], [234, 235, 236, 237], [238, 239, 240, 241]
    for qb in range(4):
        k(f"v_mov_b32 v{vM[qb]}, {f32(-3.0e38)}")
        k(f"v_mov_b32 v{vLs[qb]}, 0")
    k(f"s_mov_b32 s{sSOK}, 0")
    k(f"s_mov_b32 s{sSOV}, 0")
    k.lab("k_slow_loop")
    k("s_barrier")
    k(m0k(0)); k("s_nop 0")
    for p in range(4): k(dma_k(p))
    k(m0v(0)); k("s_nop 0")
    for p in range(4): k(dma_v(p))
    k(advk); k(advv)
    k("s_waitcnt vmcnt(0)")
    k("s_barrier")
    k("s_mov_b32 s43, 0")
    k.lab("k_slow_half")
    for f in range(8): k(kread(f, 0, 0))
    for db in range(8):
        for q2 in range(2): k(vread(db, q2, 0, 0))
    k("s_waitcnt lgkmcnt(0)")
    for m in qk(0, "0"): k(m)
    for r in vKrd + vVrd:
        k(f"v_xor_b32 v{r}, 0x2000, v{r}")
    for qb in range(4):
        k(f"v_max3_f32 v{tm[qb]}, v{Sb(0,0,qb)}, v{Sb(0,0,qb)+1}, v{vM[qb]}")
    for a, b in (((0, 2), (0, 3)), ((1, 0), (1, 1)), ((1, 2), (1, 3))):
        for qb in range(4):
            k(f"v_max3_f32 v{tm[qb]}, v{Sb(0,a[0],qb)+a[1]}, v{Sb(0,b[0],qb)+b[1]}, v{tm[qb]}")
    reduce_g(k, "v_max_f32", tm, tt)
    for qb in range(4): k(f"v_sub_f32 v{al[qb]}, v{vM[qb]}, v{tm[qb]}")
    for qb in range(4): k(f"v_exp_f32 v{al[qb]}, v{al[qb]}")
    for qb in range(4): k(f"v_mov_b32 v{vM[qb]}, v{tm[qb]}")
    for qb in range(4): k(f"v_mul_f32 v{vLs[qb]}, v{vLs[qb]}, v{al[qb]}")
    for i in range(32): k(f"v_sub_f32 v{96+i}, v{96+i}, v{tm[(i>>2)&3]}")
    for i in range(32): k(sm_exp(0, i))
    k("s_nop 0")
    for i in range(32):
        for x in sm_add(0, i): k(x)
    for db in range(8):
        for i in range(16): k(f"v_accvgpr_read_b32 v{128+i}, a{O(db,0)+i}")
        for i in range(16): k(f"v_mul_f32 v{128+i}, v{128+i}, v{al[i>>2]}")
        for i in range(16): k(f"v_accvgpr_write_b32 a{O(db,0)+i}, v{128+i}")
    k("s_nop 1")
    for m in pv(0): k(m)
    k("s_nop 7")
    k("s_add_u32 s43, s43, 1")
    k("s_cmp_lt_u32 s43, 2")
    k("s_cbranch_scc1 k_slow_half")
    k(f"s_cmp_lt_u32 s{sSOK}, 524288")
    k("s_cbranch_scc1 k_slow_loop")

    k.lab("k_attn_epi")
    reduce_g(k, "v_add_f32", vLs, [234, 235, 236, 237])
    for qb in range(4): k(f"v_rcp_f32 v{vLs[qb]}, v{vLs[qb]}")
    k(f"s_lshl_b32 s{sT1}, s{sW}, 2")
    k(f"s_add_u32 s{sT1}, s{sT1}, 131072")
    k(f"v_mov_b32 v213, s{sT1}")
    k("v_mov_b32 v214, s42")
    k("ds_write_b32 v213, v214")
    k("s_waitcnt vmcnt(0)")
    for c in range(4):
        T = 96 + (c & 1) * 48
        for b in range(2):
            for i in range(16):
                k(f"v_accvgpr_read_b32 v{T+16*b+i}, a{O(2*c+b,0)+i}")
        for i in range(32):
            k(f"v_mul_f32 v{T+i}, v{T+i}, v{vLs[(i>>2)&3]}")
        for qb in range(4):
            for b in range(2):
                for h2 in range(2):
                    k(f"v_cvt_pk_bf16_f32 v{T+32+4*qb+2*b+h2}, v{T+16*b+4*qb+2*h2}, v{T+16*b+4*qb+2*h2+1}")
        for qb in range(4):
            k(f"buffer_store_dwordx4 {vr(T+32+4*qb,4)}, v{vL16}, s[{SO}:{SO+3}], s{93+qb} offen offset:{c*1024} sc1")
    k("v_mov_b32 v213, 131072")
    k("s_waitcnt lgkmcnt(0)")
    k("s_barrier")
    k("ds_read_b128 v[236:239], v213")
    k("s_waitcnt lgkmcnt(0)")
    k("v_or_b32 v236, v236, v237")
    k("v_or3_b32 v236, v236, v238, v239")
    k("s_nop 0")
    k("v_readfirstlane_b32 s42, v236")
    k("s_nop 3")
    k("s_cmp_lg_u32 s42, 0")
    k("s_cbranch_scc1 k_slow")


def part_b(k):
    sNT, sISS, sKH = 40, 24, 41
    sSOA, sSOW, sCNT, sLAST = 26, 27, 28, 29
    SA, SWT, SG, SXI, SOU, SE, SEP = 8, 12, 16, 36, 44, 52, 56
    sT0, sT1, sC, sNK = 42, 32, 30, 43
    vWrd = list(range(10, 18))
    vD = [18, 19]
    vX = [20, 21, 22, 23]
    vXo = [24, 25]
    X = 224
    XR = lambda st, mb: 32 + st * 16 + mb * 4
    WF = lambda st, nb: 160 + st * 32 + nb * 4
    acc = lambda nb, mb: (mb * 8 + nb) * 4
    LA = CFG["g2la"]

    k("s_load_dwordx2 s[4:5], s[0:1], 32")
    k("s_load_dwordx2 s[6:7], s[0:1], 56")
    k("s_load_dwordx2 s[48:49], s[0:1], 64")
    k("s_load_dwordx2 s[50:51], s[0:1], 0")
    k(f"s_lshr_b32 s{sISS}, s{sHEAD}, 4")
    k(f"s_bfe_u32 s{sKH}, s{sHEAD}, 0x10003")
    k(f"s_and_b32 s{sNT}, s{sHEAD}, 7")
    k(f"s_lshl_b32 s{sT0}, s{sW}, 14")
    k(f"v_lshlrev_b32 v7, 11, v{vg}")
    k(f"v_add_u32 v7, s{sT0}, v7")
    for i in range(2):
        k(f"v_add_u32 v8, {4*i}, v{vg}")
        k(f"v_lshlrev_b32 v8, 1, v8")
        k(f"v_xor_b32 v8, v8, v{v15}")
        k(f"v_lshl_add_u32 v8, v8, 4, v7")
        k(f"v_add_u32 v{vD[i]}, {i*(8192-1024)}, v8")
    k(f"s_mov_b32 s{sSOA}, 0")
    k(f"s_mov_b32 s{sSOW}, 0")
    k(f"s_cmp_eq_u32 s{sISS}, 1")
    k.csel2(sNK, 128, 112)
    k(f"s_cselect_b32 s{sLAST}, 7, 6")
    k.csel2(60, O_OFF, H_OFF)
    k.csel2(61, O_SZ, H_SZ)
    k.csel2(62, 8388608, 7340032)
    k("s_waitcnt lgkmcnt(0)")
    k("s_cselect_b32 s4, s4, s6")
    k("s_cselect_b32 s5, s5, s7")
    k(f"s_mul_i32 s{sT0}, s{sKH}, s{sNK}")
    k(f"s_lshl_b32 s3, s{sT0}, 15")
    k(f"s_lshl_b32 s{sT1}, s{sNT}, 8")
    k(f"s_add_u32 s3, s3, s{sT1}")
    k(f"s_sub_u32 s62, s62, s3")
    k.srd(SWT, 4, soff="s3", nrec="s62")

    xload = lambda st, mb: f"buffer_load_dwordx4 {vr(XR(st,mb),4)}, v{vX[mb]}, s[{SA}:{SA+3}], s{sSOA} offen offset:{(st&3)*1024} sc1"
    dw = lambda i: f"buffer_load_dwordx4 v{vD[i]}, s[{SWT}:{SWT+3}], s{sSOW} offen offset:{i*1024} lds"
    m0w = lambda slot: f"s_add_u32 m0, s{sW2K}, {slot*8192}"
    advw = f"s_add_u32 s{sSOW}, s{sSOW}, {32*2048}"
    adva = f"s_add_u32 s{sSOA}, s{sSOA}, 4096"
    vmem = []
    for st in range(LA):
        vmem += [[m0w(st), "s_nop 0", dw(0)], [dw(1), advw]]
    k2 = K("tmp")
    k2(f"s_mul_i32 s3, s{sM16}, s{sNK}")
    k2(f"s_lshr_b32 s{sT0}, s{sT0}, 1")
    k2(f"s_add_u32 s3, s3, s{sT0}")
    k2(f"s_lshl_b32 s3, s3, 10")
    k2(f"s_sub_u32 s61, s61, s3")
    k2(f"s_add_u32 s3, s3, s60")
    k2.srd(SA, 34, soff="s3", nrec="s61")
    k2(f"s_lshl_b32 s62, s{sKH}, 1")
    for j in range(4):
        k2(f"s_xor_b32 s{sT0}, s62, {j}")
        k2(f"s_mul_i32 s{sT0}, s{sT0}, s{sNK}")
        k2(f"s_lshl_b32 s{sT0}, s{sT0}, 10")
        k2(f"v_add_u32 v{vX[j]}, s{sT0}, v{vL16}")
    k2(f"v_lshlrev_b32 v7, 11, v{v15}")
    k2(f"v_lshl_add_u32 v7, v{vg}, 4, v7")
    k2(f"s_add_u32 s3, s{sM16}, s62")
    k2(f"s_lshl_b32 s3, s3, 15")
    k2(f"s_lshl_b32 s{sT1}, s{sNT}, 8")
    k2(f"s_add_u32 s3, s3, s{sT1}")
    k2(f"v_add_u32 v{vXo[0]}, s3, v7")
    k2(f"v_add_u32 v{vXo[1]}, 32768, v{vXo[0]}")
    k2(f"v_lshl_add_u32 v7, v{vg}, 2, v{vrr}")
    k2(f"v_lshlrev_b32 v7, 8, v7")
    k2(f"v_lshl_add_u32 v7, v{vc}, 3, v7")
    k2(f"v_and_b32 v9, 1, v{vg}")
    k2(f"v_lshl_add_u32 v9, v9, 2, v{vrr}")
    for nb in range(8):
        k2(f"v_xor_b32 v8, {nb}, v9")
        k2(f"v_lshl_add_u32 v{vWrd[nb]}, v8, 5, v7")
    for i in range(128):
        k2(f"v_accvgpr_write_b32 a{i}, 0")
    k2(f"s_lshl_b32 s3, s{sOWN}, 6")
    k2(f"s_lshl_b32 s{sT1}, s{sW}, 14")
    k2(f"s_add_u32 s3, s3, s{sT1}")
    k2.srd(SE, 34, const=E_OFF, soff="s3", nrec=16384)
    k2(f"s_xor_b32 s{sT0}, s3, {8 << 16}")
    k2.srd(SEP, 34, const=E_OFF, soff=f"s{sT0}", nrec=8192)
    k2(f"s_xor_b32 s{sT0}, s3, {16 << 16}")
    k2.srd(SG, 34, const=E_OFF + 8192, soff=f"s{sT0}", nrec=8192)
    k2(f"s_lshl_b32 s{sT1}, s{sISS}, 22")
    k2.srd(SXI, 50, nrec=f"s{sT1}")
    k2.srd(SOU, 48, nrec=2048 * 2048)
    k2(f"s_lshl_b32 s3, s{sQB}, 15")
    k2(f"s_lshl_b32 s{sT1}, s{sKH}, 14")
    k2(f"s_add_u32 s3, s3, s{sT1}")
    k2(f"s_lshl_b32 s{sT1}, s{sISS}, 7")
    k2(f"s_add_u32 s3, s3, s{sT1}")
    k2(f"v_lshlrev_b32 v26, 10, v{v15}")
    k2(f"v_add_u32 v26, s3, v26")
    for x in k2.L: k(x.strip())
    k("s_waitcnt vmcnt(0)")
    raise_flag(k, "k_o_pub", F_O)
    k.stamp(8)
    for grp in vmem:
        for x in grp: k(x)
    k(f"s_mul_i32 s62, s{sISS}, {0xf - 0xffff}")
    k("s_add_u32 s62, s62, 0xffff")
    k(f"s_cmp_eq_u32 s{sW}, 0")
    k("s_cbranch_scc0 k_dep_seen")
    k("s_mov_b32 s3, 0")
    k.lab("k_dep_wait")
    k(f"global_load_dword v27, v26, s[98:99] offset:{F_H*128} sc1")
    k("s_waitcnt vmcnt(0)")
    k(f"v_cmp_ne_u32 vcc, s{sNONCE}, v27")
    k("s_add_u32 s3, s3, 1")
    k("s_and_b32 s63, vcc_lo, s62")
    k("s_cbranch_scc0 k_dep_seen")
    k("s_cmp_gt_u32 s3, 0x40000")
    k("s_cbranch_scc0 k_dep_wait")
    k.lab("k_dep_seen")
    k("s_waitcnt vmcnt(0)")
    k("s_barrier")
    k.stamp(9)
    for st in range(LA):
        for mb in range(4): k(xload(st, mb))
    k(adva)
    k("s_mov_b32 s3, 0x40000000")
    for i in range(4):
        k(f"buffer_load_dword v31, v{vL16}, s[{SA}:{SA+3}], s3 offen")
    k(f"v_lshlrev_b32 v7, 11, v{v15}")
    k(f"v_sub_u32 v7, v{vXo[0]}, v7")
    k(f"v_lshlrev_b32 v8, 4, v{vg}")
    k(f"v_sub_u32 v7, v7, v8")
    k(f"v_lshl_add_u32 v7, v{vg}, 11, v7")
    k(f"s_mov_b32 s96, {16*2048}")
    k(f"s_lshl_b32 s97, s{sW}, 13")
    k(f"s_add_u32 s97, s97, 65536")
    for p in range(4):
        k(f"v_add_u32 v8, {4*p}, v{vg}")
        k(f"v_xor_b32 v8, v8, v{v15}")
        k(f"v_lshl_add_u32 v8, v8, 4, v7")
        k(f"v_add_u32 v{224+p}, {p*(8192-1024)}, v8")
    k(f"s_xor_b32 s3, s{sOWN}, {8 << 10}")
    k(f"v_mov_b32 v28, s3")
    k(f"s_xor_b32 s3, s{sOWN}, {16 << 10}")
    k(f"v_mov_b32 v29, s3")

    def wreads(slot, st):
        return [f"ds_read_b64_tr_b16 {vr(WF(st,nb)+2*q2,2)}, v{vWrd[nb]} offset:{slot*8192+q2*4096}"
                for nb in range(8) for q2 in range(2)]

    def mfmas(u):
        return [MFMA(ar(acc(nb, mb), 4), vr(WF(u & 1, nb), 4), vr(XR(u, mb), 4), ar(acc(nb, mb), 4))
                for mb in range(4) for nb in range(8)]

    for r in wreads(0, 0): k(r)
    k(f"s_mov_b32 s{sCNT}, 0")
    assert LA == 4
    k.lab("k_g2_loop")
    for u in range(8):
        k(f"s_waitcnt vmcnt(16) lgkmcnt(0)")
        if u == 4:
            k(f"s_add_u32 s3, s{sCNT}, 1")
            k("s_lshr_b32 s3, s3, 1")
            k("s_lshl_b32 s3, s3, 2")
            k("s_lshl_b32 s62, 15, s3")
            k(f"v_cmp_ne_u32 vcc, s{sNONCE}, v27")
            k("s_mov_b32 s3, 0")
            k("s_and_b32 s63, vcc_lo, s62")
            k("s_cbranch_scc0 k_grp_ok")
            k.lab("k_grp_wait")
            k(f"global_load_dword v27, v26, s[98:99] offset:{F_H*128} sc1")
            k("s_waitcnt vmcnt(0)")
            k(f"v_cmp_ne_u32 vcc, s{sNONCE}, v27")
            k("s_add_u32 s3, s3, 1")
            k("s_and_b32 s63, vcc_lo, s62")
            k("s_cbranch_scc0 k_grp_ok")
            k("s_cmp_gt_u32 s3, 0x40000")
            k("s_cbranch_scc0 k_grp_wait")
            k.lab("k_grp_ok")
        k("s_barrier")
        fill = {}
        if u == 0:
            add_fill(fill, 29, f"global_load_dword v27, v26, s[98:99] offset:{F_H*128} sc1")
        t = (u + LA) & 7
        vg_ = [11, 16, 21, 26]
        add_fill(fill, 0, m0w(t))
        add_fill(fill, 1, dw(0)); add_fill(fill, 6, dw(1)); add_fill(fill, 7, advw)
        for mb in range(4): add_fill(fill, vg_[mb], xload(t, mb))
        if (t & 3) == 3: add_fill(fill, 31, adva)
        slots = [g for g in range(32) if g not in [1, 6] + vg_]
        for r, g in zip(wreads((u + 1) & 7, (u + 1) & 1), slots): add_fill(fill, g, r)
        weave(k, mfmas(u), fill)
    k(f"s_add_u32 s{sCNT}, s{sCNT}, 1")
    k(f"s_cmp_lt_u32 s{sCNT}, s{sLAST}")
    k("s_cbranch_scc1 k_g2_loop")
    DS = CFG["g2ds"]
    for i in range(1, 4):
        k(f"s_mov_b32 s{92+i}, {4096*i}")
    so4 = lambda i: "0" if i == 0 else f"s{92+i}"
    hm = lambda u, mbs: [MFMA(ar(acc(nb, mb), 4), vr(WF(u & 1, nb), 4), vr(XR(u, mb), 4), ar(acc(nb, mb), 4))
                         for mb in mbs for nb in range(8)]
    q = []
    for st in range(4): q += [("W", st)] * 2 + [("K", st)] * 2 + [("S", st)] * 2
    pend = []
    for st in range(4, 8):
        pend += [([m0w(st)], dw(0), [], ("W", st)), ([], dw(1), [advw], ("W", st)),
                 ([], xload(st, 2), [], ("S", st)), ([], xload(st, 3), [], ("S", st))]
        if st - 4 < DS:
            pend += [([], xload(st, mb), [], ("K", st)) for mb in range(2)]
    pend += [([], xload(st, mb), [], ("K", st)) for st in range(4 + DS, 8) for mb in range(2)]
    for u in range(8):
        full = u < DS
        tags = [("S", u)] + ([("K", u)] if full else []) + ([("W", u + 1)] if u < 7 else [])
        need = [n for n, e in enumerate(q) if e in tags]
        k(f"s_waitcnt vmcnt({len(q) - 1 - max(need)}) lgkmcnt({0 if u <= DS else 8})")
        if u < 7: k("s_barrier")
        fill = {}
        pos = [1, 6, 11, 16, 21, 26] if full else [1, 5, 9, 13]
        for g in pos:
            if not pend: break
            pre, ins, post, tag = pend.pop(0)
            for x in pre: add_fill(fill, g - 1, x)
            add_fill(fill, g, ins)
            for x in post: add_fill(fill, g + 1, x)
            q.append(tag)
        nxt = u + 1 if u < 7 else DS
        rd = wreads(nxt, (u + 1) & 1)
        if full:
            for r, g in zip(rd, [g for g in range(32) if g not in pos]): add_fill(fill, g, r)
            weave(k, mfmas(u), fill)
        else:
            for g, r in enumerate(rd): add_fill(fill, g, r)
            add_fill(fill, 3, "s_waitcnt lgkmcnt(4)")
            if u >= 6:
                add_fill(fill, 0, f"s_add_u32 m0, s97, {(u-6)*4096}")
                for p in range(4):
                    add_fill(fill, 1 + 4 * p, f"buffer_load_dwordx4 v{224+p}, s[{SXI}:{SXI+3}], {'s96' if u == 7 else '0'} offen offset:{p*1024} lds")
            if u == 7:
                add_fill(fill, 15, f"global_load_dword v30, v29, s[98:99] offset:{F_G*128} sc1")
            weave(k, hm(u, (2, 3)), fill)
    assert not pend and DS % 2 == 0
    work = []
    RR = lambda i: XR(4 + (i >> 2), 2) + (i & 3) * 2
    for h in range(2):
        for i in range(16):
            work += [f"v_accvgpr_read_b32 v{RR(i)}, a{64+32*h+2*i}", f"v_accvgpr_read_b32 v{RR(i)+1}, a{65+32*h+2*i}"]
        for i in range(16):
            U = XR(2 * h + (i >> 3), 2) + (i & 7)
            work.append(f"v_cvt_pk_bf16_f32 v{U}, v{RR(i)}, v{RR(i)+1}")
            if (i & 3) == 3:
                if h == 0 and i == 3: work.append("s_waitcnt vmcnt(9)")
                work.append(f"buffer_store_dwordx4 {vr(U-3,4)}, v{vL16}, s[{SE}:{SE+3}], {so4(h)} offen offset:{(i>>2)*1024} sc1")
    for u in range(DS, 8):
        k("s_waitcnt lgkmcnt(8)")
        fill = {}
        if u < 7:
            for g, r in enumerate(wreads(u + 1, (u + 1) & 1)): add_fill(fill, g, r)
        add_fill(fill, 3, f"s_waitcnt lgkmcnt({4 if u < 7 else 0})")
        for g in range(16):
            n = 0
            while work and n < (2 if DS < 4 else 3):
                x = work.pop(0)
                if x.startswith("buffer"): fill[g] = [x] + fill.get(g, []) if n == 0 else fill.get(g, []) + [x]
                else: add_fill(fill, g, x)
                n += 1
        weave(k, hm(u, (0, 1)), fill)
    assert not work
    k.stamp(10)

    T = 32
    k(f"s_mov_b32 s{sC}, {f32(-LOG2E)}")
    k(f"s_mov_b32 s{sC+1}, {f32(-LOG2E)}")
    k(f"v_lshrrev_b32 v7, 1, v{vg}")
    k(f"v_xor_b32 v7, v7, v{v15}")
    k(f"v_lshlrev_b32 v7, 4, v7")
    k(f"v_lshl_add_u32 v7, v{v15}, 8, v7")
    k(f"v_and_b32 v8, 1, v{vg}")
    k(f"v_lshl_add_u32 v7, v8, 3, v7")
    k(f"v_add_u32 v7, s97, v7")
    for nb in range(8):
        k(f"v_xor_b32 v{10+nb}, {nb*32}, v7")
    k("s_waitcnt vmcnt(0)")
    for j in range(2):
        for nb in range(8):
            k(f"ds_read_b64 {vr(X+(j*8+nb)*2,2)}, v{10+nb} offset:{j*4096}")
    raise_flag(k, "k_p_pub", F_P)
    k(f"s_cmp_eq_u32 s{sISS}, 1")
    k("s_cbranch_scc0 k_no_g")
    k(f"v_cmp_ne_u32 vcc, s{sNONCE}, v30")
    k("s_cbranch_vccz k_g_wait_ok")
    spin(k, "k_g_wait", 29, 30, F_G * 128)
    for i in range(8):
        k(f"buffer_load_dwordx4 {vr(96+4*i,4)}, v{vL16}, s[{SG}:{SG+3}], {so4(i>>2)} offen offset:{(i&3)*1024} sc1")
    k.lab("k_no_g")
    k(f"global_load_dword v30, v28, s[98:99] offset:{F_P*128} sc1")
    for i in range(64):
        k(f"v_accvgpr_read_b32 v{T+i}, a{i}")
    k("s_waitcnt lgkmcnt(0)")
    for i in range(32):
        k(f"v_lshlrev_b32 v{160+2*i}, 16, v{X+i}")
        k(f"v_and_b32 v{161+2*i}, 0xffff0000, v{X+i}")
    spin(k, "k_p_wait", 28, 30, F_P * 128, first=False)
    for i in range(8):
        k(f"buffer_load_dwordx4 {vr(128+4*i,4)}, v{vL16}, s[{SEP}:{SEP+3}], {so4(i>>2)} offen offset:{(i&3)*1024} sc1")
    k(f"s_cmp_eq_u32 s{sISS}, 1")
    k("s_cbranch_scc1 k_epi_s")
    for q in range(4):
        k(f"s_waitcnt vmcnt({6-2*q})")
        for i in range(8 * q, 8 * q + 8):
            k(f"v_lshlrev_b32 v8, 16, v{128+i}")
            k(f"v_and_b32 v9, 0xffff0000, v{128+i}")
            k(f"v_pk_add_f32 {vr(T+2*i,2)}, {vr(T+2*i,2)}, v[8:9]")
    for j in range(2):
        silu_n(k, list(range(T + 32 * j, T + 32 * j + 32)), list(range(96, 128)), sC)
        for i in range(16):
            k(f"v_cvt_pk_bf16_f32 v{160+16*j+i}, v{T+32*j+2*i}, v{T+32*j+2*i+1}")
        for c in range(4):
            k(f"buffer_store_dwordx4 {vr(160+16*j+4*c,4)}, v{vL16}, s[{SE}:{SE+3}], {so4(2+j)} offen offset:{c*1024} sc1")
    k("s_waitcnt vmcnt(0)")
    raise_flag(k, "k_g_pub", F_G)
    k.stamp_out(1, 34, sW)
    k("s_endpgm")
    k.lab("k_epi_s")
    for i in range(32):
        k(f"v_lshlrev_b32 v8, 16, v{96+i}")
        k(f"v_and_b32 v9, 0xffff0000, v{96+i}")
        k(f"v_pk_fma_f32 {vr(160+2*i,2)}, {vr(T+2*i,2)}, v[8:9], {vr(160+2*i,2)}")
        k(f"v_pk_mul_f32 {vr(T+2*i,2)}, v[8:9], 1.0 op_sel_hi:[1,0]")
    for j in range(2):
        U = 224 + 16 * j
        for q in range(2):
            k(f"s_waitcnt vmcnt({6-4*j-2*q})")
            for i in range(16 * j + 8 * q, 16 * j + 8 * q + 8):
                k(f"v_lshlrev_b32 v8, 16, v{128+i}")
                k(f"v_and_b32 v9, 0xffff0000, v{128+i}")
                k(f"v_pk_fma_f32 {vr(160+2*i,2)}, v[8:9], {vr(T+2*i,2)}, {vr(160+2*i,2)}")
                k(f"v_cvt_pk_bf16_f32 v{224+i}, v{160+2*i}, v{161+2*i}")
        k("s_nop 1")
        for sw in ("v_permlane32_swap_b32", "v_permlane16_swap_b32"):
            for c in range(4):
                for h2 in range(2):
                    k(f"{sw} v{U+4*c+h2}, v{U+4*c+2+h2}")
            k("s_nop 1")
    for j in range(2):
        for c in range(4):
            k(f"buffer_store_dwordx4 {vr(224+16*j+4*c,4)}, v{vXo[j]}, s[{SOU}:{SOU+3}], 0 offen offset:{c*64} sc1")
    k.stamp_out(1, 34, sW)
    k.lab("k_done")
    k("s_endpgm")
    k.lab("code_end")


HEADER = """; Kernarg layout (88 bytes): A_x@0 A_k_cache@8 A_v_cache@16 A_wq@24 A_wo@32 B_x@40 B_w1@48 B_w2@56 out@64 dbg@72 ws@80
"""


def main(path):
    k = K(NAME + "_kernel")
    part_a(k)
    part_b(k)
    out = [HEADER.rstrip("\n")]
    if CFG["aslist"]:
        out.append(f"; @launch kernel={k.name} grid=(256,1,1) block=(256,1,1) lds=163840")
    else:
        out.append(f"; @launch grid=(256,1,1) block=(256,1,1) lds=163840")
    out.append('.amdgcn_target "amdgcn-amd-amdhsa--gfx950"')
    out.append(".text")
    out.append(k.text())
    out.append('.section .rodata,"a"')
    out.append(k.kd(512, 102, 256))
    open(path, "w").write("\n".join(out) + "\n")


if __name__ == "__main__":
    path = f"cdna_kernels/{NAME}.s"
    for a in sys.argv[1:]:
        if "=" in a:
            kk, v = a.split("=")
            if kk == "o":
                path = v
            else:
                CFG[kk] = int(v)
    main(path)
```

```python
import sys, struct, math

NAME = "recurrent_scan__mha_block_cached__dense_activation_silu__prompt"

XN_OFF = 0
H_OFF = 4 << 20
O_OFF = 20 << 20
E_OFF = 96 << 20
FL_OFF = 60 << 20
EP_OFF = 256 << 10
XN_SZ, H_SZ, O_SZ = 4 << 20, 128 * 112 * 1024, 16 << 20

LOG2E = 1.4426950408889634
QSCALE = (128 ** -0.5) * LOG2E


def f32(x):
    return "0x%08x" % struct.unpack("<I", struct.pack("<f", x))[0]


CFG = dict(slow_only=0, stamps=0, pf=1, force_slow=0, g2la=4, cpf=1, g2ds=0, margin=96, pk=1, aslist=1, nw0=12, accpre=0, lm=1)
ST_OFF = 64 << 20


class K:
    def __init__(self, name):
        self.name = name
        self.L = []

    def __call__(self, s):
        self.L.append("    " + s)

    def lab(self, s):
        self.L.append(s + ":")

    def head(self):
        n = self.name
        return f".globl {n}\n.p2align 8\n.type {n},@function\n{n}:"

    def text(self):
        return self.head() + "\n" + "\n".join(self.L)

    def kd(self, vgpr, sgpr, accum):
        return f""".p2align 6
.amdhsa_kernel {self.name}
  .amdhsa_next_free_vgpr {vgpr}
  .amdhsa_next_free_sgpr {sgpr}
  .amdhsa_accum_offset {accum}
  .amdhsa_group_segment_fixed_size 0
  .amdhsa_kernarg_size 88
  .amdhsa_user_sgpr_count 2
  .amdhsa_user_sgpr_kernarg_segment_ptr 1
  .amdhsa_system_sgpr_workgroup_id_x 1
.end_amdhsa_kernel"""

    def stamp(self, i, real=False, grp=1):
        if CFG["stamps"] and (CFG["stamps"] == grp or i in (0, 1, 6, 7)):
            self(f"{'s_memrealtime' if real else 's_memtime'} s[{64+2*i}:{65+2*i}]")

    def stamp_out(self, kidx, sws, sw):
        if not CFG["stamps"]:
            return
        self("s_waitcnt vmcnt(0)")
        self.stamp(6)
        self.stamp(7, True)
        self("s_waitcnt lgkmcnt(0)")
        self(f"s_lshl_b32 s43, s2, 2")
        self(f"s_add_u32 s43, s43, s{sw}")
        self(f"s_lshl_b32 s43, s43, 6")
        self(f"s_add_u32 s43, s43, {ST_OFF + kidx*65536}")
        self(f"s_add_u32 s40, s{sws}, s43")
        self(f"s_addc_u32 s41, s{sws+1}, 0")
        self("s_getreg_b32 s42, hwreg(HW_REG_XCC_ID)")
        self("s_mov_b32 s86, s42")
        self("v_mov_b32 v186, 0")
        for h in range(3):
            for i in range(4):
                self(f"v_mov_b32 v{188+i}, s{64+2*(4*h+i)}")
            self(f"global_store_dwordx4 v186, v[188:191], s[40:41] offset:{16*h}")
            self("s_nop 1")

    def code_pf_setup(self, sp, start, end, vo, vt, swave):
        lab = f"{self.name}_pc"
        self(f"s_getpc_b64 s[{sp}:{sp+1}]")
        self.lab(lab)
        if start is None:
            start = lab
        else:
            self(f"s_add_u32 s{sp}, s{sp}, {start}-{lab}")
            self(f"s_addc_u32 s{sp+1}, s{sp+1}, 0")
        self(f"s_and_b32 s{sp}, s{sp}, -16")
        self(f"v_and_b32 v{vo}, 0xff, v0")
        self(f"v_lshlrev_b32 v{vo}, 4, v{vo}")
        self(f"s_lshr_b32 s{swave}, s2, 3")
        self(f"s_lshl_b32 s{swave}, s{swave}, 12")
        self(f"v_add_u32 v{vo}, s{swave}, v{vo}")
        self(f"v_min_u32 v{vo}, ({end}-{start}-16)&~15, v{vo}")
        return f"global_load_dwordx4 v[{vt}:{vt+3}], v{vo}, s[{sp}:{sp+1}]"

    def csel2(self, d, a, b):
        self(f"s_mov_b32 s{d}, {b}")
        self(f"s_cselect_b32 s{d}, {a}, s{d}")

    def srd(self, d, p, const=0, soff=None, nrec=0):
        a = self
        if const:
            a(f"s_add_u32 s{d}, s{p}, {const}")
            a(f"s_addc_u32 s{d+1}, s{p+1}, 0")
        else:
            a(f"s_mov_b32 s{d}, s{p}")
            a(f"s_mov_b32 s{d+1}, s{p+1}")
        if soff is not None:
            a(f"s_add_u32 s{d}, s{d}, {soff}")
            a(f"s_addc_u32 s{d+1}, s{d+1}, 0")
        a(f"s_and_b32 s{d+1}, s{d+1}, 0xffff")
        a(f"s_mov_b32 s{d+2}, {nrec}")
        a(f"s_mov_b32 s{d+3}, 0x20000")


def vr(b, n):
    return f"v[{b}:{b+n-1}]"


def ar(b, n):
    return f"a[{b}:{b+n-1}]"


def MFMA(d, a, b, c):
    return f"v_mfma_f32_16x16x32_bf16 {d}, {a}, {b}, {c}"


def weave(k, mfmas, fill):
    for i, m in enumerate(mfmas):
        k(m)
        for s in fill.get(i, []):
            k(s)


def interleave(k, groups, rest, skip):
    per = -(-len(rest) // (len(groups) - skip))
    pos = 0
    for n, grp in enumerate(groups):
        for x in grp: k(x)
        if n >= skip:
            end = min(len(rest), pos + per)
            while end < len(rest) and rest[end].startswith("s_addc"): end += 1
            for x in rest[pos:end]: k(x)
            pos = end
    for x in rest[pos:]: k(x)


def add_fill(fill, i, s):
    fill.setdefault(i, []).append(s)


def lane_fields(k, vl, vrr, vc, vg, v15, sw):
    k(f"v_lshrrev_b32 v{vg}, 6, v0")
    k(f"v_and_b32 v{vl}, 63, v0")
    k(f"v_bfe_u32 v{vrr}, v0, 2, 2")
    k(f"v_readfirstlane_b32 s{sw}, v{vg}")
    k(f"v_and_b32 v{vc}, 3, v0")
    k(f"v_and_b32 v{v15}, 15, v0")
    k(f"v_bfe_u32 v{vg}, v0, 4, 2")


def silu_n(k, regs, temps, sneg):
    P = list(zip(regs, temps))
    if CFG["pk"]:
        for a, t in P[::2]: k(f"v_pk_mul_f32 {vr(t,2)}, {vr(a,2)}, s[{sneg}:{sneg+1}]")
        for a, t in P: k(f"v_exp_f32 v{t}, v{t}")
        for a, t in P[::2]: k(f"v_pk_add_f32 {vr(t,2)}, {vr(t,2)}, 1.0 op_sel_hi:[1,0]")
        for a, t in P: k(f"v_rcp_f32 v{t}, v{t}")
        for a, t in P[::2]: k(f"v_pk_mul_f32 {vr(a,2)}, {vr(a,2)}, {vr(t,2)}")
        return
    for a, t in P: k(f"v_mul_f32 v{t}, s{sneg}, v{a}")
    for a, t in P: k(f"v_exp_f32 v{t}, v{t}")
    for a, t in P: k(f"v_add_f32 v{t}, 1.0, v{t}")
    for a, t in P: k(f"v_rcp_f32 v{t}, v{t}")
    for a, t in P: k(f"v_mul_f32 v{a}, v{a}, v{t}")


def reduce_g(k, op, regs, temps):
    for sw in ("v_permlane16_swap_b32", "v_permlane32_swap_b32"):
        for a, t in zip(regs, temps): k(f"v_mov_b32 v{t}, v{a}")
        k("s_nop 1")
        for a, t in zip(regs, temps): k(f"{sw} v{a}, v{t}")
        k("s_nop 1")
        for a, t in zip(regs, temps): k(f"{op} v{a}, v{a}, v{t}")


LTHRESH = 2.0 ** 60
sW, sHEAD, sQB, sW2K, sW4K, sM16, sNONCE, sOWN = 20, 21, 22, 23, 25, 33, 100, 101
vl, vrr, vc, vg, v15, vL16 = 1, 2, 3, 4, 5, 6
F_LN, F_H, F_O, F_P, F_G = 0, 1, 2, 3, 4


def raise_flag(k, name, slot, extra=()):
    k("s_barrier")
    k(f"s_cmp_eq_u32 s{sW}, 0")
    k(f"s_cbranch_scc0 {name}")
    k(f"v_mov_b32 v7, s{sOWN}")
    k(f"v_mov_b32 v8, s{sNONCE}")
    k("s_mov_b64 exec, 1")
    k(f"global_store_dword v7, v8, s[98:99] offset:{slot*128} sc1")
    k("s_mov_b64 exec, -1")
    k.lab(name)


def spin(k, name, vflag, vdst, off, first=True):
    k("s_mov_b32 s3, 0")
    if first:
        k(f"global_load_dword v{vdst}, v{vflag}, s[98:99] offset:{off} sc1")
    k.lab(name)
    k("s_waitcnt vmcnt(0)")
    k(f"v_cmp_ne_u32 vcc, s{sNONCE}, v{vdst}")
    k("s_add_u32 s3, s3, 1")
    k(f"s_cbranch_vccz {name}_ok")
    k("s_cmp_gt_u32 s3, 0x40000")
    k(f"s_cbranch_scc1 {name}_ok")
    k(f"global_load_dword v{vdst}, v{vflag}, s[98:99] offset:{off} sc1")
    k(f"s_branch {name}")
    k.lab(f"{name}_ok")


def ln_rows(k, nyoung, vst, sxn):
    D, F, A, T = 96, 112, 144, 152
    k(f"s_mov_b32 s32, {f32(1.0/1024)}")
    for i in range(4):
        k(f"s_waitcnt vmcnt({3-i+nyoung})")
        if i == 3: k.stamp(3, grp=2)
        for r in range(4):
            k(f"v_lshlrev_b32 v{F+8*i+2*r}, 16, v{D+4*i+r}")
            k(f"v_and_b32 v{F+1+8*i+2*r}, 0xffff0000, v{D+4*i+r}")

    def reduce32(s, t):
        for p in ("quad_perm:[1,0,3,2]", "quad_perm:[2,3,0,1]", "row_half_mirror", "row_mirror"):
            k("s_nop 1")
            k(f"v_add_f32_dpp v{s}, v{s}, v{s} {p} row_mask:0xf bank_mask:0xf")
        k(f"v_mov_b32 v{t}, v{s}")
        k("s_nop 1")
        k(f"v_permlane16_swap_b32 v{s}, v{t}")
        k("s_nop 1")
        k(f"v_add_f32 v{s}, v{s}, v{t}")

    for i in range(2):
        k(f"v_pk_add_f32 {vr(A+2*i,2)}, {vr(F+2*i,2)}, {vr(F+4+2*i,2)}")
    for j in range(8, 32, 4):
        for i in range(2):
            k(f"v_pk_add_f32 {vr(A+2*i,2)}, {vr(A+2*i,2)}, {vr(F+j+2*i,2)}")
    k(f"v_pk_add_f32 {vr(A,2)}, {vr(A,2)}, {vr(A+2,2)}")
    k(f"v_add_f32 v{A}, v{A}, v{A+1}")
    reduce32(A, A + 1)
    k(f"v_mul_f32 v{A}, s32, v{A}")
    V = A + 2
    for j in range(0, 32, 2):
        t = T + (j & 2)
        k(f"v_pk_add_f32 {vr(t,2)}, {vr(F+j,2)}, {vr(A,2)} op_sel_hi:[1,0] neg_lo:[0,1] neg_hi:[0,1]")
        if j < 4:
            k(f"v_pk_mul_f32 {vr(V+(j&2),2)}, {vr(t,2)}, {vr(t,2)}")
        else:
            k(f"v_pk_fma_f32 {vr(V+(j&2),2)}, {vr(t,2)}, {vr(t,2)}, {vr(V+(j&2),2)}")
    k(f"v_pk_add_f32 {vr(V,2)}, {vr(V,2)}, {vr(V+2,2)}")
    k(f"v_add_f32 v{V}, v{V}, v{V+1}")
    reduce32(V, V + 1)
    k(f"v_mul_f32 v{V}, s32, v{V}")
    k(f"v_cvt_pk_bf16_f32 v{A}, v{A}, v{V}")
    k(f"v_and_b32 v{V}, 0xffff0000, v{A}")
    k(f"v_lshlrev_b32 v{A}, 16, v{A}")
    k(f"v_add_f32 v{V}, {f32(1e-5)}, v{V}")
    k(f"v_cvt_pk_bf16_f32 v{V}, v{V}, v{V}")
    k(f"v_lshlrev_b32 v{V}, 16, v{V}")
    k(f"v_sqrt_f32 v{V}, v{V}")
    k("s_nop 0")
    k(f"v_cvt_pk_bf16_f32 v{V}, v{V}, v{V}")
    k(f"v_lshlrev_b32 v{V}, 16, v{V}")
    k(f"v_rcp_f32 v{V}, v{V}")
    k("s_mov_b32 s32, 4096")
    for j in range(0, 32, 2):
        k(f"v_pk_add_f32 {vr(F+j,2)}, {vr(F+j,2)}, {vr(A,2)} op_sel_hi:[1,0] neg_lo:[0,1] neg_hi:[0,1]")
    for i in range(4):
        for r in range(4):
            a = F + 8 * i + 2 * r
            k(f"v_pk_mul_f32 {vr(a,2)}, {vr(a,2)}, {vr(V,2)} op_sel_hi:[1,0]")
        for r in range(4):
            a = F + 8 * i + 2 * r
            k(f"v_cvt_pk_bf16_f32 v{D+4*i+r}, v{a}, v{a+1}")
        k(f"ds_write_b128 v{vst+3}, {vr(D+4*i,4)} offset:{4096*i}")
    k("s_waitcnt lgkmcnt(0)")
    k("s_barrier")
    for i in range(4):
        k(f"ds_read_b128 {vr(D+4*i,4)}, v{vst+4} offset:{1024*i}")
    for i in range(4):
        k(f"s_waitcnt lgkmcnt({3-i})")
        k(f"buffer_store_dwordx4 {vr(D+4*i,4)}, v{vst}, s[{sxn}:{sxn+3}], {'s32' if i >= 2 else '0'} offen offset:{(i&1)*2048} sc1")


def part_a(k):
    sSOW1, sSOX, sSOWQ, sCNT = 24, 26, 27, 28
    sT0, sT1, sC = 29, 32, 30
    SK, SV, SX, SO, SWQ, SW1, SH = 8, 12, 16, 36, 52, 56, 60
    sSOK, sSOV = 40, 41
    vWq = [10, 11, 12, 13]
    vW1 = list(range(14, 21))
    vDq, vD1 = [21, 22], [23, 24]
    vX = [25, 26, 27, 28]
    XR = lambda st, mb: 32 + st * 16 + mb * 4
    WF = lambda st, nb: 96 + st * 60 + nb * 4
    vKrd = [216, 217, 218, 219]
    vVrd = list(range(220, 228))
    vKdma = [228, 229, 230, 231]
    vVdma = [232, 233]
    acc = lambda nb, mb: (nb * 4 + mb) * 4
    KB, VB, WB = 0, 65536, 98304

    k("s_cmp_ge_u32 s2, 256")
    k("s_cbranch_scc1 k_done")
    k.stamp(0, True); k.stamp(1)
    k("s_load_dwordx2 s[42:43], s[0:1], 0")
    k("s_load_dwordx2 s[34:35], s[0:1], 80")
    k("s_load_dwordx4 s[4:7], s[0:1], 8")
    k("s_load_dwordx4 s[44:47], s[0:1], 24")
    k("s_load_dwordx4 s[48:51], s[0:1], 48")
    lane_fields(k, vl, vrr, vc, vg, v15, sW)
    k("s_and_b32 s3, s2, 7")
    k("s_lshl_b32 s3, s3, 2")
    k(f"s_lshr_b32 s{sT0}, s2, 6")
    k(f"s_add_u32 s{sHEAD}, s3, s{sT0}")
    k(f"s_bfe_u32 s{sQB}, s2, 0x30003")
    k(f"s_lshl_b32 s{sOWN}, s{sQB}, 5")
    k(f"s_add_u32 s{sOWN}, s{sOWN}, s{sHEAD}")
    k(f"s_lshl_b32 s3, s{sOWN}, 3")
    k("v_lshrrev_b32 v7, 5, v0")
    k("v_add_u32 v7, s3, v7")
    k("v_and_b32 v8, 31, v0")
    k("v_lshlrev_b32 v156, 11, v7")
    k("v_lshl_add_u32 v156, v8, 4, v156")
    k(f"s_lshl_b32 s{sOWN}, s{sOWN}, 10")
    k(f"s_lshl_b32 s3, s{sQB}, 7")
    k(f"s_add_u32 s3, s3, {EP_OFF}")
    k("v_mov_b32 v158, s3")
    k("s_waitcnt lgkmcnt(0)")
    k.srd(SV, 42, nrec=2048 * 2048)
    for i in range(4):
        k(f"buffer_load_dwordx4 {vr(96+4*i,4)}, v156, s[{SV}:{SV+3}], 0 offen offset:{512*i}")
    k(f"s_add_u32 s98, s34, {FL_OFF}")
    k(f"s_addc_u32 s99, s35, 0")
    k("global_load_dword v159, v158, s[98:99] sc1")
    k(k.code_pf_setup(42, None, "code_end", 234, 236, sT0))
    k("v_lshrrev_b32 v9, 5, v0")
    k("v_lshlrev_b32 v160, 4, v9")
    k("v_lshl_add_u32 v160, v8, 7, v160")
    k("v_and_b32 v161, 63, v0")
    k("v_lshlrev_b32 v161, 4, v161")
    k("v_lshrrev_b32 v9, 6, v0")
    k("v_lshl_add_u32 v161, v9, 12, v161")
    k(f"s_lshr_b32 s3, s{sOWN}, 11")
    k("s_lshl_b32 s3, s3, 15")
    k(f"s_and_b32 s{sT0}, s{sHEAD}, 1")
    k(f"s_lshl_b32 s{sT0}, s{sT0}, 7")
    k(f"s_add_u32 s3, s3, s{sT0}")
    k("v_lshlrev_b32 v157, 13, v9")
    k("v_add_u32 v157, s3, v157")
    k("v_bfe_u32 v9, v0, 5, 1")
    k("v_lshl_add_u32 v157, v9, 10, v157")
    k("v_bfe_u32 v9, v0, 3, 2")
    k("v_lshl_add_u32 v157, v9, 8, v157")
    k("v_and_b32 v9, 7, v0")
    k("v_lshl_add_u32 v157, v9, 4, v157")
    k.srd(SO, 34, const=XN_OFF, nrec=XN_SZ)
    k(f"s_lshl_b32 s{sW4K}, s{sW}, 12")
    k(f"s_lshl_b32 s{sW2K}, s{sW}, 11")
    k(f"v_lshlrev_b32 v{vL16}, 4, v{vl}")
    k(f"s_lshl_b32 s{sT0}, s{sW}, 3")
    k(f"v_add_u32 v7, s{sT0}, v{vg}")
    k(f"v_lshlrev_b32 v8, 2, v{vg}")
    k(f"v_xor_b32 v8, v8, v{v15}")
    k(f"v_lshlrev_b32 v9, 13, v7")
    k(f"v_lshl_add_u32 v{vDq[0]}, v8, 4, v9")
    k(f"v_add_u32 v{vDq[1]}, {4*8192-1024}, v{vDq[0]}")
    k(f"s_and_b32 s{sT0}, s{sW}, 1")
    k(f"s_lshl_b32 s{sT0}, s{sT0}, 2")
    k(f"v_or_b32 v8, s{sT0}, v{vg}")
    k(f"v_lshlrev_b32 v8, 1, v8")
    k(f"v_xor_b32 v8, v8, v{v15}")
    k(f"v_mul_u32_u24 v9, 7168, v7")
    k(f"v_lshl_add_u32 v9, v8, 4, v9")
    k(f"v_cmp_gt_u32 vcc, 14, v8")
    k(f"v_mov_b32 v8, 0x80000000")
    k("s_nop 0")
    k(f"v_cndmask_b32 v{vD1[0]}, v8, v9, vcc")
    k(f"v_add_u32 v{vD1[1]}, {4*7168-1024}, v{vD1[0]}")
    k(f"s_lshl_b32 s3, s{sHEAD}, 8")
    k(f"s_sub_u32 s{sT1}, {8 << 20}, s3")
    k.srd(SWQ, 44, soff="s3", nrec=f"s{sT1}")
    k(f"s_mul_i32 s3, s{sHEAD}, 224")
    k(f"s_sub_u32 s{sT1}, 7340032, s3")
    k.srd(SW1, 48, soff="s3", nrec=f"s{sT1}")
    k(f"s_mov_b32 s{sSOX}, 0")
    k(f"s_mov_b32 s{sSOWQ}, 0")
    k(f"s_mov_b32 s{sSOW1}, 0")
    PF, sPFS, sPFO, sPFC, sPFX, vPF = SH, 93, 94, 95, 96, 30
    k(f"s_cmp_lt_u32 s{sW}, 2")
    for i in range(3):
        k(f"s_cselect_b32 s{PF+i}, s{SWQ+i}, s{SW1+i}")
    k(f"s_mov_b32 s{PF+3}, 0x20000")
    k.csel2(sT0, 8192, 7168)
    k(f"s_lshl_b32 s{sPFS}, s{sT0}, 5")
    k(f"s_and_b32 s{sT1}, s{sW}, 1")
    k(f"s_lshl_b32 s{sT1}, s{sT1}, 4")
    k(f"v_lshrrev_b32 v7, 2, v{vl}")
    k(f"v_add_u32 v7, s{sT1}, v7")
    k(f"v_mul_lo_u32 v7, v7, s{sT0}")
    k(f"v_lshl_add_u32 v{vPF}, v{vc}, 6, v7")
    k(f"s_mul_i32 s{sPFX}, s{sPFS}, s{sQB}")
    k(f"s_lshl_b32 s{sPFO}, s{sPFS}, 3")
    k(f"s_sub_u32 s{sPFC}, 8, s{sQB}")
    pfl = f"buffer_load_dword v31, v{vPF}, s[{PF}:{PF+3}], s{sPFX} offen"
    pf_pre = [f"s_and_b32 s{sPFX}, s{sPFC}, 7", f"s_cselect_b32 s{sPFX}, 0x40000000, s{sPFO}"]
    pf_post = [f"s_add_u32 s{sPFO}, s{sPFO}, s{sPFS}", f"s_add_u32 s{sPFC}, s{sPFC}, 1"]

    def xload(st, mb, imm):
        return f"buffer_load_dwordx4 {vr(XR(st,mb),4)}, v{vX[mb]}, s[{SX}:{SX+3}], s{sSOX} offen offset:{imm} sc1"

    dq = lambda i: f"buffer_load_dwordx4 v{vDq[i]}, s[{SWQ}:{SWQ+3}], s{sSOWQ} offen offset:{i*1024} lds"
    d1 = lambda i: f"buffer_load_dwordx4 v{vD1[i]}, s[{SW1}:{SW1+3}], s{sSOW1} offen offset:{i*1024} lds"
    m0q = lambda slot: f"s_add_u32 m0, s{sW2K}, {WB+slot*16384}"
    m01 = lambda slot: f"s_add_u32 m0, s{sW2K}, {WB+slot*16384+8192}"
    advw = [f"s_add_u32 s{sSOWQ}, s{sSOWQ}, {32*8192}", f"s_add_u32 s{sSOW1}, s{sSOW1}, {32*7168}"]

    def wdma_grp(slot):
        return [[m0q(slot), "s_nop 0", dq(0)], [dq(1)], [m01(slot), "s_nop 0", d1(0)], [d1(1)] + advw]

    vmem = wdma_grp(0) + wdma_grp(1) + wdma_grp(2) + wdma_grp(3)
    NW0 = CFG["nw0"]
    for grp in vmem[:NW0]:
        for x in grp: k(x)
    vmem = vmem[NW0:] + [[pfl, f"s_mov_b32 s{sPFX}, 0x40000000"]]
    k(f"s_lshl_b32 s3, s{sHEAD}, 19")
    k(f"s_cmp_lt_u32 s{sW}, 2")
    k("s_cselect_b32 s44, s4, s6")
    k("s_cselect_b32 s45, s5, s7")
    k.srd(44, 44, soff="s3", nrec=524288)
    k(f"s_and_b32 s3, s{sW}, 1")
    k(f"s_lshl_b32 s48, s{sQB}, 1")
    k("s_add_u32 s48, s48, s3")
    k("s_lshl_b32 s48, s48, 10")
    k.stamp(2, grp=2)
    ln_rows(k, 2 + NW0, 157, SO)
    k.stamp(4, grp=2)
    k2 = K("tmp")
    k2(f"s_lshl_b32 s3, s{sQB}, 4")
    k2(f"s_lshl_b32 s{sT0}, s{sW}, 2")
    k2(f"s_add_u32 s{sM16}, s3, s{sT0}")
    k2(f"s_lshl_b32 s3, s{sM16}, 15")
    k2.srd(SX, 34, const=XN_OFF, soff="s3", nrec=4 * 32768)
    for mb in range(4):
        k2(f"v_add_u32 v{vX[mb]}, {mb*32768}, v{vL16}")
    k2(f"v_lshl_add_u32 v7, v{vg}, 3, v{vrr}")
    k2(f"v_lshlrev_b32 v7, 8, v7")
    k2(f"v_add_u32 v7, {WB}, v7")
    k2(f"v_lshl_add_u32 v8, v{vc}, 4, v7")
    for js in range(4):
        k2(f"v_xor_b32 v9, {js}, v{vrr}")
        k2(f"v_lshl_add_u32 v{vWq[js]}, v9, 6, v8")
    k2(f"v_lshl_add_u32 v8, v{vc}, 3, v7")
    k2(f"v_add_u32 v8, 8192, v8")
    k2(f"v_and_b32 v29, 1, v{vg}")
    k2(f"v_lshl_add_u32 v29, v29, 2, v{vrr}")
    k2(f"s_and_b32 s97, s{sHEAD}, 1")
    for n7 in range(7):
        if n7 < 6:
            k2(f"s_add_u32 s{sT0}, s97, {n7}")
        else:
            k2(f"s_mul_i32 s{sT0}, s97, -6")
            k2(f"s_add_u32 s{sT0}, s{sT0}, 6")
        k2(f"v_xor_b32 v9, s{sT0}, v29")
        k2(f"v_lshl_add_u32 v{vW1[n7]}, v9, 5, v8")
    k2(f"s_lshl_b32 s3, s{sHEAD}, 19")
    k2.srd(SK, 4, soff="s3", nrec=524288)
    k2.srd(SV, 6, soff="s3", nrec=524288)
    k2(f"v_lshlrev_b32 v7, 8, v{v15}")
    for js in range(4):
        k2(f"v_add_u32 v9, {4*js}, v{vg}")
        k2(f"v_xor_b32 v9, v9, v{v15}")
        k2(f"v_lshl_add_u32 v{vKrd[js]}, v9, 4, v7")
    k2(f"v_lshl_add_u32 v7, v{vg}, 2, v{vrr}")
    k2(f"v_lshlrev_b32 v7, 8, v7")
    k2(f"v_add_u32 v7, {VB}, v7")
    k2(f"v_lshl_add_u32 v7, v{vc}, 3, v7")
    for db in range(8):
        k2(f"v_xor_b32 v9, {db}, v29")
        k2(f"v_lshl_add_u32 v{vVrd[db]}, v9, 5, v7")
    k2(f"v_lshlrev_b32 v7, 8, v{vg}")
    k2(f"v_add_u32 v7, s{sW4K}, v7")
    for p in range(4):
        k2(f"v_add_u32 v9, {4*p}, v{vg}")
        k2(f"v_xor_b32 v9, v9, v{v15}")
        k2(f"v_lshl_add_u32 v{vKdma[p]}, v9, 4, v7")
    for i in range(2):
        k2(f"v_add_u32 v9, {4*i}, v{vg}")
        k2(f"v_lshlrev_b32 v9, 1, v9")
        k2(f"v_xor_b32 v9, v9, v{v15}")
        k2(f"v_lshl_add_u32 v{vVdma[i]}, v9, 4, v7")
    k2(f"s_mov_b32 s{sSOK}, 0")
    k2(f"s_mov_b32 s{sSOV}, 0")
    for i in range(CFG["accpre"]):
        k2(f"v_accvgpr_write_b32 a{i}, 0")
    for x in k2.L: k(x.strip())
    k(f"s_lshl_b32 s3, s{sQB}, 15")
    k(f"v_and_b32 v156, 31, v{vl}")
    k(f"v_lshlrev_b32 v156, 10, v156")
    k(f"v_add_u32 v156, s3, v156")
    k.stamp(5, grp=2)
    k("s_waitcnt vmcnt(0)")
    k(f"v_readfirstlane_b32 s{sNONCE}, v159")
    k("s_nop 3")
    k(f"s_add_u32 s{sNONCE}, s{sNONCE}, 1")
    k(f"s_or_b32 s{sNONCE}, s{sNONCE}, 0x80000000")
    raise_flag(k, "k_ln_pub", F_LN)
    for i in range(CFG["accpre"], 240):
        k(f"v_accvgpr_write_b32 a{i}, 0")
    k.stamp(8, grp=2)
    k(f"s_cmp_eq_u32 s{sW}, 0")
    k("s_cbranch_scc0 k_ln_seen")
    spin(k, "k_ln_wait", 156, 155, F_LN * 128)
    k(f"s_cmp_eq_u32 s{sHEAD}, 0")
    k("s_cbranch_scc0 k_ln_seen")
    k(f"v_mov_b32 v8, s{sNONCE}")
    k("s_mov_b64 exec, 1")
    k("global_store_dword v158, v8, s[98:99] sc1")
    k("s_mov_b64 exec, -1")
    k.lab("k_ln_seen")
    k("s_barrier")
    k.stamp(2); k.stamp(9, grp=2)
    for st in range(3):
        for mb in range(4): k(xload(st, mb, st * 1024))
    for grp in vmem:
        for x in grp: k(x)
    for i in range(max(11 - len(vmem), 5)): k(pfl)

    dma_k = lambda p: f"buffer_load_dwordx4 v{vKdma[p]}, s[{SK}:{SK+3}], s{sSOK} offen offset:{p*1024} lds"
    dma_v = lambda p: f"buffer_load_dwordx4 v{vVdma[p&1]}, s[{SV}:{SV+3}], s{sSOV} offen offset:{p*1024} lds"
    m0k = lambda slot: f"s_add_u32 m0, s{sW4K}, {KB+slot*16384}"
    m0v = lambda slot: f"s_add_u32 m0, s{sW4K}, {VB+slot*16384}"
    advk = f"s_add_u32 s{sSOK}, s{sSOK}, 16384"
    advv = f"s_add_u32 s{sSOV}, s{sSOV}, 16384"

    def wreads(slot, st):
        R = []
        for nb in range(15):
            for q2 in range(2):
                if nb < 8:
                    R.append(f"ds_read_b64_tr_b16 {vr(WF(st,nb)+2*q2,2)}, v{vWq[nb>>1]} offset:{slot*16384+q2*1024+(nb&1)*8}")
                else:
                    R.append(f"ds_read_b64_tr_b16 {vr(WF(st,nb)+2*q2,2)}, v{vW1[nb-8]} offset:{slot*16384+q2*1024}")
        return R

    def p1_mfmas(u):
        return [MFMA(ar(acc(nb, mb), 4), vr(WF(u & 1, nb), 4), vr(XR(u, mb), 4), ar(acc(nb, mb), 4))
                for nb in range(15) for mb in range(4)]

    def p1_stage(u, vmcnt, vm_items, rd=True):
        k(f"s_waitcnt vmcnt({vmcnt}) lgkmcnt(0)")
        k("s_barrier")
        fill = {}
        if rd:
            for i, r in enumerate(wreads((u + 1) & 3, (u + 1) & 1)):
                add_fill(fill, i, r)
        for i, (pre, ins, post) in enumerate(vm_items):
            g = 31 + 3 * i
            for s in pre: add_fill(fill, g - 1, s)
            add_fill(fill, g, ins)
            for s in post: add_fill(fill, g + 1, s)
        weave(k, p1_mfmas(u), fill)

    for r in wreads(0, 0): k(r)
    k(f"s_mov_b32 s{sCNT}, 0")
    if CFG["stamps"] == 2:
        k("s_waitcnt vmcnt(19)")
        k.stamp(10, grp=2)
    k.lab("k_p1_loop")
    for u in range(4):
        imm = 3072 if u == 0 else (u - 1) * 1024
        it = [([m0q(u)], dq(0), []), ([], dq(1), []), ([m01(u)], d1(0), []), ([], d1(1), advw)]
        it += [([], xload((u + 3) & 3, mb, imm), [f"s_add_u32 s{sSOX}, s{sSOX}, 4096"] if (u == 0 and mb == 3) else [])
               for mb in range(4)]
        it.append((pf_pre, pfl, pf_post))
        if u == 1:
            it.append(([f"s_cmp_lt_u32 s{sCNT}, 4", "s_cselect_b32 s49, s48, 0x40000000"],
                       f"buffer_load_dwordx4 v[240:243], v{vL16}, s[44:47], s49 offen", ["s_add_u32 s48, s48, 16384"]))
        p1_stage(u, 19, it)
    k(f"s_add_u32 s{sCNT}, s{sCNT}, 1")
    k(f"s_cmp_lt_u32 s{sCNT}, 7")
    k("s_cbranch_scc1 k_p1_loop")

    def kv_items(kind, slot):
        L = []
        for p in range(4):
            pre = [m0k(slot) if kind == "k" else m0v(slot)] if p == 0 else []
            post = [advk if kind == "k" else advv] if p == 3 else []
            L.append((pre, dma_k(p) if kind == "k" else dma_v(p), post))
        return L

    kv = kv_items("k", 0) + kv_items("k", 1) + kv_items("v", 0) + kv_items("k", 2) + kv_items("v", 1) + kv_items("k", 3)
    p1_stage(0, 19, [([], xload(3, mb, 3072), []) for mb in range(4)] + kv[:5])
    p1_stage(1, 19, kv[5:14])
    p1_stage(2, 19, kv[14:23])
    p1_stage(3, 23, kv[23:], rd=False)
    k.stamp(3); k.stamp(2, grp=4)

    k(f"s_mul_i32 s3, s{sM16}, {112*1024}")
    k.srd(SH, 34, const=H_OFF, soff="s3", nrec=4 * 112 * 1024)
    sHP, sHS = 93, 94
    k(f"s_mul_i32 s{sHP}, s{sHEAD}, 7")
    k(f"s_add_u32 s{sHP}, s{sHP}, s97")
    k(f"s_lshl_b32 s{sHP}, s{sHP}, 9")
    k(f"s_mul_i32 s{sHS}, s97, {-4096+8}")
    k(f"s_add_u32 s{sHS}, s{sHS}, 3072")
    k(f"s_add_u32 s{sHS}, s{sHS}, s{sHP}")
    for mb in range(4):
        k(f"v_add_u32 v{vX[mb]}, {mb*112*1024}, v{vL16}")
    if CFG["pf"]:
        k("s_load_dwordx2 s[46:47], s[0:1], 32")
        k("s_load_dwordx2 s[50:51], s[0:1], 56")
        k(f"s_lshl_b32 s3, s2, 2")
        k(f"s_add_u32 s3, s3, s{sW}")
        k("s_waitcnt lgkmcnt(0)")
        k.srd(SWQ, 46, nrec=8 << 20)
        k.srd(SW1, 50, nrec=7340032)
        k(f"s_lshl_b32 s{sSOWQ}, s3, 13")
        k(f"s_mul_i32 s{sSOW1}, s3, 7168")
    k(f"s_mov_b32 s{sC}, {f32(-LOG2E)}")
    k(f"s_mov_b32 s{sC+1}, {f32(-LOG2E)}")
    for p in range(4):
        n = 32 if p < 3 else 16
        T, U = 96, 160 + (p & 1) * 16
        for i in range(n):
            k(f"v_accvgpr_read_b32 v{T+i}, a{acc(8+2*p,0)+i}")
        silu_n(k, list(range(T, T + n)), list(range(T + 32, T + 32 + n)), sC)
        for mb in range(4):
            for b in range(n // 16):
                for h2 in range(2):
                    k(f"v_cvt_pk_bf16_f32 v{U+4*mb+2*b+h2}, v{T+16*b+4*mb+2*h2}, v{T+16*b+4*mb+2*h2+1}")
        if p == 0:
            k.stamp(3, grp=4)
            k("s_waitcnt vmcnt(0)")
            k.stamp(4, grp=4)
        for mb in range(4):
            if p < 3:
                k(f"buffer_store_dwordx4 {vr(U+4*mb,4)}, v{vX[mb]}, s[{SH}:{SH+3}], s{sHP} offen offset:{p*1024} sc1")
            else:
                k(f"buffer_store_dwordx2 {vr(U+4*mb,2)}, v{vX[mb]}, s[{SH}:{SH+3}], s{sHS} offen sc1")
    k.stamp(5, grp=4)
    Q = lambda qb, js: 32 + (qb * 4 + js) * 4
    k(f"s_mov_b32 s{sC}, {f32(QSCALE)}")
    k(f"s_mov_b32 s{sC+1}, {f32(QSCALE)}")
    for js in range(4):
        T = 96 + (js & 1) * 32
        for b in range(2):
            for i in range(16):
                k(f"v_accvgpr_read_b32 v{T+16*b+i}, a{acc(2*js+b,0)+i}")
        if CFG["pk"]:
            for i in range(0, 32, 2):
                k(f"v_pk_mul_f32 {vr(T+i,2)}, {vr(T+i,2)}, s[{sC}:{sC+1}]")
        else:
            for i in range(32):
                k(f"v_mul_f32 v{T+i}, s{sC}, v{T+i}")
        for qb in range(4):
            for b in range(2):
                for h2 in range(2):
                    k(f"v_cvt_pk_bf16_f32 v{Q(qb,js)+2*b+h2}, v{T+16*b+4*qb+2*h2}, v{T+16*b+4*qb+2*h2+1}")
    k(f"s_lshl_b32 s3, s{sM16}, 7")
    k(f"s_lshl_b32 s{sT0}, s{sHEAD}, 2")
    k(f"s_add_u32 s3, s3, s{sT0}")
    k("s_lshl_b32 s3, s3, 10")
    k(f"s_sub_u32 s{sT1}, {O_SZ}, s3")
    k.srd(SO, 34, const=O_OFF, soff="s3", nrec=f"s{sT1}")
    for qb in range(4):
        k(f"s_mov_b32 s{93+qb}, {qb*128*1024}")

    Sb = lambda buf, kb, qb: 96 + buf * 32 + (kb * 4 + qb) * 4
    Pb = lambda buf, qb: 160 + buf * 16 + qb * 4
    NM = lambda qb: 192 + 4 * qb
    vLs = [208, 209, 210, 211]
    KF = lambda f: 192 + 4 * f
    VF = lambda db: 224 + 4 * db
    O = lambda db, qb: (db * 4 + qb) * 4

    def kread(f, slot, half):
        return f"ds_read_b128 {ar(KF(f),4)}, v{vKrd[f&3]} offset:{slot*16384+half*8192+(f>>2)*4096}"

    def vread(db, q2, slot, half):
        return f"ds_read_b64_tr_b16 {ar(VF(db)+2*q2,2)}, v{vVrd[db]} offset:{slot*16384+half*8192+q2*4096}"

    def qk(buf, first_c=None):
        M = []
        for f in range(8):
            for qb in range(4):
                d = vr(Sb(buf, f >> 2, qb), 4)
                c = d if (f & 3) else (first_c if first_c is not None else vr(NM(qb), 4))
                M.append(MFMA(d, ar(KF(f), 4), vr(Q(qb, f & 3), 4), c))
        return M

    LM = CFG["lm"]
    LA_ = lambda qb: 128 + 4 * qb
    ONES = 144

    def pv(buf, lm=False):
        M = [MFMA(ar(O(db, qb), 4), ar(VF(db), 4), vr(Pb(buf, qb), 4), ar(O(db, qb), 4))
             for db in range(8) for qb in range(4)]
        if lm:
            M += [MFMA(ar(LA_(qb), 4), ar(ONES, 4), vr(Pb(buf, qb), 4), ar(LA_(qb), 4)) for qb in range(4)]
        return M

    def sm_add(buf, i, add=None):
        kb, qb, r = i >> 4, (i >> 2) & 3, i & 3
        s = 96 + buf * 32 + i
        L = [f"v_add_f32 v{vLs[qb]}, v{vLs[qb]}, v{s}"] if (add or not LM) else []
        if i & 1:
            L.append(f"v_cvt_pk_bf16_f32 v{Pb(buf,qb)+2*kb+(r>>1)}, v{s-1}, v{s}")
        return L

    sm_exp = lambda buf, i: f"v_exp_f32 v{96+buf*32+i}, v{96+buf*32+i}"

    k.stamp(8, grp=4)
    k("s_barrier")
    k.stamp(4)
    for f in range(8): k(kread(f, 0, 0))
    for i in range(32):
        k(f"v_accvgpr_write_b32 a{i}, 0")
    for qb in range(4):
        k(f"v_mov_b32 v{vLs[qb]}, 0")
    if LM:
        k("v_mov_b32 v7, 0x3f803f80")
        for i in range(16): k(f"v_accvgpr_write_b32 a{LA_(0)+i}, 0")
        for i in range(4): k(f"v_accvgpr_write_b32 a{ONES+i}, v7")
    k("s_waitcnt lgkmcnt(0)")
    fill = {}
    for f in range(8): add_fill(fill, 4 * f + 3, kread(f, 0, 1))
    for i in range(32, 128): add_fill(fill, (i - 32) // 3, f"v_accvgpr_write_b32 a{i}, 0")
    weave(k, qk(0, "0"), fill)
    k("s_nop 7")
    tm, tt = [212, 213, 214, 215], [234, 235, 236, 237]
    for qb in range(4):
        k(f"v_max3_f32 v{tm[qb]}, v{Sb(0,0,qb)}, v{Sb(0,0,qb)+1}, v{Sb(0,0,qb)+2}")
    for qb in range(4):
        k(f"v_max3_f32 v{tm[qb]}, v{Sb(0,0,qb)+3}, v{Sb(0,1,qb)}, v{tm[qb]}")
    for qb in range(4):
        k(f"v_max3_f32 v{tm[qb]}, v{Sb(0,1,qb)+1}, v{Sb(0,1,qb)+2}, v{tm[qb]}")
    for qb in range(4):
        k(f"v_max_f32 v{tm[qb]}, v{Sb(0,1,qb)+3}, v{tm[qb]}")
    reduce_g(k, "v_max_f32", tm, tt)
    for qb in range(4):
        k(f"v_sub_f32 v{tm[qb]}, {f32(-float(CFG['margin']))}, v{tm[qb]}")
    for qb in range(4):
        for r in range(4):
            k(f"v_mov_b32 v{NM(qb)+r}, v{tm[qb]}")
    for i in range(32):
        k(f"v_add_f32 v{96+i}, v{96+i}, v{tm[(i>>2)&3]}")
    k("s_waitcnt lgkmcnt(0)")
    fill = {}
    for f in range(8): add_fill(fill, 4 * f + 3, kread(f, 1, 0))
    for i in range(32):
        if i >= 1:
            for x in sm_add(0, i - 1): add_fill(fill, i, x)
        add_fill(fill, i, sm_exp(0, i))
    weave(k, qk(1), fill)
    k(f"s_mov_b32 s{sCNT}, 0")
    k.stamp(9, grp=4)
    k("s_waitcnt vmcnt(0)")
    raise_flag(k, "k_h_pub", F_H)
    k.stamp(10, grp=4)
    if CFG["stamps"] == 4: k("s_waitcnt lgkmcnt(0)")

    def half(tt, par):
        vm, ds, va, ex, first, last = {}, {}, {}, {}, {}, {}
        M = qk(par) + pv(par, LM)
        for db in range(8):
            for q2 in range(2):
                add_fill(ds, 2 * db + q2, vread(db, q2, tt, par))
        for f in range(8):
            add_fill(ds, 16 + 2 * f, kread(f, (tt + 1 + par) & 3, 1 - par))
        add_fill(first, 7, "s_waitcnt lgkmcnt(7)")
        if par == 1:
            add_fill(first, 15, f"s_waitcnt vmcnt({9 if (CFG['pf'] and (tt & 1)) else 8}) lgkmcnt(7)")
            add_fill(last, 15, "s_barrier")
            if CFG["pf"] and tt == 0:
                add_fill(vm, 16, f"buffer_load_dwordx4 v[244:247], v{vL16}, s[{SWQ}:{SWQ+3}], s{sSOWQ} offen")
                add_fill(first, 19, f"s_add_u32 s{sSOWQ}, s{sSOWQ}, 1024")
            if CFG["pf"] and tt == 2:
                add_fill(vm, 16, f"buffer_load_dwordx4 v[248:251], v{vL16}, s[{SW1}:{SW1+3}], s{sSOW1} offen")
                add_fill(first, 19, f"s_add_u32 s{sSOW1}, s{sSOW1}, 1024")
            add_fill(first, 16, m0k(tt))
            for p in range(4): add_fill(vm, 17 + 4 * p, dma_k(p))
            add_fill(first, 31, advk)
        else:
            add_fill(first, 15, "s_waitcnt lgkmcnt(7)")
            add_fill(first, 16, m0v((tt + 2) & 3))
            for p in range(4): add_fill(vm, 17 + 4 * p, dma_v(p))
            add_fill(first, 31, advv)
        add_fill(first, 23, "s_waitcnt lgkmcnt(4)")
        add_fill(first, 31, "s_waitcnt lgkmcnt(4)")
        for x in sm_add(par, 31): add_fill(va, 0, x)
        for g in range(32):
            if g >= 1:
                for x in sm_add(1 - par, g - 1): add_fill(va, g, x)
            add_fill(ex, g, sm_exp(1 - par, g))
        fill = {}
        for g in range(32):
            fill[2 * g] = first.get(g, []) + vm.get(g, []) + ds.get(g, []) + va.get(g, [])
            fill[2 * g + 1] = ex.get(g, []) + last.get(g, [])
        weave(k, M, fill)

    k("s_waitcnt lgkmcnt(4)")
    k.lab("k_attn_loop")
    for i in range(8):
        if i == 6:
            k(f"s_cmp_eq_u32 s{sCNT}, 7")
            k("s_cbranch_scc1 k_attn_tail")
        half(i >> 1, i & 1)
    k(f"s_add_u32 s{sCNT}, s{sCNT}, 1")
    k("s_branch k_attn_loop")
    k.lab("k_attn_tail")
    for db in range(8):
        for q2 in range(2): k(vread(db, q2, 3, 0))
    for x in sm_add(0, 31): k(x)
    k("s_waitcnt lgkmcnt(0)")
    fill = {}
    for i in range(32):
        if i >= 1:
            for x in sm_add(1, i - 1): add_fill(fill, i, x)
        add_fill(fill, i, sm_exp(1, i))
        if (i & 3) == 3:
            for q2 in range(2): fill[i] = [vread(i >> 2, q2, 3, 1)] + fill[i]
    weave(k, pv(0, LM), fill)
    k("s_nop 0")
    for x in sm_add(1, 31): k(x)
    k("s_waitcnt lgkmcnt(0)")
    if LM:
        k("s_nop 0")
        for m in pv(1, True)[32:]: k(m)
    fill = {}
    chk = [f"s_mov_b32 s{sT0}, {f32(LTHRESH if not CFG['force_slow'] else -1.0)}",
           f"v_add_f32 v213, v{vLs[0]}, v{vLs[1]}", f"v_add_f32 v214, v{vLs[2]}, v{vLs[3]}",
           "v_add_f32 v212, v213, v214",
           f"v_cmp_nge_f32 vcc, s{sT0}, v212", "s_nop 0",
           "s_cmp_lg_u64 vcc, 0", "s_cselect_b32 s42, 1, 0"]
    if LM:
        for qb in range(4): add_fill(fill, 8 + qb, f"v_accvgpr_read_b32 v{vLs[qb]}, a{LA_(qb)}")
    for i, x in enumerate(chk[:6]): add_fill(fill, 12 + i, x)
    add_fill(fill, 19, chk[6]); add_fill(fill, 19, chk[7])
    weave(k, pv(1), fill)
    k.stamp(5)
    k("s_branch k_attn_epi2" if LM else "s_branch k_attn_epi")

    k.lab("k_slow")
    k("s_waitcnt vmcnt(0) lgkmcnt(0)")
    k("s_mov_b32 s42, 0")
    for i in range(128):
        k(f"v_accvgpr_write_b32 a{i}, 0")
    vM = [192, 193, 194, 195]
    tm, tt, al = [212, 213, 214, 215], [234, 235, 236, 237], [238, 239, 240, 241]
    for qb in range(4):
        k(f"v_mov_b32 v{vM[qb]}, {f32(-3.0e38)}")
        k(f"v_mov_b32 v{vLs[qb]}, 0")
    k(f"s_mov_b32 s{sSOK}, 0")
    k(f"s_mov_b32 s{sSOV}, 0")
    k.lab("k_slow_loop")
    k("s_barrier")
    k(m0k(0)); k("s_nop 0")
    for p in range(4): k(dma_k(p))
    k(m0v(0)); k("s_nop 0")
    for p in range(4): k(dma_v(p))
    k(advk); k(advv)
    k("s_waitcnt vmcnt(0)")
    k("s_barrier")
    k("s_mov_b32 s43, 0")
    k.lab("k_slow_half")
    for f in range(8): k(kread(f, 0, 0))
    for db in range(8):
        for q2 in range(2): k(vread(db, q2, 0, 0))
    k("s_waitcnt lgkmcnt(0)")
    for m in qk(0, "0"): k(m)
    for r in vKrd + vVrd:
        k(f"v_xor_b32 v{r}, 0x2000, v{r}")
    for qb in range(4):
        k(f"v_max3_f32 v{tm[qb]}, v{Sb(0,0,qb)}, v{Sb(0,0,qb)+1}, v{vM[qb]}")
    for a, b in (((0, 2), (0, 3)), ((1, 0), (1, 1)), ((1, 2), (1, 3))):
        for qb in range(4):
            k(f"v_max3_f32 v{tm[qb]}, v{Sb(0,a[0],qb)+a[1]}, v{Sb(0,b[0],qb)+b[1]}, v{tm[qb]}")
    reduce_g(k, "v_max_f32", tm, tt)
    for qb in range(4): k(f"v_sub_f32 v{al[qb]}, v{vM[qb]}, v{tm[qb]}")
    for qb in range(4): k(f"v_exp_f32 v{al[qb]}, v{al[qb]}")
    for qb in range(4): k(f"v_mov_b32 v{vM[qb]}, v{tm[qb]}")
    for qb in range(4): k(f"v_mul_f32 v{vLs[qb]}, v{vLs[qb]}, v{al[qb]}")
    for i in range(32): k(f"v_sub_f32 v{96+i}, v{96+i}, v{tm[(i>>2)&3]}")
    for i in range(32): k(sm_exp(0, i))
    k("s_nop 0")
    for i in range(32):
        for x in sm_add(0, i, True): k(x)
    for db in range(8):
        for i in range(16): k(f"v_accvgpr_read_b32 v{128+i}, a{O(db,0)+i}")
        for i in range(16): k(f"v_mul_f32 v{128+i}, v{128+i}, v{al[i>>2]}")
        for i in range(16): k(f"v_accvgpr_write_b32 a{O(db,0)+i}, v{128+i}")
    k("s_nop 1")
    for m in pv(0): k(m)
    k("s_nop 7")
    k("s_add_u32 s43, s43, 1")
    k("s_cmp_lt_u32 s43, 2")
    k("s_cbranch_scc1 k_slow_half")
    k(f"s_cmp_lt_u32 s{sSOK}, 524288")
    k("s_cbranch_scc1 k_slow_loop")

    k.lab("k_attn_epi")
    reduce_g(k, "v_add_f32", vLs, [234, 235, 236, 237])
    k.lab("k_attn_epi2")
    k("s_nop 7")
    for qb in range(4): k(f"v_rcp_f32 v{vLs[qb]}, v{vLs[qb]}")
    k(f"s_lshl_b32 s{sT1}, s{sW}, 2")
    k(f"s_add_u32 s{sT1}, s{sT1}, 131072")
    k(f"v_mov_b32 v213, s{sT1}")
    k("v_mov_b32 v214, s42")
    k("ds_write_b32 v213, v214")
    k("s_waitcnt vmcnt(0)")
    for c in range(4):
        T = 96 + (c & 1) * 48
        for b in range(2):
            for i in range(16):
                k(f"v_accvgpr_read_b32 v{T+16*b+i}, a{O(2*c+b,0)+i}")
        for i in range(0, 32, 2):
            L = vLs[(i >> 2) & 3]
            k(f"v_pk_mul_f32 {vr(T+i,2)}, {vr(T+i,2)}, {vr(L&~1,2)} op_sel:[0,{L&1}] op_sel_hi:[1,{L&1}]")
        for qb in range(4):
            for b in range(2):
                for h2 in range(2):
                    k(f"v_cvt_pk_bf16_f32 v{T+32+4*qb+2*b+h2}, v{T+16*b+4*qb+2*h2}, v{T+16*b+4*qb+2*h2+1}")
        for qb in range(4):
            k(f"buffer_store_dwordx4 {vr(T+32+4*qb,4)}, v{vL16}, s[{SO}:{SO+3}], s{93+qb} offen offset:{c*1024} sc1")
    k("v_mov_b32 v213, 131072")
    k("s_waitcnt lgkmcnt(0)")
    k("s_barrier")
    k("ds_read_b128 v[236:239], v213")
    k("s_waitcnt lgkmcnt(0)")
    k("v_or_b32 v236, v236, v237")
    k("v_or3_b32 v236, v236, v238, v239")
    k("s_nop 0")
    k("v_readfirstlane_b32 s42, v236")
    k("s_nop 3")
    k("s_cmp_lg_u32 s42, 0")
    k("s_cbranch_scc1 k_slow")


def part_b(k):
    sNT, sISS, sKH = 40, 24, 41
    sSOA, sSOW, sCNT, sLAST = 26, 27, 28, 29
    SA, SWT, SG, SXI, SOU, SE, SEP = 8, 12, 16, 36, 44, 52, 56
    sT0, sT1, sC, sNK = 42, 32, 30, 43
    vWrd = list(range(10, 18))
    vD = [18, 19]
    vX = [20, 21, 22, 23]
    vXo = [24, 25]
    X = 224
    XR = lambda st, mb: 32 + st * 16 + mb * 4
    WF = lambda st, nb: 160 + st * 32 + nb * 4
    acc = lambda nb, mb: (mb * 8 + nb) * 4
    LA = CFG["g2la"]

    k("s_load_dwordx2 s[4:5], s[0:1], 32")
    k("s_load_dwordx2 s[6:7], s[0:1], 56")
    k("s_load_dwordx2 s[48:49], s[0:1], 64")
    k("s_load_dwordx2 s[50:51], s[0:1], 0")
    k(f"s_lshr_b32 s{sISS}, s{sHEAD}, 4")
    k(f"s_bfe_u32 s{sKH}, s{sHEAD}, 0x10003")
    k(f"s_and_b32 s{sNT}, s{sHEAD}, 7")
    k(f"s_lshl_b32 s{sT0}, s{sW}, 14")
    k(f"v_lshlrev_b32 v7, 11, v{vg}")
    k(f"v_add_u32 v7, s{sT0}, v7")
    for i in range(2):
        k(f"v_add_u32 v8, {4*i}, v{vg}")
        k(f"v_lshlrev_b32 v8, 1, v8")
        k(f"v_xor_b32 v8, v8, v{v15}")
        k(f"v_lshl_add_u32 v8, v8, 4, v7")
        k(f"v_add_u32 v{vD[i]}, {i*(8192-1024)}, v8")
    k(f"s_mov_b32 s{sSOA}, 0")
    k(f"s_mov_b32 s{sSOW}, 0")
    k(f"s_cmp_eq_u32 s{sISS}, 1")
    k.csel2(sNK, 128, 112)
    k(f"s_cselect_b32 s{sLAST}, 7, 6")
    k.csel2(60, O_OFF, H_OFF)
    k.csel2(61, O_SZ, H_SZ)
    k.csel2(62, 8388608, 7340032)
    k("s_waitcnt lgkmcnt(0)")
    k("s_cselect_b32 s4, s4, s6")
    k("s_cselect_b32 s5, s5, s7")
    k(f"s_mul_i32 s{sT0}, s{sKH}, s{sNK}")
    k(f"s_lshl_b32 s3, s{sT0}, 15")
    k(f"s_lshl_b32 s{sT1}, s{sNT}, 8")
    k(f"s_add_u32 s3, s3, s{sT1}")
    k(f"s_sub_u32 s62, s62, s3")
    k.srd(SWT, 4, soff="s3", nrec="s62")

    xload = lambda st, mb: f"buffer_load_dwordx4 {vr(XR(st,mb),4)}, v{vX[mb]}, s[{SA}:{SA+3}], s{sSOA} offen offset:{(st&3)*1024} sc1"
    dw = lambda i: f"buffer_load_dwordx4 v{vD[i]}, s[{SWT}:{SWT+3}], s{sSOW} offen offset:{i*1024} lds"
    m0w = lambda slot: f"s_add_u32 m0, s{sW2K}, {slot*8192}"
    advw = f"s_add_u32 s{sSOW}, s{sSOW}, {32*2048}"
    adva = f"s_add_u32 s{sSOA}, s{sSOA}, 4096"
    vmem = []
    for st in range(LA):
        vmem += [[m0w(st), "s_nop 0", dw(0)], [dw(1), advw]]
    k2 = K("tmp")
    k2(f"s_mul_i32 s3, s{sM16}, s{sNK}")
    k2(f"s_lshr_b32 s{sT0}, s{sT0}, 1")
    k2(f"s_add_u32 s3, s3, s{sT0}")
    k2(f"s_lshl_b32 s3, s3, 10")
    k2(f"s_sub_u32 s61, s61, s3")
    k2(f"s_add_u32 s3, s3, s60")
    k2.srd(SA, 34, soff="s3", nrec="s61")
    k2(f"s_lshl_b32 s62, s{sKH}, 1")
    for j in range(4):
        k2(f"s_xor_b32 s{sT0}, s62, {j}")
        k2(f"s_mul_i32 s{sT0}, s{sT0}, s{sNK}")
        k2(f"s_lshl_b32 s{sT0}, s{sT0}, 10")
        k2(f"v_add_u32 v{vX[j]}, s{sT0}, v{vL16}")
    k2(f"v_lshlrev_b32 v7, 11, v{v15}")
    k2(f"v_lshl_add_u32 v7, v{vg}, 4, v7")
    k2(f"s_add_u32 s3, s{sM16}, s62")
    k2(f"s_lshl_b32 s3, s3, 15")
    k2(f"s_lshl_b32 s{sT1}, s{sNT}, 8")
    k2(f"s_add_u32 s3, s3, s{sT1}")
    k2(f"v_add_u32 v{vXo[0]}, s3, v7")
    k2(f"v_add_u32 v{vXo[1]}, 32768, v{vXo[0]}")
    k2(f"v_lshl_add_u32 v7, v{vg}, 2, v{vrr}")
    k2(f"v_lshlrev_b32 v7, 8, v7")
    k2(f"v_lshl_add_u32 v7, v{vc}, 3, v7")
    k2(f"v_and_b32 v9, 1, v{vg}")
    k2(f"v_lshl_add_u32 v9, v9, 2, v{vrr}")
    for nb in range(8):
        k2(f"v_xor_b32 v8, {nb}, v9")
        k2(f"v_lshl_add_u32 v{vWrd[nb]}, v8, 5, v7")
    for i in range(128):
        k2(f"v_accvgpr_write_b32 a{i}, 0")
    k2(f"s_lshl_b32 s3, s{sOWN}, 6")
    k2(f"s_lshl_b32 s{sT1}, s{sW}, 14")
    k2(f"s_add_u32 s3, s3, s{sT1}")
    k2.srd(SE, 34, const=E_OFF, soff="s3", nrec=16384)
    k2(f"s_xor_b32 s{sT0}, s3, {8 << 16}")
    k2.srd(SEP, 34, const=E_OFF, soff=f"s{sT0}", nrec=8192)
    k2(f"s_xor_b32 s{sT0}, s3, {16 << 16}")
    k2.srd(SG, 34, const=E_OFF + 8192, soff=f"s{sT0}", nrec=8192)
    k2(f"s_lshl_b32 s{sT1}, s{sISS}, 22")
    k2.srd(SXI, 50, nrec=f"s{sT1}")
    k2.srd(SOU, 48, nrec=2048 * 2048)
    k2(f"s_lshl_b32 s3, s{sQB}, 15")
    k2(f"s_lshl_b32 s{sT1}, s{sKH}, 14")
    k2(f"s_add_u32 s3, s3, s{sT1}")
    k2(f"s_lshl_b32 s{sT1}, s{sISS}, 7")
    k2(f"s_add_u32 s3, s3, s{sT1}")
    k2(f"v_lshlrev_b32 v26, 10, v{v15}")
    k2(f"v_add_u32 v26, s3, v26")
    for x in k2.L: k(x.strip())
    k("s_waitcnt vmcnt(0)")
    raise_flag(k, "k_o_pub", F_O)
    k.stamp(8)
    for grp in vmem:
        for x in grp: k(x)
    k(f"s_mul_i32 s62, s{sISS}, {0xf - 0xffff}")
    k("s_add_u32 s62, s62, 0xffff")
    k(f"s_cmp_eq_u32 s{sW}, 0")
    k("s_cbranch_scc0 k_dep_seen")
    k("s_mov_b32 s3, 0")
    k.lab("k_dep_wait")
    k(f"global_load_dword v27, v26, s[98:99] offset:{F_H*128} sc1")
    k("s_waitcnt vmcnt(0)")
    k(f"v_cmp_ne_u32 vcc, s{sNONCE}, v27")
    k("s_add_u32 s3, s3, 1")
    k("s_and_b32 s63, vcc_lo, s62")
    k("s_cbranch_scc0 k_dep_seen")
    k("s_cmp_gt_u32 s3, 0x40000")
    k("s_cbranch_scc0 k_dep_wait")
    k.lab("k_dep_seen")
    k("s_waitcnt vmcnt(0)")
    k("s_barrier")
    k.stamp(9)
    NV = 4 + 6 * (LA - 2)
    k(f"global_load_dword v27, v26, s[98:99] offset:{F_H*128} sc1")
    for st in range(LA):
        for mb in range(4): k(xload(st, mb))
        if (st & 3) == 3: k(adva)
    k("s_mov_b32 s3, 0x40000000")
    for i in range(NV - 4 * (LA - 1)):
        k(f"buffer_load_dword v31, v{vL16}, s[{SA}:{SA+3}], s3 offen")
    k(f"v_lshlrev_b32 v7, 11, v{v15}")
    k(f"v_sub_u32 v7, v{vXo[0]}, v7")
    k(f"v_lshlrev_b32 v8, 4, v{vg}")
    k(f"v_sub_u32 v7, v7, v8")
    k(f"v_lshl_add_u32 v7, v{vg}, 11, v7")
    k(f"s_mov_b32 s96, {16*2048}")
    k(f"s_lshl_b32 s97, s{sW}, 13")
    k(f"s_add_u32 s97, s97, 65536")
    for p in range(4):
        k(f"v_add_u32 v8, {4*p}, v{vg}")
        k(f"v_xor_b32 v8, v8, v{v15}")
        k(f"v_lshl_add_u32 v8, v8, 4, v7")
        k(f"v_add_u32 v{224+p}, {p*(8192-1024)}, v8")
    k(f"s_xor_b32 s3, s{sOWN}, {8 << 10}")
    k(f"v_mov_b32 v28, s3")
    k(f"s_xor_b32 s3, s{sOWN}, {16 << 10}")
    k(f"v_mov_b32 v29, s3")

    def wreads(slot, st):
        return [f"ds_read_b64_tr_b16 {vr(WF(st,nb)+2*q2,2)}, v{vWrd[nb]} offset:{slot*8192+q2*4096}"
                for nb in range(8) for q2 in range(2)]

    def mfmas(u):
        return [MFMA(ar(acc(nb, mb), 4), vr(WF(u & 1, nb), 4), vr(XR(u, mb), 4), ar(acc(nb, mb), 4))
                for mb in range(4) for nb in range(8)]

    for r in wreads(0, 0): k(r)
    k(f"s_mov_b32 s{sCNT}, 0")
    k.lab("k_g2_loop")
    for u in range(8):
        k(f"s_waitcnt vmcnt({NV}) lgkmcnt(0)")
        if u == 8 - LA:
            k(f"s_add_u32 s3, s{sCNT}, 1")
            k("s_lshr_b32 s3, s3, 1")
            k("s_lshl_b32 s3, s3, 2")
            k("s_lshl_b32 s62, 15, s3")
            k(f"v_cmp_ne_u32 vcc, s{sNONCE}, v27")
            k("s_mov_b32 s3, 0")
            k("s_and_b32 s63, vcc_lo, s62")
            k("s_cbranch_scc0 k_grp_ok")
            k.lab("k_grp_wait")
            k(f"global_load_dword v27, v26, s[98:99] offset:{F_H*128} sc1")
            k("s_waitcnt vmcnt(0)")
            k(f"v_cmp_ne_u32 vcc, s{sNONCE}, v27")
            k("s_add_u32 s3, s3, 1")
            k("s_and_b32 s63, vcc_lo, s62")
            k("s_cbranch_scc0 k_grp_ok")
            k("s_cmp_gt_u32 s3, 0x40000")
            k("s_cbranch_scc0 k_grp_wait")
            k.lab("k_grp_ok")
        k("s_barrier")
        fill = {}
        if u == (8 - 2 * LA) % 8:
            add_fill(fill, 29, f"global_load_dword v27, v26, s[98:99] offset:{F_H*128} sc1")
        t = (u + LA) & 7
        vg_ = [11, 16, 21, 26]
        add_fill(fill, 0, m0w(t))
        add_fill(fill, 1, dw(0)); add_fill(fill, 6, dw(1)); add_fill(fill, 7, advw)
        for mb in range(4): add_fill(fill, vg_[mb], xload(t, mb))
        if (t & 3) == 3: add_fill(fill, 31, adva)
        slots = [g for g in range(32) if g not in [1, 6] + vg_]
        for r, g in zip(wreads((u + 1) & 7, (u + 1) & 1), slots): add_fill(fill, g, r)
        weave(k, mfmas(u), fill)
    k(f"s_add_u32 s{sCNT}, s{sCNT}, 1")
    k(f"s_cmp_lt_u32 s{sCNT}, s{sLAST}")
    k("s_cbranch_scc1 k_g2_loop")
    DS = CFG["g2ds"]
    for i in range(1, 4):
        k(f"s_mov_b32 s{92+i}, {4096*i}")
    so4 = lambda i: "0" if i == 0 else f"s{92+i}"
    hm = lambda u, mbs: [MFMA(ar(acc(nb, mb), 4), vr(WF(u & 1, nb), 4), vr(XR(u, mb), 4), ar(acc(nb, mb), 4))
                         for mb in mbs for nb in range(8)]
    q = []
    for st in range(LA): q += [("W", st)] * 2 + [("K", st)] * 2 + [("S", st)] * 2
    pend = []
    for st in range(LA, 8):
        pend += [([m0w(st)], dw(0), [], ("W", st)), ([], dw(1), [advw], ("W", st)),
                 ([], xload(st, 2), [], ("S", st)), ([], xload(st, 3), [], ("S", st))]
        if st - LA < DS:
            pend += [([], xload(st, mb), [], ("K", st)) for mb in range(2)]
    pend += [([], xload(st, mb), [], ("K", st)) for st in range(LA + DS, 8) for mb in range(2)]
    for u in range(8):
        full = u < DS
        tags = [("S", u)] + ([("K", u)] if full else []) + ([("W", u + 1)] if u < 7 else [])
        need = [n for n, e in enumerate(q) if e in tags]
        k(f"s_waitcnt vmcnt({len(q) - 1 - max(need)}) lgkmcnt({0 if u <= DS else 8})")
        if u < 7: k("s_barrier")
        fill = {}
        pos = [1, 6, 11, 16, 21, 26] if full else [1, 5, 9, 13]
        for g in pos:
            if not pend: break
            pre, ins, post, tag = pend.pop(0)
            for x in pre: add_fill(fill, g - 1, x)
            add_fill(fill, g, ins)
            for x in post: add_fill(fill, g + 1, x)
            q.append(tag)
        nxt = u + 1 if u < 7 else DS
        rd = wreads(nxt, (u + 1) & 1)
        if full:
            for r, g in zip(rd, [g for g in range(32) if g not in pos]): add_fill(fill, g, r)
            weave(k, mfmas(u), fill)
        else:
            for g, r in enumerate(rd): add_fill(fill, g, r)
            add_fill(fill, 3, "s_waitcnt lgkmcnt(4)")
            if u >= 6:
                add_fill(fill, 0, f"s_add_u32 m0, s97, {(u-6)*4096}")
                for p in range(4):
                    add_fill(fill, 1 + 4 * p, f"buffer_load_dwordx4 v{224+p}, s[{SXI}:{SXI+3}], {'s96' if u == 7 else '0'} offen offset:{p*1024} lds")
            if u == 7:
                add_fill(fill, 15, f"global_load_dword v30, v29, s[98:99] offset:{F_G*128} sc1")
            weave(k, hm(u, (2, 3)), fill)
    assert not pend and DS % 2 == 0
    work = []
    RR = lambda i: XR(4 + (i >> 2), 2) + (i & 3) * 2
    for h in range(2):
        for i in range(16):
            work += [f"v_accvgpr_read_b32 v{RR(i)}, a{64+32*h+2*i}", f"v_accvgpr_read_b32 v{RR(i)+1}, a{65+32*h+2*i}"]
        for i in range(16):
            U = XR(2 * h + (i >> 3), 2) + (i & 7)
            work.append(f"v_cvt_pk_bf16_f32 v{U}, v{RR(i)}, v{RR(i)+1}")
            if (i & 3) == 3:
                if h == 0 and i == 3: work.append("s_waitcnt vmcnt(9)")
                work.append(f"buffer_store_dwordx4 {vr(U-3,4)}, v{vL16}, s[{SE}:{SE+3}], {so4(h)} offen offset:{(i>>2)*1024} sc1")
    for u in range(DS, 8):
        k("s_waitcnt lgkmcnt(8)")
        fill = {}
        if u < 7:
            for g, r in enumerate(wreads(u + 1, (u + 1) & 1)): add_fill(fill, g, r)
        add_fill(fill, 3, f"s_waitcnt lgkmcnt({4 if u < 7 else 0})")
        for g in range(16):
            n = 0
            while work and n < (2 if DS < 4 else 3):
                x = work.pop(0)
                if x.startswith("buffer"): fill[g] = [x] + fill.get(g, []) if n == 0 else fill.get(g, []) + [x]
                else: add_fill(fill, g, x)
                n += 1
        weave(k, hm(u, (0, 1)), fill)
    assert not work
    k.stamp(10)

    T = 32
    k(f"s_mov_b32 s{sC}, {f32(-LOG2E)}")
    k(f"s_mov_b32 s{sC+1}, {f32(-LOG2E)}")
    k(f"v_lshrrev_b32 v7, 1, v{vg}")
    k(f"v_xor_b32 v7, v7, v{v15}")
    k(f"v_lshlrev_b32 v7, 4, v7")
    k(f"v_lshl_add_u32 v7, v{v15}, 8, v7")
    k(f"v_and_b32 v8, 1, v{vg}")
    k(f"v_lshl_add_u32 v7, v8, 3, v7")
    k(f"v_add_u32 v7, s97, v7")
    for nb in range(8):
        k(f"v_xor_b32 v{10+nb}, {nb*32}, v7")
    k("s_waitcnt vmcnt(0)")
    for j in range(2):
        for nb in range(8):
            k(f"ds_read_b64 {vr(X+(j*8+nb)*2,2)}, v{10+nb} offset:{j*4096}")
    raise_flag(k, "k_p_pub", F_P)
    k(f"s_cmp_eq_u32 s{sISS}, 1")
    k("s_cbranch_scc0 k_no_g")
    k(f"v_cmp_ne_u32 vcc, s{sNONCE}, v30")
    k("s_cbranch_vccz k_g_wait_ok")
    spin(k, "k_g_wait", 29, 30, F_G * 128)
    for i in range(8):
        k(f"buffer_load_dwordx4 {vr(96+4*i,4)}, v{vL16}, s[{SG}:{SG+3}], {so4(i>>2)} offen offset:{(i&3)*1024} sc1")
    k.lab("k_no_g")
    k(f"global_load_dword v30, v28, s[98:99] offset:{F_P*128} sc1")
    for i in range(64):
        k(f"v_accvgpr_read_b32 v{T+i}, a{i}")
    k("s_waitcnt lgkmcnt(0)")
    for i in range(32):
        k(f"v_lshlrev_b32 v{160+2*i}, 16, v{X+i}")
        k(f"v_and_b32 v{161+2*i}, 0xffff0000, v{X+i}")
    spin(k, "k_p_wait", 28, 30, F_P * 128, first=False)
    for i in range(8):
        k(f"buffer_load_dwordx4 {vr(128+4*i,4)}, v{vL16}, s[{SEP}:{SEP+3}], {so4(i>>2)} offen offset:{(i&3)*1024} sc1")
    k(f"s_cmp_eq_u32 s{sISS}, 1")
    k("s_cbranch_scc1 k_epi_s")
    for q in range(4):
        k(f"s_waitcnt vmcnt({6-2*q})")
        for i in range(8 * q, 8 * q + 8):
            k(f"v_lshlrev_b32 v8, 16, v{128+i}")
            k(f"v_and_b32 v9, 0xffff0000, v{128+i}")
            k(f"v_pk_add_f32 {vr(T+2*i,2)}, {vr(T+2*i,2)}, v[8:9]")
    for j in range(2):
        silu_n(k, list(range(T + 32 * j, T + 32 * j + 32)), list(range(96, 128)), sC)
        for i in range(16):
            k(f"v_cvt_pk_bf16_f32 v{160+16*j+i}, v{T+32*j+2*i}, v{T+32*j+2*i+1}")
        for c in range(4):
            k(f"buffer_store_dwordx4 {vr(160+16*j+4*c,4)}, v{vL16}, s[{SE}:{SE+3}], {so4(2+j)} offen offset:{c*1024} sc1")
    k("s_waitcnt vmcnt(0)")
    raise_flag(k, "k_g_pub", F_G)
    k.stamp_out(1, 34, sW)
    k("s_endpgm")
    k.lab("k_epi_s")
    for i in range(32):
        k(f"v_lshlrev_b32 v8, 16, v{96+i}")
        k(f"v_and_b32 v9, 0xffff0000, v{96+i}")
        k(f"v_pk_fma_f32 {vr(160+2*i,2)}, {vr(T+2*i,2)}, v[8:9], {vr(160+2*i,2)}")
        k(f"v_pk_mul_f32 {vr(T+2*i,2)}, v[8:9], 1.0 op_sel_hi:[1,0]")
    for j in range(2):
        U = 224 + 16 * j
        for q in range(2):
            k(f"s_waitcnt vmcnt({6-4*j-2*q})")
            for i in range(16 * j + 8 * q, 16 * j + 8 * q + 8):
                k(f"v_lshlrev_b32 v8, 16, v{128+i}")
                k(f"v_and_b32 v9, 0xffff0000, v{128+i}")
                k(f"v_pk_fma_f32 {vr(160+2*i,2)}, v[8:9], {vr(T+2*i,2)}, {vr(160+2*i,2)}")
                k(f"v_cvt_pk_bf16_f32 v{224+i}, v{160+2*i}, v{161+2*i}")
        k("s_nop 1")
        for sw in ("v_permlane32_swap_b32", "v_permlane16_swap_b32"):
            for c in range(4):
                for h2 in range(2):
                    k(f"{sw} v{U+4*c+h2}, v{U+4*c+2+h2}")
            k("s_nop 1")
    for j in range(2):
        for c in range(4):
            k(f"buffer_store_dwordx4 {vr(224+16*j+4*c,4)}, v{vXo[j]}, s[{SOU}:{SOU+3}], 0 offen offset:{c*64} sc1")
    k.stamp_out(1, 34, sW)
    k.lab("k_done")
    k("s_endpgm")
    k.lab("code_end")


HEADER = """; Kernarg layout (88 bytes): A_x@0 A_k_cache@8 A_v_cache@16 A_wq@24 A_wo@32 B_x@40 B_w1@48 B_w2@56 out@64 dbg@72 ws@80
"""


def main(path):
    k = K(NAME + "_kernel")
    part_a(k)
    part_b(k)
    out = [HEADER.rstrip("\n")]
    if CFG["aslist"]:
        out.append(f"; @launch kernel={k.name} grid=(256,1,1) block=(256,1,1) lds=163840")
    else:
        out.append(f"; @launch grid=(256,1,1) block=(256,1,1) lds=163840")
    out.append('.amdgcn_target "amdgcn-amd-amdhsa--gfx950"')
    out.append(".text")
    out.append(k.text())
    out.append('.section .rodata,"a"')
    out.append(k.kd(512, 102, 256))
    open(path, "w").write("\n".join(out) + "\n")


if __name__ == "__main__":
    path = f"cdna_kernels/{NAME}.s"
    for a in sys.argv[1:]:
        if "=" in a:
            kk, v = a.split("=")
            if kk == "o":
                path = v
            else:
                CFG[kk] = int(v)
    main(path)
```

```python
import sys, struct, math

NAME = "recurrent_scan__mha_block_cached__dense_activation_silu__prompt"

XN_OFF = 0
H_OFF = 4 << 20
O_OFF = 20 << 20
E_OFF = 96 << 20
FL_OFF = 60 << 20
EP_OFF = 256 << 10
XN_SZ, H_SZ, O_SZ = 4 << 20, 128 * 112 * 1024, 16 << 20

LOG2E = 1.4426950408889634
QSCALE = (128 ** -0.5) * LOG2E


def f32(x):
    return "0x%08x" % struct.unpack("<I", struct.pack("<f", x))[0]


CFG = dict(slow_only=0, stamps=0, pf=1, force_slow=0, g2la=4, cpf=1, g2ds=0, margin=96, pk=1, aslist=1, nw0=12, accpre=0, lm=4, pmap=0, rmap=0)
ST_OFF = 64 << 20


class K:
    def __init__(self, name):
        self.name = name
        self.L = []

    def __call__(self, s):
        self.L.append("    " + s)

    def lab(self, s):
        self.L.append(s + ":")

    def head(self):
        n = self.name
        return f".globl {n}\n.p2align 8\n.type {n},@function\n{n}:"

    def text(self):
        return self.head() + "\n" + "\n".join(self.L)

    def kd(self, vgpr, sgpr, accum):
        return f""".p2align 6
.amdhsa_kernel {self.name}
  .amdhsa_next_free_vgpr {vgpr}
  .amdhsa_next_free_sgpr {sgpr}
  .amdhsa_accum_offset {accum}
  .amdhsa_group_segment_fixed_size 0
  .amdhsa_kernarg_size 88
  .amdhsa_user_sgpr_count 2
  .amdhsa_user_sgpr_kernarg_segment_ptr 1
  .amdhsa_system_sgpr_workgroup_id_x 1
.end_amdhsa_kernel"""

    def stamp(self, i, real=False, grp=1):
        if CFG["stamps"] and (CFG["stamps"] == grp or i in (0, 1, 6, 7)):
            self(f"{'s_memrealtime' if real else 's_memtime'} s[{64+2*i}:{65+2*i}]")

    def stamp_out(self, kidx, sws, sw):
        if not CFG["stamps"]:
            return
        self("s_waitcnt vmcnt(0)")
        self.stamp(6)
        self.stamp(7, True)
        self("s_waitcnt lgkmcnt(0)")
        self(f"s_lshl_b32 s43, s2, 2")
        self(f"s_add_u32 s43, s43, s{sw}")
        self(f"s_lshl_b32 s43, s43, 6")
        self(f"s_add_u32 s43, s43, {ST_OFF + kidx*65536}")
        self(f"s_add_u32 s40, s{sws}, s43")
        self(f"s_addc_u32 s41, s{sws+1}, 0")
        self("s_getreg_b32 s42, hwreg(HW_REG_XCC_ID)")
        self("s_mov_b32 s86, s42")
        self("v_mov_b32 v186, 0")
        for h in range(3):
            for i in range(4):
                self(f"v_mov_b32 v{188+i}, s{64+2*(4*h+i)}")
            self(f"global_store_dwordx4 v186, v[188:191], s[40:41] offset:{16*h}")
            self("s_nop 1")

    def code_pf_setup(self, sp, start, end, vo, vt, swave):
        lab = f"{self.name}_pc"
        self(f"s_getpc_b64 s[{sp}:{sp+1}]")
        self.lab(lab)
        if start is None:
            start = lab
        else:
            self(f"s_add_u32 s{sp}, s{sp}, {start}-{lab}")
            self(f"s_addc_u32 s{sp+1}, s{sp+1}, 0")
        self(f"s_and_b32 s{sp}, s{sp}, -16")
        self(f"v_and_b32 v{vo}, 0xff, v0")
        self(f"v_lshlrev_b32 v{vo}, 4, v{vo}")
        self(f"s_lshr_b32 s{swave}, s2, 3")
        self(f"s_lshl_b32 s{swave}, s{swave}, 12")
        self(f"v_add_u32 v{vo}, s{swave}, v{vo}")
        self(f"v_min_u32 v{vo}, ({end}-{start}-16)&~15, v{vo}")
        return f"global_load_dwordx4 v[{vt}:{vt+3}], v{vo}, s[{sp}:{sp+1}]"

    def csel2(self, d, a, b):
        self(f"s_mov_b32 s{d}, {b}")
        self(f"s_cselect_b32 s{d}, {a}, s{d}")

    def srd(self, d, p, const=0, soff=None, nrec=0):
        a = self
        if const:
            a(f"s_add_u32 s{d}, s{p}, {const}")
            a(f"s_addc_u32 s{d+1}, s{p+1}, 0")
        else:
            a(f"s_mov_b32 s{d}, s{p}")
            a(f"s_mov_b32 s{d+1}, s{p+1}")
        if soff is not None:
            a(f"s_add_u32 s{d}, s{d}, {soff}")
            a(f"s_addc_u32 s{d+1}, s{d+1}, 0")
        a(f"s_and_b32 s{d+1}, s{d+1}, 0xffff")
        a(f"s_mov_b32 s{d+2}, {nrec}")
        a(f"s_mov_b32 s{d+3}, 0x20000")


def vr(b, n):
    return f"v[{b}:{b+n-1}]"


def ar(b, n):
    return f"a[{b}:{b+n-1}]"


def MFMA(d, a, b, c):
    return f"v_mfma_f32_16x16x32_bf16 {d}, {a}, {b}, {c}"


def weave(k, mfmas, fill):
    for i, m in enumerate(mfmas):
        k(m)
        for s in fill.get(i, []):
            k(s)


def interleave(k, groups, rest, skip):
    per = -(-len(rest) // (len(groups) - skip))
    pos = 0
    for n, grp in enumerate(groups):
        for x in grp: k(x)
        if n >= skip:
            end = min(len(rest), pos + per)
            while end < len(rest) and rest[end].startswith("s_addc"): end += 1
            for x in rest[pos:end]: k(x)
            pos = end
    for x in rest[pos:]: k(x)


def add_fill(fill, i, s):
    fill.setdefault(i, []).append(s)


def lane_fields(k, vl, vrr, vc, vg, v15, sw):
    k(f"v_lshrrev_b32 v{vg}, 6, v0")
    k(f"v_and_b32 v{vl}, 63, v0")
    k(f"v_bfe_u32 v{vrr}, v0, 2, 2")
    k(f"v_readfirstlane_b32 s{sw}, v{vg}")
    k(f"v_and_b32 v{vc}, 3, v0")
    k(f"v_and_b32 v{v15}, 15, v0")
    k(f"v_bfe_u32 v{vg}, v0, 4, 2")


def silu_n(k, regs, temps, sneg):
    P = list(zip(regs, temps))
    if CFG["pk"]:
        for a, t in P[::2]: k(f"v_pk_mul_f32 {vr(t,2)}, {vr(a,2)}, s[{sneg}:{sneg+1}]")
        for a, t in P: k(f"v_exp_f32 v{t}, v{t}")
        for a, t in P[::2]: k(f"v_pk_add_f32 {vr(t,2)}, {vr(t,2)}, 1.0 op_sel_hi:[1,0]")
        for a, t in P: k(f"v_rcp_f32 v{t}, v{t}")
        for a, t in P[::2]: k(f"v_pk_mul_f32 {vr(a,2)}, {vr(a,2)}, {vr(t,2)}")
        return
    for a, t in P: k(f"v_mul_f32 v{t}, s{sneg}, v{a}")
    for a, t in P: k(f"v_exp_f32 v{t}, v{t}")
    for a, t in P: k(f"v_add_f32 v{t}, 1.0, v{t}")
    for a, t in P: k(f"v_rcp_f32 v{t}, v{t}")
    for a, t in P: k(f"v_mul_f32 v{a}, v{a}, v{t}")


def reduce_g(k, op, regs, temps):
    for sw in ("v_permlane16_swap_b32", "v_permlane32_swap_b32"):
        for a, t in zip(regs, temps): k(f"v_mov_b32 v{t}, v{a}")
        k("s_nop 1")
        for a, t in zip(regs, temps): k(f"{sw} v{a}, v{t}")
        k("s_nop 1")
        for a, t in zip(regs, temps): k(f"{op} v{a}, v{a}, v{t}")


LTHRESH = 2.0 ** 60
sW, sHEAD, sQB, sW2K, sW4K, sM16, sNONCE, sOWN = 20, 21, 22, 23, 25, 33, 100, 101
vl, vrr, vc, vg, v15, vL16 = 1, 2, 3, 4, 5, 6
F_LN, F_H, F_O, F_P, F_G = 0, 1, 2, 3, 4


def raise_flag(k, name, slot, extra=()):
    k("s_barrier")
    k(f"s_cmp_eq_u32 s{sW}, 0")
    k(f"s_cbranch_scc0 {name}")
    k(f"v_mov_b32 v7, s{sOWN}")
    k(f"v_mov_b32 v8, s{sNONCE}")
    k("s_mov_b64 exec, 1")
    k(f"global_store_dword v7, v8, s[98:99] offset:{slot*128} sc1")
    k("s_mov_b64 exec, -1")
    k.lab(name)


def spin(k, name, vflag, vdst, off, first=True):
    k("s_mov_b32 s3, 0")
    if first:
        k(f"global_load_dword v{vdst}, v{vflag}, s[98:99] offset:{off} sc1")
    k.lab(name)
    k("s_waitcnt vmcnt(0)")
    k(f"v_cmp_ne_u32 vcc, s{sNONCE}, v{vdst}")
    k("s_add_u32 s3, s3, 1")
    k(f"s_cbranch_vccz {name}_ok")
    k("s_cmp_gt_u32 s3, 0x40000")
    k(f"s_cbranch_scc1 {name}_ok")
    k(f"global_load_dword v{vdst}, v{vflag}, s[98:99] offset:{off} sc1")
    k(f"s_branch {name}")
    k.lab(f"{name}_ok")


def ln_rows(k, nyoung, vst, sxn):
    D, F, A, T = 96, 112, 144, 152
    k(f"s_mov_b32 s32, {f32(1.0/1024)}")
    for i in range(4):
        k(f"s_waitcnt vmcnt({3-i+nyoung})")
        if i == 3: k.stamp(3, grp=2)
        for r in range(4):
            k(f"v_lshlrev_b32 v{F+8*i+2*r}, 16, v{D+4*i+r}")
            k(f"v_and_b32 v{F+1+8*i+2*r}, 0xffff0000, v{D+4*i+r}")

    def reduce32(s, t):
        for p in ("quad_perm:[1,0,3,2]", "quad_perm:[2,3,0,1]", "row_half_mirror", "row_mirror"):
            k("s_nop 1")
            k(f"v_add_f32_dpp v{s}, v{s}, v{s} {p} row_mask:0xf bank_mask:0xf")
        k(f"v_mov_b32 v{t}, v{s}")
        k("s_nop 1")
        k(f"v_permlane16_swap_b32 v{s}, v{t}")
        k("s_nop 1")
        k(f"v_add_f32 v{s}, v{s}, v{t}")

    for i in range(2):
        k(f"v_pk_add_f32 {vr(A+2*i,2)}, {vr(F+2*i,2)}, {vr(F+4+2*i,2)}")
    for j in range(8, 32, 4):
        for i in range(2):
            k(f"v_pk_add_f32 {vr(A+2*i,2)}, {vr(A+2*i,2)}, {vr(F+j+2*i,2)}")
    k(f"v_pk_add_f32 {vr(A,2)}, {vr(A,2)}, {vr(A+2,2)}")
    k(f"v_add_f32 v{A}, v{A}, v{A+1}")
    reduce32(A, A + 1)
    k(f"v_mul_f32 v{A}, s32, v{A}")
    V = A + 2
    for j in range(0, 32, 2):
        t = T + (j & 2)
        k(f"v_pk_add_f32 {vr(t,2)}, {vr(F+j,2)}, {vr(A,2)} op_sel_hi:[1,0] neg_lo:[0,1] neg_hi:[0,1]")
        if j < 4:
            k(f"v_pk_mul_f32 {vr(V+(j&2),2)}, {vr(t,2)}, {vr(t,2)}")
        else:
            k(f"v_pk_fma_f32 {vr(V+(j&2),2)}, {vr(t,2)}, {vr(t,2)}, {vr(V+(j&2),2)}")
    k(f"v_pk_add_f32 {vr(V,2)}, {vr(V,2)}, {vr(V+2,2)}")
    k(f"v_add_f32 v{V}, v{V}, v{V+1}")
    reduce32(V, V + 1)
    k(f"v_mul_f32 v{V}, s32, v{V}")
    k(f"v_cvt_pk_bf16_f32 v{A}, v{A}, v{V}")
    k(f"v_and_b32 v{V}, 0xffff0000, v{A}")
    k(f"v_lshlrev_b32 v{A}, 16, v{A}")
    k(f"v_add_f32 v{V}, {f32(1e-5)}, v{V}")
    k(f"v_cvt_pk_bf16_f32 v{V}, v{V}, v{V}")
    k(f"v_lshlrev_b32 v{V}, 16, v{V}")
    k(f"v_sqrt_f32 v{V}, v{V}")
    k("s_nop 0")
    k(f"v_cvt_pk_bf16_f32 v{V}, v{V}, v{V}")
    k(f"v_lshlrev_b32 v{V}, 16, v{V}")
    k(f"v_rcp_f32 v{V}, v{V}")
    k("s_mov_b32 s32, 4096")
    for j in range(0, 32, 2):
        k(f"v_pk_add_f32 {vr(F+j,2)}, {vr(F+j,2)}, {vr(A,2)} op_sel_hi:[1,0] neg_lo:[0,1] neg_hi:[0,1]")
    for i in range(4):
        for r in range(4):
            a = F + 8 * i + 2 * r
            k(f"v_pk_mul_f32 {vr(a,2)}, {vr(a,2)}, {vr(V,2)} op_sel_hi:[1,0]")
        for r in range(4):
            a = F + 8 * i + 2 * r
            k(f"v_cvt_pk_bf16_f32 v{D+4*i+r}, v{a}, v{a+1}")
        k(f"ds_write_b128 v{vst+3}, {vr(D+4*i,4)} offset:{4096*i}")
    k("s_waitcnt lgkmcnt(0)")
    k("s_barrier")
    for i in range(4):
        k(f"ds_read_b128 {vr(D+4*i,4)}, v{vst+4} offset:{1024*i}")
    for i in range(4):
        k(f"s_waitcnt lgkmcnt({3-i})")
        k(f"buffer_store_dwordx4 {vr(D+4*i,4)}, v{vst}, s[{sxn}:{sxn+3}], {'s32' if i >= 2 else '0'} offen offset:{(i&1)*2048} sc1")


def part_a(k):
    sSOW1, sSOX, sSOWQ, sCNT = 24, 26, 27, 28
    sT0, sT1, sC = 29, 32, 30
    SK, SV, SX, SO, SWQ, SW1, SH = 8, 12, 16, 36, 52, 56, 60
    sSOK, sSOV = 40, 41
    vWq = [10, 11, 12, 13]
    vW1 = list(range(14, 21))
    vDq, vD1 = [21, 22], [23, 24]
    vX = [25, 26, 27, 28]
    XR = lambda st, mb: 32 + st * 16 + mb * 4
    WF = lambda st, nb: 96 + st * 60 + nb * 4
    vKrd = [216, 217, 218, 219]
    vVrd = list(range(220, 228))
    vKdma = [228, 229, 230, 231]
    vVdma = [232, 233]
    acc = lambda nb, mb: (nb * 4 + mb) * 4
    KB, VB, WB = 0, 65536, 98304

    k("s_cmp_ge_u32 s2, 256")
    k("s_cbranch_scc1 k_done")
    k.stamp(0, True); k.stamp(1)
    k("s_load_dwordx2 s[42:43], s[0:1], 0")
    k("s_load_dwordx2 s[34:35], s[0:1], 80")
    k("s_load_dwordx4 s[4:7], s[0:1], 8")
    k("s_load_dwordx4 s[44:47], s[0:1], 24")
    k("s_load_dwordx4 s[48:51], s[0:1], 48")
    lane_fields(k, vl, vrr, vc, vg, v15, sW)
    k("s_and_b32 s3, s2, 7")
    k("s_lshl_b32 s3, s3, 2")
    k(f"s_lshr_b32 s{sT0}, s2, 6")
    k(f"s_add_u32 s{sHEAD}, s3, s{sT0}")
    k(f"s_bfe_u32 s{sQB}, s2, 0x30003")
    k(f"s_lshl_b32 s{sOWN}, s{sQB}, 5")
    k(f"s_add_u32 s{sOWN}, s{sOWN}, s{sHEAD}")
    k(f"s_lshl_b32 s3, s{sOWN}, 3")
    k("v_lshrrev_b32 v7, 5, v0")
    k("v_add_u32 v7, s3, v7")
    k("v_and_b32 v8, 31, v0")
    k("v_lshlrev_b32 v156, 11, v7")
    k("v_lshl_add_u32 v156, v8, 4, v156")
    k(f"s_lshl_b32 s{sOWN}, s{sOWN}, 10")
    k(f"s_lshl_b32 s3, s{sQB}, 7")
    k(f"s_add_u32 s3, s3, {EP_OFF}")
    k("v_mov_b32 v158, s3")
    k("s_waitcnt lgkmcnt(0)")
    k.srd(SV, 42, nrec=2048 * 2048)
    for i in range(4):
        k(f"buffer_load_dwordx4 {vr(96+4*i,4)}, v156, s[{SV}:{SV+3}], 0 offen offset:{512*i}")
    k(f"s_add_u32 s98, s34, {FL_OFF}")
    k(f"s_addc_u32 s99, s35, 0")
    k("global_load_dword v159, v158, s[98:99] sc1")
    k(k.code_pf_setup(42, None, "code_end", 234, 236, sT0))
    k("v_lshrrev_b32 v9, 5, v0")
    k("v_lshlrev_b32 v160, 4, v9")
    k("v_lshl_add_u32 v160, v8, 7, v160")
    k("v_and_b32 v161, 63, v0")
    k("v_lshlrev_b32 v161, 4, v161")
    k("v_lshrrev_b32 v9, 6, v0")
    k("v_lshl_add_u32 v161, v9, 12, v161")
    k(f"s_lshr_b32 s3, s{sOWN}, 11")
    k("s_lshl_b32 s3, s3, 15")
    k(f"s_and_b32 s{sT0}, s{sHEAD}, 1")
    k(f"s_lshl_b32 s{sT0}, s{sT0}, 7")
    k(f"s_add_u32 s3, s3, s{sT0}")
    k("v_lshlrev_b32 v157, 13, v9")
    k("v_add_u32 v157, s3, v157")
    k("v_bfe_u32 v9, v0, 5, 1")
    k("v_lshl_add_u32 v157, v9, 10, v157")
    k("v_bfe_u32 v9, v0, 3, 2")
    k("v_lshl_add_u32 v157, v9, 8, v157")
    k("v_and_b32 v9, 7, v0")
    k("v_lshl_add_u32 v157, v9, 4, v157")
    k.srd(SO, 34, const=XN_OFF, nrec=XN_SZ)
    k(f"s_lshl_b32 s{sW4K}, s{sW}, 12")
    k(f"s_lshl_b32 s{sW2K}, s{sW}, 11")
    k(f"v_lshlrev_b32 v{vL16}, 4, v{vl}")
    k(f"s_lshl_b32 s{sT0}, s{sW}, 3")
    k(f"v_add_u32 v7, s{sT0}, v{vg}")
    k(f"v_lshlrev_b32 v8, 2, v{vg}")
    k(f"v_xor_b32 v8, v8, v{v15}")
    k(f"v_lshlrev_b32 v9, 13, v7")
    k(f"v_lshl_add_u32 v{vDq[0]}, v8, 4, v9")
    k(f"v_add_u32 v{vDq[1]}, {4*8192-1024}, v{vDq[0]}")
    k(f"s_and_b32 s{sT0}, s{sW}, 1")
    k(f"s_lshl_b32 s{sT0}, s{sT0}, 2")
    k(f"v_or_b32 v8, s{sT0}, v{vg}")
    k(f"v_lshlrev_b32 v8, 1, v8")
    k(f"v_xor_b32 v8, v8, v{v15}")
    k(f"v_mul_u32_u24 v9, 7168, v7")
    k(f"v_lshl_add_u32 v9, v8, 4, v9")
    k(f"v_cmp_gt_u32 vcc, 14, v8")
    k(f"v_mov_b32 v8, 0x80000000")
    k("s_nop 0")
    k(f"v_cndmask_b32 v{vD1[0]}, v8, v9, vcc")
    k(f"v_add_u32 v{vD1[1]}, {4*7168-1024}, v{vD1[0]}")
    k(f"s_lshl_b32 s3, s{sHEAD}, 8")
    k(f"s_sub_u32 s{sT1}, {8 << 20}, s3")
    k.srd(SWQ, 44, soff="s3", nrec=f"s{sT1}")
    k(f"s_mul_i32 s3, s{sHEAD}, 224")
    k(f"s_sub_u32 s{sT1}, 7340032, s3")
    k.srd(SW1, 48, soff="s3", nrec=f"s{sT1}")
    k(f"s_mov_b32 s{sSOX}, 0")
    k(f"s_mov_b32 s{sSOWQ}, 0")
    k(f"s_mov_b32 s{sSOW1}, 0")
    PF, sPFS, sPFO, sPFC, sPFX, vPF = SH, 93, 94, 95, 96, 30
    k(f"s_cmp_lt_u32 s{sW}, 2")
    for i in range(3):
        k(f"s_cselect_b32 s{PF+i}, s{SWQ+i}, s{SW1+i}")
    k(f"s_mov_b32 s{PF+3}, 0x20000")
    k.csel2(sT0, 8192, 7168)
    k(f"s_lshl_b32 s{sPFS}, s{sT0}, 5")
    k(f"s_and_b32 s{sT1}, s{sW}, 1")
    k(f"s_lshl_b32 s{sT1}, s{sT1}, 4")
    k(f"v_lshrrev_b32 v7, 2, v{vl}")
    k(f"v_add_u32 v7, s{sT1}, v7")
    k(f"v_mul_lo_u32 v7, v7, s{sT0}")
    k(f"v_lshl_add_u32 v{vPF}, v{vc}, 6, v7")
    k(f"s_mul_i32 s{sPFX}, s{sPFS}, s{sQB}")
    k(f"s_lshl_b32 s{sPFO}, s{sPFS}, 3")
    k(f"s_sub_u32 s{sPFC}, 8, s{sQB}")
    pfl = f"buffer_load_dword v31, v{vPF}, s[{PF}:{PF+3}], s{sPFX} offen"
    pf_pre = [f"s_and_b32 s{sPFX}, s{sPFC}, 7", f"s_cselect_b32 s{sPFX}, 0x40000000, s{sPFO}"]
    pf_post = [f"s_add_u32 s{sPFO}, s{sPFO}, s{sPFS}", f"s_add_u32 s{sPFC}, s{sPFC}, 1"]

    def xload(st, mb, imm):
        return f"buffer_load_dwordx4 {vr(XR(st,mb),4)}, v{vX[mb]}, s[{SX}:{SX+3}], s{sSOX} offen offset:{imm} sc1"

    dq = lambda i: f"buffer_load_dwordx4 v{vDq[i]}, s[{SWQ}:{SWQ+3}], s{sSOWQ} offen offset:{i*1024} lds"
    d1 = lambda i: f"buffer_load_dwordx4 v{vD1[i]}, s[{SW1}:{SW1+3}], s{sSOW1} offen offset:{i*1024} lds"
    m0q = lambda slot: f"s_add_u32 m0, s{sW2K}, {WB+slot*16384}"
    m01 = lambda slot: f"s_add_u32 m0, s{sW2K}, {WB+slot*16384+8192}"
    advw = [f"s_add_u32 s{sSOWQ}, s{sSOWQ}, {32*8192}", f"s_add_u32 s{sSOW1}, s{sSOW1}, {32*7168}"]

    def wdma_grp(slot):
        return [[m0q(slot), "s_nop 0", dq(0)], [dq(1)], [m01(slot), "s_nop 0", d1(0)], [d1(1)] + advw]

    vmem = wdma_grp(0) + wdma_grp(1) + wdma_grp(2) + wdma_grp(3)
    NW0 = CFG["nw0"]
    for grp in vmem[:NW0]:
        for x in grp: k(x)
    vmem = vmem[NW0:] + [[pfl, f"s_mov_b32 s{sPFX}, 0x40000000"]]
    k(f"s_lshl_b32 s3, s{sHEAD}, 19")
    k(f"s_cmp_lt_u32 s{sW}, 2")
    k("s_cselect_b32 s44, s4, s6")
    k("s_cselect_b32 s45, s5, s7")
    k.srd(44, 44, soff="s3", nrec=524288)
    k(f"s_and_b32 s3, s{sW}, 1")
    k(f"s_lshl_b32 s48, s{sQB}, 1")
    k("s_add_u32 s48, s48, s3")
    k("s_lshl_b32 s48, s48, 10")
    k.stamp(2, grp=2)
    ln_rows(k, 2 + NW0, 157, SO)
    k.stamp(4, grp=2)
    k2 = K("tmp")
    k2(f"s_lshl_b32 s3, s{sQB}, 4")
    k2(f"s_lshl_b32 s{sT0}, s{sW}, 2")
    k2(f"s_add_u32 s{sM16}, s3, s{sT0}")
    k2(f"s_lshl_b32 s3, s{sM16}, 15")
    k2.srd(SX, 34, const=XN_OFF, soff="s3", nrec=4 * 32768)
    for mb in range(4):
        k2(f"v_add_u32 v{vX[mb]}, {mb*32768}, v{vL16}")
    k2(f"v_lshl_add_u32 v7, v{vg}, 3, v{vrr}")
    k2(f"v_lshlrev_b32 v7, 8, v7")
    k2(f"v_add_u32 v7, {WB}, v7")
    k2(f"v_lshl_add_u32 v8, v{vc}, 4, v7")
    for js in range(4):
        k2(f"v_xor_b32 v9, {js}, v{vrr}")
        k2(f"v_lshl_add_u32 v{vWq[js]}, v9, 6, v8")
    k2(f"v_lshl_add_u32 v8, v{vc}, 3, v7")
    k2(f"v_add_u32 v8, 8192, v8")
    k2(f"v_and_b32 v29, 1, v{vg}")
    k2(f"v_lshl_add_u32 v29, v29, 2, v{vrr}")
    k2(f"s_and_b32 s97, s{sHEAD}, 1")
    for n7 in range(7):
        if n7 < 6:
            k2(f"s_add_u32 s{sT0}, s97, {n7}")
        else:
            k2(f"s_mul_i32 s{sT0}, s97, -6")
            k2(f"s_add_u32 s{sT0}, s{sT0}, 6")
        k2(f"v_xor_b32 v9, s{sT0}, v29")
        k2(f"v_lshl_add_u32 v{vW1[n7]}, v9, 5, v8")
    k2(f"s_lshl_b32 s3, s{sHEAD}, 19")
    k2.srd(SK, 4, soff="s3", nrec=524288)
    k2.srd(SV, 6, soff="s3", nrec=524288)
    k2(f"v_lshlrev_b32 v7, 8, v{v15}")
    for js in range(4):
        k2(f"v_add_u32 v9, {4*js}, v{vg}")
        k2(f"v_xor_b32 v9, v9, v{v15}")
        k2(f"v_lshl_add_u32 v{vKrd[js]}, v9, 4, v7")
    k2(f"v_lshl_add_u32 v7, v{vg}, 2, v{vrr}")
    k2(f"v_lshlrev_b32 v7, 8, v7")
    k2(f"v_add_u32 v7, {VB}, v7")
    k2(f"v_lshl_add_u32 v7, v{vc}, 3, v7")
    for db in range(8):
        k2(f"v_xor_b32 v9, {db}, v29")
        k2(f"v_lshl_add_u32 v{vVrd[db]}, v9, 5, v7")
    k2(f"v_lshlrev_b32 v7, 8, v{vg}")
    k2(f"v_add_u32 v7, s{sW4K}, v7")
    for p in range(4):
        k2(f"v_add_u32 v9, {4*p}, v{vg}")
        k2(f"v_xor_b32 v9, v9, v{v15}")
        k2(f"v_lshl_add_u32 v{vKdma[p]}, v9, 4, v7")
    for i in range(2):
        k2(f"v_add_u32 v9, {4*i}, v{vg}")
        k2(f"v_lshlrev_b32 v9, 1, v9")
        k2(f"v_xor_b32 v9, v9, v{v15}")
        k2(f"v_lshl_add_u32 v{vVdma[i]}, v9, 4, v7")
    k2(f"s_mov_b32 s{sSOK}, 0")
    k2(f"s_mov_b32 s{sSOV}, 0")
    for i in range(CFG["accpre"]):
        k2(f"v_accvgpr_write_b32 a{i}, 0")
    for x in k2.L: k(x.strip())
    k(f"s_lshl_b32 s3, s{sQB}, 15")
    k(f"v_and_b32 v156, 31, v{vl}")
    k(f"v_lshlrev_b32 v156, 10, v156")
    k(f"v_add_u32 v156, s3, v156")
    k.stamp(5, grp=2)
    k("s_waitcnt vmcnt(0)")
    k(f"v_readfirstlane_b32 s{sNONCE}, v159")
    k("s_nop 3")
    k(f"s_add_u32 s{sNONCE}, s{sNONCE}, 1")
    k(f"s_or_b32 s{sNONCE}, s{sNONCE}, 0x80000000")
    raise_flag(k, "k_ln_pub", F_LN)
    for i in range(CFG["accpre"], 240):
        k(f"v_accvgpr_write_b32 a{i}, 0")
    k.stamp(8, grp=2)
    k(f"s_cmp_eq_u32 s{sW}, 0")
    k("s_cbranch_scc0 k_ln_seen")
    spin(k, "k_ln_wait", 156, 155, F_LN * 128)
    k(f"s_cmp_eq_u32 s{sHEAD}, 0")
    k("s_cbranch_scc0 k_ln_seen")
    k(f"v_mov_b32 v8, s{sNONCE}")
    k("s_mov_b64 exec, 1")
    k("global_store_dword v158, v8, s[98:99] sc1")
    k("s_mov_b64 exec, -1")
    k.lab("k_ln_seen")
    k("s_barrier")
    k.stamp(2); k.stamp(9, grp=2); k.stamp(2, grp=5)
    for st in range(3):
        for mb in range(4): k(xload(st, mb, st * 1024))
    for grp in vmem:
        for x in grp: k(x)
    for i in range(max(11 - len(vmem), 5)): k(pfl)

    dma_k = lambda p: f"buffer_load_dwordx4 v{vKdma[p]}, s[{SK}:{SK+3}], s{sSOK} offen offset:{p*1024} lds"
    dma_v = lambda p: f"buffer_load_dwordx4 v{vVdma[p&1]}, s[{SV}:{SV+3}], s{sSOV} offen offset:{p*1024} lds"
    m0k = lambda slot: f"s_add_u32 m0, s{sW4K}, {KB+slot*16384}"
    m0v = lambda slot: f"s_add_u32 m0, s{sW4K}, {VB+slot*16384}"
    advk = f"s_add_u32 s{sSOK}, s{sSOK}, 16384"
    advv = f"s_add_u32 s{sSOV}, s{sSOV}, 16384"

    def wreads(slot, st):
        R = []
        for nb in range(15):
            for q2 in range(2):
                if nb < 8:
                    R.append(f"ds_read_b64_tr_b16 {vr(WF(st,nb)+2*q2,2)}, v{vWq[nb>>1]} offset:{slot*16384+q2*1024+(nb&1)*8}")
                else:
                    R.append(f"ds_read_b64_tr_b16 {vr(WF(st,nb)+2*q2,2)}, v{vW1[nb-8]} offset:{slot*16384+q2*1024}")
        return R

    def p1_mfmas(u):
        return [MFMA(ar(acc(nb, mb), 4), vr(WF(u & 1, nb), 4), vr(XR(u, mb), 4), ar(acc(nb, mb), 4))
                for nb in range(15) for mb in range(4)]

    def p1_stage(u, vmcnt, vm_items, rd=True):
        k(f"s_waitcnt vmcnt({vmcnt}) lgkmcnt(0)")
        k("s_barrier")
        fill = {}
        if rd:
            for i, r in enumerate(wreads((u + 1) & 3, (u + 1) & 1)):
                add_fill(fill, i, r)
        for i, (pre, ins, post) in enumerate(vm_items):
            g = 31 + 3 * i
            for s in pre: add_fill(fill, g - 1, s)
            add_fill(fill, g, ins)
            for s in post: add_fill(fill, g + 1, s)
        weave(k, p1_mfmas(u), fill)

    for r in wreads(0, 0): k(r)
    k(f"s_mov_b32 s{sCNT}, 0")
    if CFG["stamps"] == 2:
        k("s_waitcnt vmcnt(19)")
        k.stamp(10, grp=2)
    k.lab("k_p1_loop")
    for u in range(4):
        imm = 3072 if u == 0 else (u - 1) * 1024
        it = [([m0q(u)], dq(0), []), ([], dq(1), []), ([m01(u)], d1(0), []), ([], d1(1), advw)]
        it += [([], xload((u + 3) & 3, mb, imm), [f"s_add_u32 s{sSOX}, s{sSOX}, 4096"] if (u == 0 and mb == 3) else [])
               for mb in range(4)]
        it.append((pf_pre, pfl, pf_post))
        if u == 1:
            it.append(([f"s_cmp_lt_u32 s{sCNT}, 4", "s_cselect_b32 s49, s48, 0x40000000"],
                       f"buffer_load_dwordx4 v[240:243], v{vL16}, s[44:47], s49 offen", ["s_add_u32 s48, s48, 16384"]))
        p1_stage(u, 19, it)
    k(f"s_add_u32 s{sCNT}, s{sCNT}, 1")
    if CFG["stamps"] == 5:
        for n, (c, i) in enumerate(((1, 3), (2, 4), (4, 5), (6, 8))):
            k(f"s_cmp_eq_u32 s{sCNT}, {c}")
            k(f"s_cbranch_scc0 k_dg{n}")
            k.stamp(i, grp=5)
            k.lab(f"k_dg{n}")
    k(f"s_cmp_lt_u32 s{sCNT}, 7")
    k("s_cbranch_scc1 k_p1_loop")
    k.stamp(9, grp=5)

    def kv_items(kind, slot):
        L = []
        for p in range(4):
            pre = [m0k(slot) if kind == "k" else m0v(slot)] if p == 0 else []
            post = [advk if kind == "k" else advv] if p == 3 else []
            L.append((pre, dma_k(p) if kind == "k" else dma_v(p), post))
        return L

    kv = kv_items("k", 0) + kv_items("k", 1) + kv_items("v", 0) + kv_items("k", 2) + kv_items("v", 1) + kv_items("k", 3)
    p1_stage(0, 19, [([], xload(3, mb, 3072), []) for mb in range(4)] + kv[:5])
    p1_stage(1, 19, kv[5:14])
    p1_stage(2, 19, kv[14:23])
    p1_stage(3, 23, kv[23:], rd=False)
    k.stamp(3); k.stamp(2, grp=4); k.stamp(10, grp=5)

    k(f"s_mul_i32 s3, s{sM16}, {112*1024}")
    k.srd(SH, 34, const=H_OFF, soff="s3", nrec=4 * 112 * 1024)
    sHP, sHS = 93, 94
    k(f"s_mul_i32 s{sHP}, s{sHEAD}, 7")
    k(f"s_add_u32 s{sHP}, s{sHP}, s97")
    k(f"s_lshl_b32 s{sHP}, s{sHP}, 9")
    k(f"s_mul_i32 s{sHS}, s97, {-4096+8}")
    k(f"s_add_u32 s{sHS}, s{sHS}, 3072")
    k(f"s_add_u32 s{sHS}, s{sHS}, s{sHP}")
    for mb in range(4):
        k(f"v_add_u32 v{vX[mb]}, {mb*112*1024}, v{vL16}")
    if CFG["pf"]:
        k("s_load_dwordx2 s[46:47], s[0:1], 32")
        k("s_load_dwordx2 s[50:51], s[0:1], 56")
        k(f"s_lshl_b32 s3, s2, 2")
        k(f"s_add_u32 s3, s3, s{sW}")
        k("s_waitcnt lgkmcnt(0)")
        k.srd(SWQ, 46, nrec=8 << 20)
        k.srd(SW1, 50, nrec=7340032)
        k(f"s_lshl_b32 s{sSOWQ}, s3, 13")
        k(f"s_mul_i32 s{sSOW1}, s3, 7168")
    k(f"s_mov_b32 s{sC}, {f32(-LOG2E)}")
    k(f"s_mov_b32 s{sC+1}, {f32(-LOG2E)}")
    for p in range(4):
        n = 32 if p < 3 else 16
        T, U = 96, 160 + (p & 1) * 16
        for i in range(n):
            k(f"v_accvgpr_read_b32 v{T+i}, a{acc(8+2*p,0)+i}")
        silu_n(k, list(range(T, T + n)), list(range(T + 32, T + 32 + n)), sC)
        for mb in range(4):
            for b in range(n // 16):
                for h2 in range(2):
                    k(f"v_cvt_pk_bf16_f32 v{U+4*mb+2*b+h2}, v{T+16*b+4*mb+2*h2}, v{T+16*b+4*mb+2*h2+1}")
        if p == 0:
            k.stamp(3, grp=4)
            k("s_waitcnt vmcnt(0)")
            k.stamp(4, grp=4)
        for mb in range(4):
            if p < 3:
                k(f"buffer_store_dwordx4 {vr(U+4*mb,4)}, v{vX[mb]}, s[{SH}:{SH+3}], s{sHP} offen offset:{p*1024} sc1")
            else:
                k(f"buffer_store_dwordx2 {vr(U+4*mb,2)}, v{vX[mb]}, s[{SH}:{SH+3}], s{sHS} offen sc1")
    k.stamp(5, grp=4)
    Q = lambda qb, js: 32 + (qb * 4 + js) * 4
    k(f"s_mov_b32 s{sC}, {f32(QSCALE)}")
    k(f"s_mov_b32 s{sC+1}, {f32(QSCALE)}")
    for js in range(4):
        T = 96 + (js & 1) * 32
        for b in range(2):
            for i in range(16):
                k(f"v_accvgpr_read_b32 v{T+16*b+i}, a{acc(2*js+b,0)+i}")
        if CFG["pk"]:
            for i in range(0, 32, 2):
                k(f"v_pk_mul_f32 {vr(T+i,2)}, {vr(T+i,2)}, s[{sC}:{sC+1}]")
        else:
            for i in range(32):
                k(f"v_mul_f32 v{T+i}, s{sC}, v{T+i}")
        for qb in range(4):
            for b in range(2):
                for h2 in range(2):
                    k(f"v_cvt_pk_bf16_f32 v{Q(qb,js)+2*b+h2}, v{T+16*b+4*qb+2*h2}, v{T+16*b+4*qb+2*h2+1}")
    k(f"s_lshl_b32 s3, s{sM16}, 7")
    k(f"s_lshl_b32 s{sT0}, s{sHEAD}, 2")
    k(f"s_add_u32 s3, s3, s{sT0}")
    k("s_lshl_b32 s3, s3, 10")
    k(f"s_sub_u32 s{sT1}, {O_SZ}, s3")
    k.srd(SO, 34, const=O_OFF, soff="s3", nrec=f"s{sT1}")
    for qb in range(4):
        k(f"s_mov_b32 s{93+qb}, {qb*128*1024}")

    Sb = lambda buf, kb, qb: 96 + buf * 32 + (kb * 4 + qb) * 4
    Pb = lambda buf, qb: 160 + buf * 16 + qb * 4
    NM = lambda qb: 192 + 4 * qb
    vLs = [208, 209, 210, 211]
    KF = lambda f: 192 + 4 * f
    VF = lambda db: 224 + 4 * db
    O = lambda db, qb: (db * 4 + qb) * 4

    def kread(f, slot, half):
        return f"ds_read_b128 {ar(KF(f),4)}, v{vKrd[f&3]} offset:{slot*16384+half*8192+(f>>2)*4096}"

    def vread(db, q2, slot, half):
        return f"ds_read_b64_tr_b16 {ar(VF(db)+2*q2,2)}, v{vVrd[db]} offset:{slot*16384+half*8192+q2*4096}"

    def qk(buf, first_c=None):
        M = []
        for f in range(8):
            for qb in range(4):
                d = vr(Sb(buf, f >> 2, qb), 4)
                c = d if (f & 3) else (first_c if first_c is not None else vr(NM(qb), 4))
                M.append(MFMA(d, ar(KF(f), 4), vr(Q(qb, f & 3), 4), c))
        return M

    LM = CFG["lm"]
    LA_ = lambda qb: 128 + 4 * qb
    ONES = 144

    def pv(buf, lm=False):
        M = [MFMA(ar(O(db, qb), 4), ar(VF(db), 4), vr(Pb(buf, qb), 4), ar(O(db, qb), 4))
             for db in range(8) for qb in range(4)]
        if lm:
            M += [MFMA(ar(LA_(qb), 4), ar(ONES, 4), vr(Pb(buf, qb), 4), ar(LA_(qb), 4)) for qb in range(4 - LM, 4)]
        return M

    def sm_add(buf, i, add=None):
        kb, qb, r = i >> 4, (i >> 2) & 3, i & 3
        s = 96 + buf * 32 + i
        L = [f"v_add_f32 v{vLs[qb]}, v{vLs[qb]}, v{s}"] if (add or (add is None and qb < 4 - LM)) else []
        if i & 1:
            L.append(f"v_cvt_pk_bf16_f32 v{Pb(buf,qb)+2*kb+(r>>1)}, v{s-1}, v{s}")
        return L

    sm_exp = lambda buf, i: f"v_exp_f32 v{96+buf*32+i}, v{96+buf*32+i}"

    k.stamp(8, grp=4)
    k("s_barrier")
    k.stamp(4)
    for f in range(8): k(kread(f, 0, 0))
    for i in range(32):
        k(f"v_accvgpr_write_b32 a{i}, 0")
    for qb in range(4):
        k(f"v_mov_b32 v{vLs[qb]}, 0")
    if LM:
        k("v_mov_b32 v7, 0x3f803f80")
        for i in range(16): k(f"v_accvgpr_write_b32 a{LA_(0)+i}, 0")
        for i in range(4): k(f"v_accvgpr_write_b32 a{ONES+i}, v7")
    k("s_waitcnt lgkmcnt(0)")
    fill = {}
    for f in range(8): add_fill(fill, 4 * f + 3, kread(f, 0, 1))
    for i in range(32, 128): add_fill(fill, (i - 32) // 3, f"v_accvgpr_write_b32 a{i}, 0")
    weave(k, qk(0, "0"), fill)
    k("s_nop 7")
    tm, tt = [212, 213, 214, 215], [234, 235, 236, 237]
    for qb in range(4):
        k(f"v_max3_f32 v{tm[qb]}, v{Sb(0,0,qb)}, v{Sb(0,0,qb)+1}, v{Sb(0,0,qb)+2}")
    for qb in range(4):
        k(f"v_max3_f32 v{tm[qb]}, v{Sb(0,0,qb)+3}, v{Sb(0,1,qb)}, v{tm[qb]}")
    for qb in range(4):
        k(f"v_max3_f32 v{tm[qb]}, v{Sb(0,1,qb)+1}, v{Sb(0,1,qb)+2}, v{tm[qb]}")
    for qb in range(4):
        k(f"v_max_f32 v{tm[qb]}, v{Sb(0,1,qb)+3}, v{tm[qb]}")
    reduce_g(k, "v_max_f32", tm, tt)
    for qb in range(4):
        k(f"v_sub_f32 v{tm[qb]}, {f32(-float(CFG['margin']))}, v{tm[qb]}")
    for qb in range(4):
        for r in range(4):
            k(f"v_mov_b32 v{NM(qb)+r}, v{tm[qb]}")
    for i in range(32):
        k(f"v_add_f32 v{96+i}, v{96+i}, v{tm[(i>>2)&3]}")
    k("s_waitcnt lgkmcnt(0)")
    fill = {}
    for f in range(8): add_fill(fill, 4 * f + 3, kread(f, 1, 0))
    for i in range(32):
        if i >= 1:
            for x in sm_add(0, i - 1): add_fill(fill, i, x)
        add_fill(fill, i, sm_exp(0, i))
    weave(k, qk(1), fill)
    k(f"s_mov_b32 s{sCNT}, 0")
    k.stamp(9, grp=4)
    k("s_waitcnt vmcnt(0)")
    raise_flag(k, "k_h_pub", F_H)
    k.stamp(10, grp=4)
    if CFG["stamps"] == 4: k("s_waitcnt lgkmcnt(0)")

    def half(tt, par):
        vm, ds, va, ex, first, last = {}, {}, {}, {}, {}, {}
        M = qk(par) + pv(par, LM)
        for db in range(8):
            for q2 in range(2):
                add_fill(ds, 2 * db + q2, vread(db, q2, tt, par))
        for f in range(8):
            add_fill(ds, 16 + 2 * f, kread(f, (tt + 1 + par) & 3, 1 - par))
        add_fill(first, 7, "s_waitcnt lgkmcnt(7)")
        if par == 1:
            add_fill(first, 15, f"s_waitcnt vmcnt({9 if (CFG['pf'] and (tt & 1)) else 8}) lgkmcnt(7)")
            add_fill(last, 15, "s_barrier")
            if CFG["pf"] and tt == 0:
                add_fill(vm, 16, f"buffer_load_dwordx4 v[244:247], v{vL16}, s[{SWQ}:{SWQ+3}], s{sSOWQ} offen")
                add_fill(first, 19, f"s_add_u32 s{sSOWQ}, s{sSOWQ}, 1024")
            if CFG["pf"] and tt == 2:
                add_fill(vm, 16, f"buffer_load_dwordx4 v[248:251], v{vL16}, s[{SW1}:{SW1+3}], s{sSOW1} offen")
                add_fill(first, 19, f"s_add_u32 s{sSOW1}, s{sSOW1}, 1024")
            add_fill(first, 16, m0k(tt))
            for p in range(4): add_fill(vm, 17 + 4 * p, dma_k(p))
            add_fill(first, 31, advk)
        else:
            add_fill(first, 15, "s_waitcnt lgkmcnt(7)")
            add_fill(first, 16, m0v((tt + 2) & 3))
            for p in range(4): add_fill(vm, 17 + 4 * p, dma_v(p))
            add_fill(first, 31, advv)
        add_fill(first, 23, "s_waitcnt lgkmcnt(4)")
        add_fill(first, 31, "s_waitcnt lgkmcnt(4)")
        for x in sm_add(par, 31): add_fill(va, 0, x)
        late = []
        for g in range(32):
            if g >= 1:
                for x in sm_add(1 - par, g - 1, False if LM else None): add_fill(va, g, x)
                if LM: late += [x for x in sm_add(1 - par, g - 1) if x.startswith("v_add")]
            add_fill(ex, g, sm_exp(1 - par, g))
            if LM and (g & 1):
                n = 1 if g < 16 else (0 if g in vm else 2)
                for x in late[:n]: add_fill(va, g, x)
                late = late[n:]
        for x in late: add_fill(va, 31, x)
        fill = {}
        for g in range(32):
            fill[2 * g] = first.get(g, []) + vm.get(g, []) + ds.get(g, []) + va.get(g, [])
            fill[2 * g + 1] = ex.get(g, []) + last.get(g, [])
        weave(k, M, fill)

    k("s_waitcnt lgkmcnt(4)")
    k.lab("k_attn_loop")
    for i in range(8):
        if i == 6:
            k(f"s_cmp_eq_u32 s{sCNT}, 7")
            k("s_cbranch_scc1 k_attn_tail")
        half(i >> 1, i & 1)
    k(f"s_add_u32 s{sCNT}, s{sCNT}, 1")
    k("s_branch k_attn_loop")
    k.lab("k_attn_tail")
    for db in range(8):
        for q2 in range(2): k(vread(db, q2, 3, 0))
    for x in sm_add(0, 31): k(x)
    k("s_waitcnt lgkmcnt(0)")
    fill = {}
    for i in range(32):
        if i >= 1:
            for x in sm_add(1, i - 1): add_fill(fill, i, x)
        add_fill(fill, i, sm_exp(1, i))
        if (i & 3) == 3:
            for q2 in range(2): fill[i] = [vread(i >> 2, q2, 3, 1)] + fill[i]
    weave(k, pv(0, LM), fill)
    k("s_nop 0")
    for x in sm_add(1, 31): k(x)
    k("s_waitcnt lgkmcnt(0)")
    if LM:
        k("s_nop 0")
        for m in pv(1, True)[32:]: k(m)
    assert LM == 4

    def o_chunk(c):
        T = 96 + (c & 1) * 48
        W = [f"v_accvgpr_read_b32 v{T+16*b+i}, a{O(2*c+b,0)+i}" for b in range(2) for i in range(16)]
        for i in range(0, 32, 2):
            L = vLs[(i >> 2) & 3]
            W.append(f"v_pk_mul_f32 {vr(T+i,2)}, {vr(T+i,2)}, {vr(L&~1,2)} op_sel:[0,{L&1}] op_sel_hi:[1,{L&1}]")
        for qb in range(4):
            for b in range(2):
                for h2 in range(2):
                    W.append(f"v_cvt_pk_bf16_f32 v{T+32+4*qb+2*b+h2}, v{T+16*b+4*qb+2*h2}, v{T+16*b+4*qb+2*h2+1}")
            W.append(f"buffer_store_dwordx4 {vr(T+32+4*qb,4)}, v{vL16}, s[{SO}:{SO+3}], s{93+qb} offen offset:{c*1024} sc1")
        return W

    fill = {}
    for qb in range(4): add_fill(fill, 5 + (qb >> 1), f"v_accvgpr_read_b32 v{vLs[qb]}, a{LA_(qb)}")
    for x in (f"s_mov_b32 s{sT0}, {f32(LTHRESH if not CFG['force_slow'] else -1.0)}",
              f"v_add_f32 v213, v{vLs[0]}, v{vLs[1]}", f"v_add_f32 v214, v{vLs[2]}, v{vLs[3]}"): add_fill(fill, 7, x)
    add_fill(fill, 8, "v_add_f32 v212, v213, v214")
    add_fill(fill, 8, f"v_cmp_nge_f32 vcc, s{sT0}, v212")
    for qb in range(4): add_fill(fill, 9 + qb, f"v_rcp_f32 v{vLs[qb]}, v{vLs[qb]}")
    add_fill(fill, 13, "s_cmp_lg_u64 vcc, 0"); add_fill(fill, 13, "s_cselect_b32 s42, 1, 0")
    w0 = o_chunk(0)
    for n, x in enumerate(w0[:32]): add_fill(fill, 14 + n // 2, x)
    weave(k, pv(1), fill)
    for x in w0[32:]: k(x)
    k.stamp(5)
    k("s_branch k_attn_epi2")

    k.lab("k_slow")
    k("s_waitcnt vmcnt(0) lgkmcnt(0)")
    k("s_mov_b32 s42, 0")
    for i in range(128):
        k(f"v_accvgpr_write_b32 a{i}, 0")
    vM = [192, 193, 194, 195]
    tm, tt, al = [212, 213, 214, 215], [234, 235, 236, 237], [238, 239, 240, 241]
    for qb in range(4):
        k(f"v_mov_b32 v{vM[qb]}, {f32(-3.0e38)}")
        k(f"v_mov_b32 v{vLs[qb]}, 0")
    k(f"s_mov_b32 s{sSOK}, 0")
    k(f"s_mov_b32 s{sSOV}, 0")
    k.lab("k_slow_loop")
    k("s_barrier")
    k(m0k(0)); k("s_nop 0")
    for p in range(4): k(dma_k(p))
    k(m0v(0)); k("s_nop 0")
    for p in range(4): k(dma_v(p))
    k(advk); k(advv)
    k("s_waitcnt vmcnt(0)")
    k("s_barrier")
    k("s_mov_b32 s43, 0")
    k.lab("k_slow_half")
    for f in range(8): k(kread(f, 0, 0))
    for db in range(8):
        for q2 in range(2): k(vread(db, q2, 0, 0))
    k("s_waitcnt lgkmcnt(0)")
    for m in qk(0, "0"): k(m)
    for r in vKrd + vVrd:
        k(f"v_xor_b32 v{r}, 0x2000, v{r}")
    for qb in range(4):
        k(f"v_max3_f32 v{tm[qb]}, v{Sb(0,0,qb)}, v{Sb(0,0,qb)+1}, v{vM[qb]}")
    for a, b in (((0, 2), (0, 3)), ((1, 0), (1, 1)), ((1, 2), (1, 3))):
        for qb in range(4):
            k(f"v_max3_f32 v{tm[qb]}, v{Sb(0,a[0],qb)+a[1]}, v{Sb(0,b[0],qb)+b[1]}, v{tm[qb]}")
    reduce_g(k, "v_max_f32", tm, tt)
    for qb in range(4): k(f"v_sub_f32 v{al[qb]}, v{vM[qb]}, v{tm[qb]}")
    for qb in range(4): k(f"v_exp_f32 v{al[qb]}, v{al[qb]}")
    for qb in range(4): k(f"v_mov_b32 v{vM[qb]}, v{tm[qb]}")
    for qb in range(4): k(f"v_mul_f32 v{vLs[qb]}, v{vLs[qb]}, v{al[qb]}")
    for i in range(32): k(f"v_sub_f32 v{96+i}, v{96+i}, v{tm[(i>>2)&3]}")
    for i in range(32): k(sm_exp(0, i))
    k("s_nop 0")
    for i in range(32):
        for x in sm_add(0, i, True): k(x)
    for db in range(8):
        for i in range(16): k(f"v_accvgpr_read_b32 v{128+i}, a{O(db,0)+i}")
        for i in range(16): k(f"v_mul_f32 v{128+i}, v{128+i}, v{al[i>>2]}")
        for i in range(16): k(f"v_accvgpr_write_b32 a{O(db,0)+i}, v{128+i}")
    k("s_nop 1")
    for m in pv(0): k(m)
    k("s_nop 7")
    k("s_add_u32 s43, s43, 1")
    k("s_cmp_lt_u32 s43, 2")
    k("s_cbranch_scc1 k_slow_half")
    k(f"s_cmp_lt_u32 s{sSOK}, 524288")
    k("s_cbranch_scc1 k_slow_loop")

    k.lab("k_attn_epi")
    reduce_g(k, "v_add_f32", vLs, [234, 235, 236, 237])
    for qb in range(4): k(f"v_rcp_f32 v{vLs[qb]}, v{vLs[qb]}")
    for x in o_chunk(0): k(x)
    k.lab("k_attn_epi2")
    for c in range(1, 4):
        for x in o_chunk(c): k(x)
    k(f"s_lshl_b32 s{sT1}, s{sW}, 2")
    k(f"s_add_u32 s{sT1}, s{sT1}, 131072")
    k(f"v_mov_b32 v213, s{sT1}")
    k("v_mov_b32 v214, s42")
    k("ds_write_b32 v213, v214")
    k("v_mov_b32 v213, 131072")
    k("s_waitcnt lgkmcnt(0)")
    k("s_barrier")
    k("ds_read_b128 v[236:239], v213")
    k("s_waitcnt lgkmcnt(0)")
    k("v_or_b32 v236, v236, v237")
    k("v_or3_b32 v236, v236, v238, v239")
    k("s_nop 0")
    k("v_readfirstlane_b32 s42, v236")
    k("s_nop 3")
    k("s_cmp_lg_u32 s42, 0")
    k("s_cbranch_scc1 k_slow")


def part_b(k):
    sNT, sISS, sKH = 40, 24, 41
    sSOA, sSOW, sCNT, sLAST = 26, 27, 28, 29
    SA, SWT, SG, SXI, SOU, SE, SEP = 8, 12, 16, 36, 44, 52, 56
    sT0, sT1, sC, sNK = 42, 32, 30, 43
    vWrd = list(range(10, 18))
    vD = [18, 19]
    vX = [20, 21, 22, 23]
    vXo = [24, 25]
    X = 224
    XR = lambda st, mb: 32 + st * 16 + mb * 4
    WF = lambda st, nb: 160 + st * 32 + nb * 4
    acc = lambda nb, mb: (mb * 8 + nb) * 4
    LA = CFG["g2la"]

    k("s_load_dwordx2 s[4:5], s[0:1], 32")
    k("s_load_dwordx2 s[6:7], s[0:1], 56")
    k("s_load_dwordx2 s[48:49], s[0:1], 64")
    k("s_load_dwordx2 s[50:51], s[0:1], 0")
    RB = 4 if CFG["rmap"] else 16
    k(f"s_bfe_u32 s{sISS}, s{sHEAD}, {0x10002 if CFG['rmap'] else 0x10004:#x}")
    PB = 1 if CFG["pmap"] else 8
    if CFG["pmap"]:
        k(f"s_and_b32 s{sKH}, s{sHEAD}, 1")
        k(f"s_bfe_u32 s{sNT}, s{sHEAD}, 0x30001")
    else:
        k(f"s_bfe_u32 s{sKH}, s{sHEAD}, 0x10003")
        if CFG["rmap"]:
            k(f"s_lshr_b32 s{sNT}, s{sHEAD}, 4")
            k(f"s_lshl_b32 s{sNT}, s{sNT}, 2")
            k(f"s_and_b32 s3, s{sHEAD}, 3")
            k(f"s_add_u32 s{sNT}, s{sNT}, s3")
        else:
            k(f"s_and_b32 s{sNT}, s{sHEAD}, 7")
    k(f"s_lshl_b32 s{sT0}, s{sW}, 14")
    k(f"v_lshlrev_b32 v7, 11, v{vg}")
    k(f"v_add_u32 v7, s{sT0}, v7")
    for i in range(2):
        k(f"v_add_u32 v8, {4*i}, v{vg}")
        k(f"v_lshlrev_b32 v8, 1, v8")
        k(f"v_xor_b32 v8, v8, v{v15}")
        k(f"v_lshl_add_u32 v8, v8, 4, v7")
        k(f"v_add_u32 v{vD[i]}, {i*(8192-1024)}, v8")
    k(f"s_mov_b32 s{sSOA}, 0")
    k(f"s_mov_b32 s{sSOW}, 0")
    k(f"s_cmp_eq_u32 s{sISS}, 1")
    k.csel2(sNK, 128, 112)
    k(f"s_cselect_b32 s{sLAST}, 7, 6")
    k.csel2(60, O_OFF, H_OFF)
    k.csel2(61, O_SZ, H_SZ)
    k.csel2(62, 8388608, 7340032)
    k("s_waitcnt lgkmcnt(0)")
    k("s_cselect_b32 s4, s4, s6")
    k("s_cselect_b32 s5, s5, s7")
    k(f"s_mul_i32 s{sT0}, s{sKH}, s{sNK}")
    k(f"s_lshl_b32 s3, s{sT0}, 15")
    k(f"s_lshl_b32 s{sT1}, s{sNT}, 8")
    k(f"s_add_u32 s3, s3, s{sT1}")
    k(f"s_sub_u32 s62, s62, s3")
    k.srd(SWT, 4, soff="s3", nrec="s62")

    xload = lambda st, mb: f"buffer_load_dwordx4 {vr(XR(st,mb),4)}, v{vX[mb]}, s[{SA}:{SA+3}], s{sSOA} offen offset:{(st&3)*1024} sc1"
    dw = lambda i: f"buffer_load_dwordx4 v{vD[i]}, s[{SWT}:{SWT+3}], s{sSOW} offen offset:{i*1024} lds"
    m0w = lambda slot: f"s_add_u32 m0, s{sW2K}, {slot*8192}"
    advw = f"s_add_u32 s{sSOW}, s{sSOW}, {32*2048}"
    adva = f"s_add_u32 s{sSOA}, s{sSOA}, 4096"
    vmem = []
    for st in range(LA):
        vmem += [[m0w(st), "s_nop 0", dw(0)], [dw(1), advw]]
    k2 = K("tmp")
    k2(f"s_mul_i32 s3, s{sM16}, s{sNK}")
    k2(f"s_lshr_b32 s{sT0}, s{sT0}, 1")
    k2(f"s_add_u32 s3, s3, s{sT0}")
    k2(f"s_lshl_b32 s3, s3, 10")
    k2(f"s_sub_u32 s61, s61, s3")
    k2(f"s_add_u32 s3, s3, s60")
    k2.srd(SA, 34, soff="s3", nrec="s61")
    k2(f"s_lshl_b32 s62, s{sKH}, 1")
    for j in range(4):
        k2(f"s_xor_b32 s{sT0}, s62, {j}")
        k2(f"s_mul_i32 s{sT0}, s{sT0}, s{sNK}")
        k2(f"s_lshl_b32 s{sT0}, s{sT0}, 10")
        k2(f"v_add_u32 v{vX[j]}, s{sT0}, v{vL16}")
    k2(f"v_lshlrev_b32 v7, 11, v{v15}")
    k2(f"v_lshl_add_u32 v7, v{vg}, 4, v7")
    k2(f"s_add_u32 s3, s{sM16}, s62")
    k2(f"s_lshl_b32 s3, s3, 15")
    k2(f"s_lshl_b32 s{sT1}, s{sNT}, 8")
    k2(f"s_add_u32 s3, s3, s{sT1}")
    k2(f"v_add_u32 v{vXo[0]}, s3, v7")
    k2(f"v_add_u32 v{vXo[1]}, 32768, v{vXo[0]}")
    k2(f"v_lshl_add_u32 v7, v{vg}, 2, v{vrr}")
    k2(f"v_lshlrev_b32 v7, 8, v7")
    k2(f"v_lshl_add_u32 v7, v{vc}, 3, v7")
    k2(f"v_and_b32 v9, 1, v{vg}")
    k2(f"v_lshl_add_u32 v9, v9, 2, v{vrr}")
    for nb in range(8):
        k2(f"v_xor_b32 v8, {nb}, v9")
        k2(f"v_lshl_add_u32 v{vWrd[nb]}, v8, 5, v7")
    for i in range(128):
        k2(f"v_accvgpr_write_b32 a{i}, 0")
    k2(f"s_lshl_b32 s3, s{sOWN}, 6")
    k2(f"s_lshl_b32 s{sT1}, s{sW}, 14")
    k2(f"s_add_u32 s3, s3, s{sT1}")
    k2.srd(SE, 34, const=E_OFF, soff="s3", nrec=16384)
    k2(f"s_xor_b32 s{sT0}, s3, {PB << 16}")
    k2.srd(SEP, 34, const=E_OFF, soff=f"s{sT0}", nrec=8192)
    k2(f"s_xor_b32 s{sT0}, s3, {RB << 16}")
    k2.srd(SG, 34, const=E_OFF + 8192, soff=f"s{sT0}", nrec=8192)
    k2(f"s_lshl_b32 s{sT1}, s{sISS}, 22")
    k2.srd(SXI, 50, nrec=f"s{sT1}")
    k2.srd(SOU, 48, nrec=2048 * 2048)
    k2(f"s_lshl_b32 s3, s{sQB}, 15")
    k2(f"s_lshl_b32 s{sT1}, s{sKH}, 14")
    k2(f"s_add_u32 s3, s3, s{sT1}")
    k2(f"s_lshl_b32 s{sT1}, s{sISS}, 7")
    k2(f"s_add_u32 s3, s3, s{sT1}")
    k2(f"v_lshlrev_b32 v26, 10, v{v15}")
    k2(f"v_add_u32 v26, s3, v26")
    for x in k2.L: k(x.strip())
    k("s_waitcnt vmcnt(0)")
    raise_flag(k, "k_o_pub", F_O)
    k.stamp(8)
    for grp in vmem:
        for x in grp: k(x)
    k(f"s_mul_i32 s62, s{sISS}, {0xf - 0xffff}")
    k("s_add_u32 s62, s62, 0xffff")
    k(f"s_cmp_eq_u32 s{sW}, 0")
    k("s_cbranch_scc0 k_dep_seen")
    k("s_mov_b32 s3, 0")
    k.lab("k_dep_wait")
    k(f"global_load_dword v27, v26, s[98:99] offset:{F_H*128} sc1")
    k("s_waitcnt vmcnt(0)")
    k(f"v_cmp_ne_u32 vcc, s{sNONCE}, v27")
    k("s_add_u32 s3, s3, 1")
    k("s_and_b32 s63, vcc_lo, s62")
    k("s_cbranch_scc0 k_dep_seen")
    k("s_cmp_gt_u32 s3, 0x40000")
    k("s_cbranch_scc0 k_dep_wait")
    k.lab("k_dep_seen")
    k("s_waitcnt vmcnt(0)")
    k("s_barrier")
    k.stamp(9)
    NV = 4 + 6 * (LA - 2)
    k(f"global_load_dword v27, v26, s[98:99] offset:{F_H*128} sc1")
    for st in range(LA):
        for mb in range(4): k(xload(st, mb))
        if (st & 3) == 3: k(adva)
    k("s_mov_b32 s3, 0x40000000")
    for i in range(NV - 4 * (LA - 1)):
        k(f"buffer_load_dword v31, v{vL16}, s[{SA}:{SA+3}], s3 offen")
    k(f"v_lshlrev_b32 v7, 11, v{v15}")
    k(f"v_sub_u32 v7, v{vXo[0]}, v7")
    k(f"v_lshlrev_b32 v8, 4, v{vg}")
    k(f"v_sub_u32 v7, v7, v8")
    k(f"v_lshl_add_u32 v7, v{vg}, 11, v7")
    k(f"s_mov_b32 s96, {16*2048}")
    k(f"s_lshl_b32 s97, s{sW}, 13")
    k(f"s_add_u32 s97, s97, 65536")
    for p in range(4):
        k(f"v_add_u32 v8, {4*p}, v{vg}")
        k(f"v_xor_b32 v8, v8, v{v15}")
        k(f"v_lshl_add_u32 v8, v8, 4, v7")
        k(f"v_add_u32 v{224+p}, {p*(8192-1024)}, v8")
        k(f"v_accvgpr_write_b32 a{128+p}, v{224+p}")
    k(f"s_xor_b32 s3, s{sOWN}, {PB << 10}")
    k(f"v_mov_b32 v28, s3")
    k(f"s_xor_b32 s3, s{sOWN}, {RB << 10}")
    k(f"v_mov_b32 v29, s3")

    def wreads(slot, st):
        return [f"ds_read_b64_tr_b16 {vr(WF(st,nb)+2*q2,2)}, v{vWrd[nb]} offset:{slot*8192+q2*4096}"
                for nb in range(8) for q2 in range(2)]

    def mfmas(u):
        return [MFMA(ar(acc(nb, mb), 4), vr(WF(u & 1, nb), 4), vr(XR(u, mb), 4), ar(acc(nb, mb), 4))
                for mb in range(4) for nb in range(8)]

    for r in wreads(0, 0): k(r)
    k(f"s_mov_b32 s{sCNT}, 0")
    k.lab("k_g2_loop")
    for u in range(8):
        k(f"s_waitcnt vmcnt({NV}) lgkmcnt(0)")
        if u == 8 - LA:
            k(f"s_add_u32 s3, s{sCNT}, 1")
            k("s_lshr_b32 s3, s3, 1")
            k("s_lshl_b32 s3, s3, 2")
            k("s_lshl_b32 s62, 15, s3")
            k(f"v_cmp_ne_u32 vcc, s{sNONCE}, v27")
            k("s_mov_b32 s3, 0")
            k("s_and_b32 s63, vcc_lo, s62")
            k("s_cbranch_scc0 k_grp_ok")
            k.lab("k_grp_wait")
            k(f"global_load_dword v27, v26, s[98:99] offset:{F_H*128} sc1")
            k("s_waitcnt vmcnt(0)")
            k(f"v_cmp_ne_u32 vcc, s{sNONCE}, v27")
            k("s_add_u32 s3, s3, 1")
            k("s_and_b32 s63, vcc_lo, s62")
            k("s_cbranch_scc0 k_grp_ok")
            k("s_cmp_gt_u32 s3, 0x40000")
            k("s_cbranch_scc0 k_grp_wait")
            k.lab("k_grp_ok")
        k("s_barrier")
        fill = {}
        if u == (8 - 2 * LA) % 8:
            add_fill(fill, 29, f"global_load_dword v27, v26, s[98:99] offset:{F_H*128} sc1")
        t = (u + LA) & 7
        vg_ = [11, 16, 21, 26]
        add_fill(fill, 0, m0w(t))
        add_fill(fill, 1, dw(0)); add_fill(fill, 6, dw(1)); add_fill(fill, 7, advw)
        for mb in range(4): add_fill(fill, vg_[mb], xload(t, mb))
        if (t & 3) == 3: add_fill(fill, 31, adva)
        slots = [g for g in range(32) if g not in [1, 6] + vg_]
        for r, g in zip(wreads((u + 1) & 7, (u + 1) & 1), slots): add_fill(fill, g, r)
        weave(k, mfmas(u), fill)
    k(f"s_add_u32 s{sCNT}, s{sCNT}, 1")
    k(f"s_cmp_lt_u32 s{sCNT}, s{sLAST}")
    k("s_cbranch_scc1 k_g2_loop")
    DS = CFG["g2ds"]
    for i in range(1, 4):
        k(f"s_mov_b32 s{92+i}, {4096*i}")
    so4 = lambda i: "0" if i == 0 else f"s{92+i}"
    hm = lambda u, mbs: [MFMA(ar(acc(nb, mb), 4), vr(WF(u & 1, nb), 4), vr(XR(u, mb), 4), ar(acc(nb, mb), 4))
                         for mb in mbs for nb in range(8)]
    q = []
    for st in range(LA): q += [("W", st)] * 2 + [("K", st)] * 2 + [("S", st)] * 2
    pend = []
    for st in range(LA, 8):
        pend += [([m0w(st)], dw(0), [], ("W", st)), ([], dw(1), [advw], ("W", st)),
                 ([], xload(st, 2), [], ("S", st)), ([], xload(st, 3), [], ("S", st))]
        if st - LA < DS:
            pend += [([], xload(st, mb), [], ("K", st)) for mb in range(2)]
    pend += [([], xload(st, mb), [], ("K", st)) for st in range(LA + DS, 8) for mb in range(2)]
    for u in range(8):
        full = u < DS
        tags = [("S", u)] + ([("K", u)] if full else []) + ([("W", u + 1)] if u < 7 else [])
        need = [n for n, e in enumerate(q) if e in tags]
        k(f"s_waitcnt vmcnt({len(q) - 1 - max(need)}) lgkmcnt({0 if u <= DS else 8})")
        if u < 7: k("s_barrier")
        fill = {}
        pos = [1, 6, 11, 16, 21, 26] if full else [1, 5, 9, 13]
        for g in pos:
            if not pend: break
            pre, ins, post, tag = pend.pop(0)
            for x in pre: add_fill(fill, g - 1, x)
            add_fill(fill, g, ins)
            for x in post: add_fill(fill, g + 1, x)
            q.append(tag)
        nxt = u + 1 if u < 7 else DS
        rd = wreads(nxt, (u + 1) & 1)
        if full:
            for r, g in zip(rd, [g for g in range(32) if g not in pos]): add_fill(fill, g, r)
            weave(k, mfmas(u), fill)
        else:
            for g, r in enumerate(rd): add_fill(fill, g, r)
            add_fill(fill, 3, "s_waitcnt lgkmcnt(4)")
            if u >= 6:
                add_fill(fill, 0, f"s_add_u32 m0, s97, {(u-6)*4096}")
                for p in range(4):
                    add_fill(fill, 1 + 4 * p, f"buffer_load_dwordx4 v{224+p}, s[{SXI}:{SXI+3}], {'s96' if u == 7 else '0'} offen offset:{p*1024} lds")
            if u == 7:
                add_fill(fill, 15, f"global_load_dword v30, v29, s[98:99] offset:{F_G*128} sc1")
            weave(k, hm(u, (2, 3)), fill)
    assert not pend and DS % 2 == 0
    work = []
    RR = lambda i: XR(4 + (i >> 2), 2) + (i & 3) * 2
    for h in range(2):
        for i in range(16):
            work += [f"v_accvgpr_read_b32 v{RR(i)}, a{64+32*h+2*i}", f"v_accvgpr_read_b32 v{RR(i)+1}, a{65+32*h+2*i}"]
        for i in range(16):
            U = XR(2 * h + (i >> 3), 2) + (i & 7)
            work.append(f"v_cvt_pk_bf16_f32 v{U}, v{RR(i)}, v{RR(i)+1}")
            if (i & 3) == 3:
                if h == 0 and i == 3: work.append("s_waitcnt vmcnt(9)")
                work.append(f"buffer_store_dwordx4 {vr(U-3,4)}, v{vL16}, s[{SE}:{SE+3}], {so4(h)} offen offset:{(i>>2)*1024} sc1")
    for u in range(DS, 8):
        k("s_waitcnt lgkmcnt(8)")
        fill = {}
        if u < 7:
            for g, r in enumerate(wreads(u + 1, (u + 1) & 1)): add_fill(fill, g, r)
        add_fill(fill, 3, f"s_waitcnt lgkmcnt({4 if u < 7 else 0})")
        for g in range(16):
            n = 0
            while work and n < (2 if DS < 4 else 3):
                x = work.pop(0)
                if x.startswith("buffer"): fill[g] = [x] + fill.get(g, []) if n == 0 else fill.get(g, []) + [x]
                else: add_fill(fill, g, x)
                n += 1
        weave(k, hm(u, (0, 1)), fill)
    assert not work
    k.stamp(10)

    T = 32
    k(f"s_mov_b32 s{sC}, {f32(-LOG2E)}")
    k(f"s_mov_b32 s{sC+1}, {f32(-LOG2E)}")
    k(f"v_lshrrev_b32 v7, 1, v{vg}")
    k(f"v_xor_b32 v7, v7, v{v15}")
    k(f"v_lshlrev_b32 v7, 4, v7")
    k(f"v_lshl_add_u32 v7, v{v15}, 8, v7")
    k(f"v_and_b32 v8, 1, v{vg}")
    k(f"v_lshl_add_u32 v7, v8, 3, v7")
    k(f"v_add_u32 v7, s97, v7")
    for nb in range(8):
        k(f"v_xor_b32 v{10+nb}, {nb*32}, v7")
    k("s_waitcnt vmcnt(0)")
    for j in range(2):
        for nb in range(8):
            k(f"ds_read_b64 {vr(X+(j*8+nb)*2,2)}, v{10+nb} offset:{j*4096}")
    raise_flag(k, "k_p_pub", F_P)
    k(f"s_cmp_eq_u32 s{sISS}, 1")
    k("s_cbranch_scc0 k_no_g")
    k(f"v_cmp_ne_u32 vcc, s{sNONCE}, v30")
    k("s_cbranch_vccz k_g_wait_ok")
    spin(k, "k_g_wait", 29, 30, F_G * 128)
    for i in range(8):
        k(f"buffer_load_dwordx4 {vr(96+4*i,4)}, v{vL16}, s[{SG}:{SG+3}], {so4(i>>2)} offen offset:{(i&3)*1024} sc1")
    k.lab("k_no_g")
    k(f"global_load_dword v30, v28, s[98:99] offset:{F_P*128} sc1")
    for i in range(64):
        k(f"v_accvgpr_read_b32 v{T+i}, a{i}")
    k("s_waitcnt lgkmcnt(0)")
    for i in range(32):
        k(f"v_lshlrev_b32 v{160+2*i}, 16, v{X+i}")
        k(f"v_and_b32 v{161+2*i}, 0xffff0000, v{X+i}")
    spin(k, "k_p_wait", 28, 30, F_P * 128, first=False)
    for i in range(8):
        k(f"buffer_load_dwordx4 {vr(128+4*i,4)}, v{vL16}, s[{SEP}:{SEP+3}], {so4(i>>2)} offen offset:{(i&3)*1024} sc1")
    k(f"s_cmp_eq_u32 s{sISS}, 1")
    k("s_cbranch_scc1 k_epi_s")
    for q in range(4):
        k(f"s_waitcnt vmcnt({6-2*q})")
        for i in range(8 * q, 8 * q + 8):
            k(f"v_lshlrev_b32 v8, 16, v{128+i}")
            k(f"v_and_b32 v9, 0xffff0000, v{128+i}")
            k(f"v_pk_add_f32 {vr(T+2*i,2)}, {vr(T+2*i,2)}, v[8:9]")
    for j in range(2):
        silu_n(k, list(range(T + 32 * j, T + 32 * j + 32)), list(range(96, 128)), sC)
        for i in range(16):
            k(f"v_cvt_pk_bf16_f32 v{160+16*j+i}, v{T+32*j+2*i}, v{T+32*j+2*i+1}")
        for c in range(4):
            k(f"buffer_store_dwordx4 {vr(160+16*j+4*c,4)}, v{vL16}, s[{SE}:{SE+3}], {so4(2+j)} offen offset:{c*1024} sc1")
    k("s_waitcnt vmcnt(0)")
    raise_flag(k, "k_g_pub", F_G)
    k.stamp_out(1, 34, sW)
    k("s_endpgm")
    k.lab("k_epi_s")
    for i in range(32):
        k(f"v_lshlrev_b32 v8, 16, v{96+i}")
        k(f"v_and_b32 v9, 0xffff0000, v{96+i}")
        k(f"v_pk_fma_f32 {vr(160+2*i,2)}, {vr(T+2*i,2)}, v[8:9], {vr(160+2*i,2)}")
        k(f"v_pk_mul_f32 {vr(T+2*i,2)}, v[8:9], 1.0 op_sel_hi:[1,0]")
    for j in range(2):
        U = 224 + 16 * j
        for q in range(2):
            k(f"s_waitcnt vmcnt({6-4*j-2*q})")
            for i in range(16 * j + 8 * q, 16 * j + 8 * q + 8):
                k(f"v_lshlrev_b32 v8, 16, v{128+i}")
                k(f"v_and_b32 v9, 0xffff0000, v{128+i}")
                k(f"v_pk_fma_f32 {vr(160+2*i,2)}, v[8:9], {vr(T+2*i,2)}, {vr(160+2*i,2)}")
                k(f"v_cvt_pk_bf16_f32 v{224+i}, v{160+2*i}, v{161+2*i}")
        for nb in range(8):
            k(f"ds_write_b64 v{10+nb}, {vr(U+2*nb,2)} offset:{j*4096}")
    for p in range(4):
        k(f"v_accvgpr_read_b32 v{20+p}, a{128+p}")
    k(f"v_add_u32 v7, s97, v{vL16}")
    k("s_waitcnt lgkmcnt(0)")
    for p in range(8):
        k(f"ds_read_b128 {vr(32+4*p,4)}, v7 offset:{p*1024}")
    for p in range(8):
        k(f"s_waitcnt lgkmcnt({7-p})")
        k(f"buffer_store_dwordx4 {vr(32+4*p,4)}, v{20+(p&3)}, s[{SOU}:{SOU+3}], {'s96' if p >= 4 else '0'} offen offset:{(p&3)*1024} sc1")
    k.stamp_out(1, 34, sW)
    k.lab("k_done")
    k("s_endpgm")
    k.lab("code_end")


HEADER = """; Kernarg layout (88 bytes): A_x@0 A_k_cache@8 A_v_cache@16 A_wq@24 A_wo@32 B_x@40 B_w1@48 B_w2@56 out@64 dbg@72 ws@80
"""


def main(path):
    k = K(NAME + "_kernel")
    part_a(k)
    part_b(k)
    out = [HEADER.rstrip("\n")]
    if CFG["aslist"]:
        out.append(f"; @launch kernel={k.name} grid=(256,1,1) block=(256,1,1) lds=163840")
    else:
        out.append(f"; @launch grid=(256,1,1) block=(256,1,1) lds=163840")
    out.append('.amdgcn_target "amdgcn-amd-amdhsa--gfx950"')
    out.append(".text")
    out.append(k.text())
    out.append('.section .rodata,"a"')
    out.append(k.kd(512, 102, 256))
    open(path, "w").write("\n".join(out) + "\n")


if __name__ == "__main__":
    path = f"cdna_kernels/{NAME}.s"
    for a in sys.argv[1:]:
        if "=" in a:
            kk, v = a.split("=")
            if kk == "o":
                path = v
            else:
                CFG[kk] = int(v)
    main(path)
```

```python
import sys, struct, math

NAME = "recurrent_scan__mha_block_cached__dense_activation_silu__prompt"

XN_OFF = 0
H_OFF = 4 << 20
O_OFF = 20 << 20
E_OFF = 96 << 20
FL_OFF = 60 << 20
EP_OFF = 256 << 10
XN_SZ, H_SZ, O_SZ = 4 << 20, 128 * 112 * 1024, 16 << 20

LOG2E = 1.4426950408889634
QSCALE = (128 ** -0.5) * LOG2E


def f32(x):
    return "0x%08x" % struct.unpack("<I", struct.pack("<f", x))[0]


CFG = dict(slow_only=0, stamps=0, pf=1, force_slow=0, g2la=4, cpf=1, g2ds=0, margin=96, pk=1, aslist=1, nw0=12, accpre=0, lm=4, pmap=0, rmap=0, rank=4, rkt=5)
ST_OFF = 64 << 20


class K:
    def __init__(self, name):
        self.name = name
        self.L = []

    def __call__(self, s):
        self.L.append("    " + s)

    def lab(self, s):
        self.L.append(s + ":")

    def head(self):
        n = self.name
        return f".globl {n}\n.p2align 8\n.type {n},@function\n{n}:"

    def text(self):
        return self.head() + "\n" + "\n".join(self.L)

    def kd(self, vgpr, sgpr, accum):
        return f""".p2align 6
.amdhsa_kernel {self.name}
  .amdhsa_next_free_vgpr {vgpr}
  .amdhsa_next_free_sgpr {sgpr}
  .amdhsa_accum_offset {accum}
  .amdhsa_group_segment_fixed_size 0
  .amdhsa_kernarg_size 88
  .amdhsa_user_sgpr_count 2
  .amdhsa_user_sgpr_kernarg_segment_ptr 1
  .amdhsa_system_sgpr_workgroup_id_x 1
.end_amdhsa_kernel"""

    def stamp(self, i, real=False, grp=1):
        if CFG["stamps"] and (CFG["stamps"] == grp or i in (0, 1, 6, 7)):
            self(f"{'s_memrealtime' if real else 's_memtime'} s[{64+2*i}:{65+2*i}]")

    def stamp_out(self, kidx, sws, sw):
        if not CFG["stamps"]:
            return
        self("s_waitcnt vmcnt(0)")
        self.stamp(6)
        self.stamp(7, True)
        self("s_waitcnt lgkmcnt(0)")
        self(f"s_lshl_b32 s43, s2, 2")
        self(f"s_add_u32 s43, s43, s{sw}")
        self(f"s_lshl_b32 s43, s43, 6")
        self(f"s_add_u32 s43, s43, {ST_OFF + kidx*65536}")
        self(f"s_add_u32 s40, s{sws}, s43")
        self(f"s_addc_u32 s41, s{sws+1}, 0")
        self("s_getreg_b32 s42, hwreg(HW_REG_XCC_ID)")
        self("s_mov_b32 s86, s42")
        self("v_mov_b32 v186, 0")
        for h in range(3):
            for i in range(4):
                self(f"v_mov_b32 v{188+i}, s{64+2*(4*h+i)}")
            self(f"global_store_dwordx4 v186, v[188:191], s[40:41] offset:{16*h}")
            self("s_nop 1")

    def code_pf_setup(self, sp, start, end, vo, vt, swave):
        lab = f"{self.name}_pc"
        self(f"s_getpc_b64 s[{sp}:{sp+1}]")
        self.lab(lab)
        if start is None:
            start = lab
        else:
            self(f"s_add_u32 s{sp}, s{sp}, {start}-{lab}")
            self(f"s_addc_u32 s{sp+1}, s{sp+1}, 0")
        self(f"s_and_b32 s{sp}, s{sp}, -16")
        self(f"v_and_b32 v{vo}, 0xff, v0")
        self(f"v_lshlrev_b32 v{vo}, 4, v{vo}")
        self(f"s_lshr_b32 s{swave}, s2, 3")
        self(f"s_lshl_b32 s{swave}, s{swave}, 12")
        self(f"v_add_u32 v{vo}, s{swave}, v{vo}")
        self(f"v_min_u32 v{vo}, ({end}-{start}-16)&~15, v{vo}")
        return f"global_load_dwordx4 v[{vt}:{vt+3}], v{vo}, s[{sp}:{sp+1}]"

    def csel2(self, d, a, b):
        self(f"s_mov_b32 s{d}, {b}")
        self(f"s_cselect_b32 s{d}, {a}, s{d}")

    def srd(self, d, p, const=0, soff=None, nrec=0):
        a = self
        if const:
            a(f"s_add_u32 s{d}, s{p}, {const}")
            a(f"s_addc_u32 s{d+1}, s{p+1}, 0")
        else:
            a(f"s_mov_b32 s{d}, s{p}")
            a(f"s_mov_b32 s{d+1}, s{p+1}")
        if soff is not None:
            a(f"s_add_u32 s{d}, s{d}, {soff}")
            a(f"s_addc_u32 s{d+1}, s{d+1}, 0")
        a(f"s_and_b32 s{d+1}, s{d+1}, 0xffff")
        a(f"s_mov_b32 s{d+2}, {nrec}")
        a(f"s_mov_b32 s{d+3}, 0x20000")


def vr(b, n):
    return f"v[{b}:{b+n-1}]"


def ar(b, n):
    return f"a[{b}:{b+n-1}]"


def MFMA(d, a, b, c):
    return f"v_mfma_f32_16x16x32_bf16 {d}, {a}, {b}, {c}"


def weave(k, mfmas, fill):
    for i, m in enumerate(mfmas):
        k(m)
        for s in fill.get(i, []):
            k(s)


def interleave(k, groups, rest, skip):
    per = -(-len(rest) // (len(groups) - skip))
    pos = 0
    for n, grp in enumerate(groups):
        for x in grp: k(x)
        if n >= skip:
            end = min(len(rest), pos + per)
            while end < len(rest) and rest[end].startswith("s_addc"): end += 1
            for x in rest[pos:end]: k(x)
            pos = end
    for x in rest[pos:]: k(x)


def add_fill(fill, i, s):
    fill.setdefault(i, []).append(s)


def lane_fields(k, vl, vrr, vc, vg, v15, sw):
    k(f"v_lshrrev_b32 v{vg}, 6, v0")
    k(f"v_and_b32 v{vl}, 63, v0")
    k(f"v_bfe_u32 v{vrr}, v0, 2, 2")
    k(f"v_readfirstlane_b32 s{sw}, v{vg}")
    k(f"v_and_b32 v{vc}, 3, v0")
    k(f"v_and_b32 v{v15}, 15, v0")
    k(f"v_bfe_u32 v{vg}, v0, 4, 2")


def silu_n(k, regs, temps, sneg):
    P = list(zip(regs, temps))
    if CFG["pk"]:
        for a, t in P[::2]: k(f"v_pk_mul_f32 {vr(t,2)}, {vr(a,2)}, s[{sneg}:{sneg+1}]")
        for a, t in P: k(f"v_exp_f32 v{t}, v{t}")
        for a, t in P[::2]: k(f"v_pk_add_f32 {vr(t,2)}, {vr(t,2)}, 1.0 op_sel_hi:[1,0]")
        for a, t in P: k(f"v_rcp_f32 v{t}, v{t}")
        for a, t in P[::2]: k(f"v_pk_mul_f32 {vr(a,2)}, {vr(a,2)}, {vr(t,2)}")
        return
    for a, t in P: k(f"v_mul_f32 v{t}, s{sneg}, v{a}")
    for a, t in P: k(f"v_exp_f32 v{t}, v{t}")
    for a, t in P: k(f"v_add_f32 v{t}, 1.0, v{t}")
    for a, t in P: k(f"v_rcp_f32 v{t}, v{t}")
    for a, t in P: k(f"v_mul_f32 v{a}, v{a}, v{t}")


def reduce_g(k, op, regs, temps):
    for sw in ("v_permlane16_swap_b32", "v_permlane32_swap_b32"):
        for a, t in zip(regs, temps): k(f"v_mov_b32 v{t}, v{a}")
        k("s_nop 1")
        for a, t in zip(regs, temps): k(f"{sw} v{a}, v{t}")
        k("s_nop 1")
        for a, t in zip(regs, temps): k(f"{op} v{a}, v{a}, v{t}")


LTHRESH = 2.0 ** 60
sW, sHEAD, sQB, sW2K, sW4K, sM16, sNONCE, sOWN = 20, 21, 22, 23, 25, 33, 100, 101
vl, vrr, vc, vg, v15, vL16 = 1, 2, 3, 4, 5, 6
F_LN, F_H, F_O, F_P, F_G = 0, 1, 2, 3, 4


def raise_flag(k, name, slot, own=None):
    k("s_barrier")
    k(f"s_cmp_eq_u32 s{sW}, 0")
    k(f"s_cbranch_scc0 {name}")
    k(f"v_mov_b32 v7, s{own or sOWN}")
    k(f"v_mov_b32 v8, s{sNONCE}")
    k("s_mov_b64 exec, 1")
    k(f"global_store_dword v7, v8, s[98:99] offset:{slot*128} sc1")
    k("s_mov_b64 exec, -1")
    k.lab(name)


def spin(k, name, vflag, vdst, off, first=True):
    k("s_mov_b32 s3, 0")
    if first:
        k(f"global_load_dword v{vdst}, v{vflag}, s[98:99] offset:{off} sc1")
    k.lab(name)
    k("s_waitcnt vmcnt(0)")
    k(f"v_cmp_ne_u32 vcc, s{sNONCE}, v{vdst}")
    k("s_add_u32 s3, s3, 1")
    k(f"s_cbranch_vccz {name}_ok")
    k("s_cmp_gt_u32 s3, 0x40000")
    k(f"s_cbranch_scc1 {name}_ok")
    k(f"global_load_dword v{vdst}, v{vflag}, s[98:99] offset:{off} sc1")
    k(f"s_branch {name}")
    k.lab(f"{name}_ok")


def ln_rows(k, nyoung, vst, sxn):
    D, F, A, T = 96, 112, 144, 152
    k(f"s_mov_b32 s32, {f32(1.0/1024)}")
    for i in range(4):
        k(f"s_waitcnt vmcnt({3-i+nyoung})")
        if i == 3: k.stamp(3, grp=2)
        for r in range(4):
            k(f"v_lshlrev_b32 v{F+8*i+2*r}, 16, v{D+4*i+r}")
            k(f"v_and_b32 v{F+1+8*i+2*r}, 0xffff0000, v{D+4*i+r}")

    def reduce32(s, t):
        for p in ("quad_perm:[1,0,3,2]", "quad_perm:[2,3,0,1]", "row_half_mirror", "row_mirror"):
            k("s_nop 1")
            k(f"v_add_f32_dpp v{s}, v{s}, v{s} {p} row_mask:0xf bank_mask:0xf")
        k(f"v_mov_b32 v{t}, v{s}")
        k("s_nop 1")
        k(f"v_permlane16_swap_b32 v{s}, v{t}")
        k("s_nop 1")
        k(f"v_add_f32 v{s}, v{s}, v{t}")

    for i in range(2):
        k(f"v_pk_add_f32 {vr(A+2*i,2)}, {vr(F+2*i,2)}, {vr(F+4+2*i,2)}")
    for j in range(8, 32, 4):
        for i in range(2):
            k(f"v_pk_add_f32 {vr(A+2*i,2)}, {vr(A+2*i,2)}, {vr(F+j+2*i,2)}")
    k(f"v_pk_add_f32 {vr(A,2)}, {vr(A,2)}, {vr(A+2,2)}")
    k(f"v_add_f32 v{A}, v{A}, v{A+1}")
    reduce32(A, A + 1)
    k(f"v_mul_f32 v{A}, s32, v{A}")
    V = A + 2
    for j in range(0, 32, 2):
        t = T + (j & 2)
        k(f"v_pk_add_f32 {vr(t,2)}, {vr(F+j,2)}, {vr(A,2)} op_sel_hi:[1,0] neg_lo:[0,1] neg_hi:[0,1]")
        if j < 4:
            k(f"v_pk_mul_f32 {vr(V+(j&2),2)}, {vr(t,2)}, {vr(t,2)}")
        else:
            k(f"v_pk_fma_f32 {vr(V+(j&2),2)}, {vr(t,2)}, {vr(t,2)}, {vr(V+(j&2),2)}")
    k(f"v_pk_add_f32 {vr(V,2)}, {vr(V,2)}, {vr(V+2,2)}")
    k(f"v_add_f32 v{V}, v{V}, v{V+1}")
    reduce32(V, V + 1)
    k(f"v_mul_f32 v{V}, s32, v{V}")
    k(f"v_cvt_pk_bf16_f32 v{A}, v{A}, v{V}")
    k(f"v_and_b32 v{V}, 0xffff0000, v{A}")
    k(f"v_lshlrev_b32 v{A}, 16, v{A}")
    k(f"v_add_f32 v{V}, {f32(1e-5)}, v{V}")
    k(f"v_cvt_pk_bf16_f32 v{V}, v{V}, v{V}")
    k(f"v_lshlrev_b32 v{V}, 16, v{V}")
    k(f"v_sqrt_f32 v{V}, v{V}")
    k("s_nop 0")
    k(f"v_cvt_pk_bf16_f32 v{V}, v{V}, v{V}")
    k(f"v_lshlrev_b32 v{V}, 16, v{V}")
    k(f"v_rcp_f32 v{V}, v{V}")
    k("s_mov_b32 s32, 4096")
    for j in range(0, 32, 2):
        k(f"v_pk_add_f32 {vr(F+j,2)}, {vr(F+j,2)}, {vr(A,2)} op_sel_hi:[1,0] neg_lo:[0,1] neg_hi:[0,1]")
    for i in range(4):
        for r in range(4):
            a = F + 8 * i + 2 * r
            k(f"v_pk_mul_f32 {vr(a,2)}, {vr(a,2)}, {vr(V,2)} op_sel_hi:[1,0]")
        for r in range(4):
            a = F + 8 * i + 2 * r
            k(f"v_cvt_pk_bf16_f32 v{D+4*i+r}, v{a}, v{a+1}")
        k(f"ds_write_b128 v{vst+3}, {vr(D+4*i,4)} offset:{4096*i}")
    k("s_waitcnt lgkmcnt(0)")
    k("s_barrier")
    for i in range(4):
        k(f"ds_read_b128 {vr(D+4*i,4)}, v{vst+4} offset:{1024*i}")
    for i in range(4):
        k(f"s_waitcnt lgkmcnt({3-i})")
        k(f"buffer_store_dwordx4 {vr(D+4*i,4)}, v{vst}, s[{sxn}:{sxn+3}], {'s32' if i >= 2 else '0'} offen offset:{(i&1)*2048} sc1")


def part_a(k):
    sSOW1, sSOX, sSOWQ, sCNT = 24, 26, 27, 28
    sT0, sT1, sC = 29, 32, 30
    SK, SV, SX, SO, SWQ, SW1, SH = 8, 12, 16, 36, 52, 56, 60
    sSOK, sSOV = 40, 41
    vWq = [10, 11, 12, 13]
    vW1 = list(range(14, 21))
    vDq, vD1 = [21, 22], [23, 24]
    vX = [25, 26, 27, 28]
    XR = lambda st, mb: 32 + st * 16 + mb * 4
    WF = lambda st, nb: 96 + st * 60 + nb * 4
    vKrd = [216, 217, 218, 219]
    vVrd = list(range(220, 228))
    vKdma = [228, 229, 230, 231]
    vVdma = [232, 233]
    acc = lambda nb, mb: (nb * 4 + mb) * 4
    KB, VB, WB = 0, 65536, 98304

    k("s_cmp_ge_u32 s2, 256")
    k("s_cbranch_scc1 k_done")
    k.stamp(0, True); k.stamp(1)
    k("s_load_dwordx2 s[42:43], s[0:1], 0")
    k("s_load_dwordx2 s[34:35], s[0:1], 80")
    k("s_load_dwordx4 s[4:7], s[0:1], 8")
    k("s_load_dwordx4 s[44:47], s[0:1], 24")
    k("s_load_dwordx4 s[48:51], s[0:1], 48")
    lane_fields(k, vl, vrr, vc, vg, v15, sW)
    k("s_and_b32 s3, s2, 7")
    k("s_lshl_b32 s3, s3, 2")
    k(f"s_lshr_b32 s{sT0}, s2, 6")
    k(f"s_add_u32 s{sHEAD}, s3, s{sT0}")
    k(f"s_bfe_u32 s{sQB}, s2, 0x30003")
    k(f"s_lshl_b32 s{sOWN}, s{sQB}, 5")
    k(f"s_add_u32 s{sOWN}, s{sOWN}, s{sHEAD}")
    k(f"s_lshl_b32 s3, s{sOWN}, 3")
    k("v_lshrrev_b32 v7, 5, v0")
    k("v_add_u32 v7, s3, v7")
    k("v_and_b32 v8, 31, v0")
    k("v_lshlrev_b32 v156, 11, v7")
    k("v_lshl_add_u32 v156, v8, 4, v156")
    k(f"s_lshl_b32 s{sOWN}, s{sOWN}, 10")
    k(f"s_lshl_b32 s3, s{sQB}, 7")
    k(f"s_add_u32 s3, s3, {EP_OFF}")
    k("v_mov_b32 v158, s3")
    k("s_waitcnt lgkmcnt(0)")
    k.srd(SV, 42, nrec=2048 * 2048)
    for i in range(4):
        k(f"buffer_load_dwordx4 {vr(96+4*i,4)}, v156, s[{SV}:{SV+3}], 0 offen offset:{512*i}")
    k(f"s_add_u32 s98, s34, {FL_OFF}")
    k(f"s_addc_u32 s99, s35, 0")
    k("global_load_dword v159, v158, s[98:99] sc1")
    k(k.code_pf_setup(42, None, "code_end", 234, 236, sT0))
    k("v_lshrrev_b32 v9, 5, v0")
    k("v_lshlrev_b32 v160, 4, v9")
    k("v_lshl_add_u32 v160, v8, 7, v160")
    k("v_and_b32 v161, 63, v0")
    k("v_lshlrev_b32 v161, 4, v161")
    k("v_lshrrev_b32 v9, 6, v0")
    k("v_lshl_add_u32 v161, v9, 12, v161")
    k(f"s_lshr_b32 s3, s{sOWN}, 11")
    k("s_lshl_b32 s3, s3, 15")
    k(f"s_and_b32 s{sT0}, s{sHEAD}, 1")
    k(f"s_lshl_b32 s{sT0}, s{sT0}, 7")
    k(f"s_add_u32 s3, s3, s{sT0}")
    k("v_lshlrev_b32 v157, 13, v9")
    k("v_add_u32 v157, s3, v157")
    k("v_bfe_u32 v9, v0, 5, 1")
    k("v_lshl_add_u32 v157, v9, 10, v157")
    k("v_bfe_u32 v9, v0, 3, 2")
    k("v_lshl_add_u32 v157, v9, 8, v157")
    k("v_and_b32 v9, 7, v0")
    k("v_lshl_add_u32 v157, v9, 4, v157")
    k.srd(SO, 34, const=XN_OFF, nrec=XN_SZ)
    k(f"s_lshl_b32 s{sW4K}, s{sW}, 12")
    k(f"s_lshl_b32 s{sW2K}, s{sW}, 11")
    k(f"v_lshlrev_b32 v{vL16}, 4, v{vl}")
    k(f"s_lshl_b32 s{sT0}, s{sW}, 3")
    k(f"v_add_u32 v7, s{sT0}, v{vg}")
    k(f"v_lshlrev_b32 v8, 2, v{vg}")
    k(f"v_xor_b32 v8, v8, v{v15}")
    k(f"v_lshlrev_b32 v9, 13, v7")
    k(f"v_lshl_add_u32 v{vDq[0]}, v8, 4, v9")
    k(f"v_add_u32 v{vDq[1]}, {4*8192-1024}, v{vDq[0]}")
    k(f"s_and_b32 s{sT0}, s{sW}, 1")
    k(f"s_lshl_b32 s{sT0}, s{sT0}, 2")
    k(f"v_or_b32 v8, s{sT0}, v{vg}")
    k(f"v_lshlrev_b32 v8, 1, v8")
    k(f"v_xor_b32 v8, v8, v{v15}")
    k(f"v_mul_u32_u24 v9, 7168, v7")
    k(f"v_lshl_add_u32 v9, v8, 4, v9")
    k(f"v_cmp_gt_u32 vcc, 14, v8")
    k(f"v_mov_b32 v8, 0x80000000")
    k("s_nop 0")
    k(f"v_cndmask_b32 v{vD1[0]}, v8, v9, vcc")
    k(f"v_add_u32 v{vD1[1]}, {4*7168-1024}, v{vD1[0]}")
    k(f"s_lshl_b32 s3, s{sHEAD}, 8")
    k(f"s_sub_u32 s{sT1}, {8 << 20}, s3")
    k.srd(SWQ, 44, soff="s3", nrec=f"s{sT1}")
    k(f"s_mul_i32 s3, s{sHEAD}, 224")
    k(f"s_sub_u32 s{sT1}, 7340032, s3")
    k.srd(SW1, 48, soff="s3", nrec=f"s{sT1}")
    k(f"s_mov_b32 s{sSOX}, 0")
    k(f"s_mov_b32 s{sSOWQ}, 0")
    k(f"s_mov_b32 s{sSOW1}, 0")
    PF, sPFS, sPFO, sPFC, sPFX, vPF = SH, 93, 94, 95, 96, 30
    k(f"s_cmp_lt_u32 s{sW}, 2")
    for i in range(3):
        k(f"s_cselect_b32 s{PF+i}, s{SWQ+i}, s{SW1+i}")
    k(f"s_mov_b32 s{PF+3}, 0x20000")
    k.csel2(sT0, 8192, 7168)
    k(f"s_lshl_b32 s{sPFS}, s{sT0}, 5")
    k(f"s_and_b32 s{sT1}, s{sW}, 1")
    k(f"s_lshl_b32 s{sT1}, s{sT1}, 4")
    k(f"v_lshrrev_b32 v7, 2, v{vl}")
    k(f"v_add_u32 v7, s{sT1}, v7")
    k(f"v_mul_lo_u32 v7, v7, s{sT0}")
    k(f"v_lshl_add_u32 v{vPF}, v{vc}, 6, v7")
    k(f"s_mul_i32 s{sPFX}, s{sPFS}, s{sQB}")
    k(f"s_lshl_b32 s{sPFO}, s{sPFS}, 3")
    k(f"s_sub_u32 s{sPFC}, 8, s{sQB}")
    pfl = f"buffer_load_dword v31, v{vPF}, s[{PF}:{PF+3}], s{sPFX} offen"
    pf_pre = [f"s_and_b32 s{sPFX}, s{sPFC}, 7", f"s_cselect_b32 s{sPFX}, 0x40000000, s{sPFO}"]
    pf_post = [f"s_add_u32 s{sPFO}, s{sPFO}, s{sPFS}", f"s_add_u32 s{sPFC}, s{sPFC}, 1"]

    def xload(st, mb, imm):
        return f"buffer_load_dwordx4 {vr(XR(st,mb),4)}, v{vX[mb]}, s[{SX}:{SX+3}], s{sSOX} offen offset:{imm} sc1"

    dq = lambda i: f"buffer_load_dwordx4 v{vDq[i]}, s[{SWQ}:{SWQ+3}], s{sSOWQ} offen offset:{i*1024} lds"
    d1 = lambda i: f"buffer_load_dwordx4 v{vD1[i]}, s[{SW1}:{SW1+3}], s{sSOW1} offen offset:{i*1024} lds"
    m0q = lambda slot: f"s_add_u32 m0, s{sW2K}, {WB+slot*16384}"
    m01 = lambda slot: f"s_add_u32 m0, s{sW2K}, {WB+slot*16384+8192}"
    advw = [f"s_add_u32 s{sSOWQ}, s{sSOWQ}, {32*8192}", f"s_add_u32 s{sSOW1}, s{sSOW1}, {32*7168}"]

    def wdma_grp(slot):
        return [[m0q(slot), "s_nop 0", dq(0)], [dq(1)], [m01(slot), "s_nop 0", d1(0)], [d1(1)] + advw]

    vmem = wdma_grp(0) + wdma_grp(1) + wdma_grp(2) + wdma_grp(3)
    NW0 = CFG["nw0"]
    for grp in vmem[:NW0]:
        for x in grp: k(x)
    vmem = vmem[NW0:] + [[pfl, f"s_mov_b32 s{sPFX}, 0x40000000"]]
    k(f"s_lshl_b32 s3, s{sHEAD}, 19")
    k(f"s_cmp_lt_u32 s{sW}, 2")
    k("s_cselect_b32 s44, s4, s6")
    k("s_cselect_b32 s45, s5, s7")
    k.srd(44, 44, soff="s3", nrec=524288)
    k(f"s_and_b32 s3, s{sW}, 1")
    k(f"s_lshl_b32 s48, s{sQB}, 1")
    k("s_add_u32 s48, s48, s3")
    k("s_lshl_b32 s48, s48, 10")
    k.stamp(2, grp=2)
    ln_rows(k, 2 + NW0, 157, SO)
    k.stamp(4, grp=2)
    k2 = K("tmp")
    k2(f"s_lshl_b32 s3, s{sQB}, 4")
    k2(f"s_lshl_b32 s{sT0}, s{sW}, 2")
    k2(f"s_add_u32 s{sM16}, s3, s{sT0}")
    k2(f"s_lshl_b32 s3, s{sM16}, 15")
    k2.srd(SX, 34, const=XN_OFF, soff="s3", nrec=4 * 32768)
    for mb in range(4):
        k2(f"v_add_u32 v{vX[mb]}, {mb*32768}, v{vL16}")
    k2(f"v_lshl_add_u32 v7, v{vg}, 3, v{vrr}")
    k2(f"v_lshlrev_b32 v7, 8, v7")
    k2(f"v_add_u32 v7, {WB}, v7")
    k2(f"v_lshl_add_u32 v8, v{vc}, 4, v7")
    for js in range(4):
        k2(f"v_xor_b32 v9, {js}, v{vrr}")
        k2(f"v_lshl_add_u32 v{vWq[js]}, v9, 6, v8")
    k2(f"v_lshl_add_u32 v8, v{vc}, 3, v7")
    k2(f"v_add_u32 v8, 8192, v8")
    k2(f"v_and_b32 v29, 1, v{vg}")
    k2(f"v_lshl_add_u32 v29, v29, 2, v{vrr}")
    k2(f"s_and_b32 s97, s{sHEAD}, 1")
    for n7 in range(7):
        if n7 < 6:
            k2(f"s_add_u32 s{sT0}, s97, {n7}")
        else:
            k2(f"s_mul_i32 s{sT0}, s97, -6")
            k2(f"s_add_u32 s{sT0}, s{sT0}, 6")
        k2(f"v_xor_b32 v9, s{sT0}, v29")
        k2(f"v_lshl_add_u32 v{vW1[n7]}, v9, 5, v8")
    k2(f"s_lshl_b32 s3, s{sHEAD}, 19")
    k2.srd(SK, 4, soff="s3", nrec=524288)
    k2.srd(SV, 6, soff="s3", nrec=524288)
    k2(f"v_lshlrev_b32 v7, 8, v{v15}")
    for js in range(4):
        k2(f"v_add_u32 v9, {4*js}, v{vg}")
        k2(f"v_xor_b32 v9, v9, v{v15}")
        k2(f"v_lshl_add_u32 v{vKrd[js]}, v9, 4, v7")
    k2(f"v_lshl_add_u32 v7, v{vg}, 2, v{vrr}")
    k2(f"v_lshlrev_b32 v7, 8, v7")
    k2(f"v_add_u32 v7, {VB}, v7")
    k2(f"v_lshl_add_u32 v7, v{vc}, 3, v7")
    for db in range(8):
        k2(f"v_xor_b32 v9, {db}, v29")
        k2(f"v_lshl_add_u32 v{vVrd[db]}, v9, 5, v7")
    k2(f"v_lshlrev_b32 v7, 8, v{vg}")
    k2(f"v_add_u32 v7, s{sW4K}, v7")
    for p in range(4):
        k2(f"v_add_u32 v9, {4*p}, v{vg}")
        k2(f"v_xor_b32 v9, v9, v{v15}")
        k2(f"v_lshl_add_u32 v{vKdma[p]}, v9, 4, v7")
    for i in range(2):
        k2(f"v_add_u32 v9, {4*i}, v{vg}")
        k2(f"v_lshlrev_b32 v9, 1, v9")
        k2(f"v_xor_b32 v9, v9, v{v15}")
        k2(f"v_lshl_add_u32 v{vVdma[i]}, v9, 4, v7")
    k2(f"s_mov_b32 s{sSOK}, 0")
    k2(f"s_mov_b32 s{sSOV}, 0")
    for i in range(CFG["accpre"]):
        k2(f"v_accvgpr_write_b32 a{i}, 0")
    for x in k2.L: k(x.strip())
    k(f"s_lshl_b32 s3, s{sQB}, 15")
    k(f"v_and_b32 v156, 31, v{vl}")
    k(f"v_lshlrev_b32 v156, 10, v156")
    k(f"v_add_u32 v156, s3, v156")
    k.stamp(5, grp=2)
    k("s_waitcnt vmcnt(0)")
    k(f"v_readfirstlane_b32 s{sNONCE}, v159")
    k("s_nop 3")
    k(f"s_add_u32 s{sNONCE}, s{sNONCE}, 1")
    k(f"s_or_b32 s{sNONCE}, s{sNONCE}, 0x80000000")
    raise_flag(k, "k_ln_pub", F_LN)
    for i in range(CFG["accpre"], 240):
        k(f"v_accvgpr_write_b32 a{i}, 0")
    k.stamp(8, grp=2)
    k(f"s_cmp_eq_u32 s{sW}, 0")
    k("s_cbranch_scc0 k_ln_seen")
    spin(k, "k_ln_wait", 156, 155, F_LN * 128)
    k(f"s_cmp_eq_u32 s{sHEAD}, 0")
    k("s_cbranch_scc0 k_ln_seen")
    k(f"v_mov_b32 v8, s{sNONCE}")
    k("s_mov_b64 exec, 1")
    k("global_store_dword v158, v8, s[98:99] sc1")
    k("s_mov_b64 exec, -1")
    k.lab("k_ln_seen")
    k("s_barrier")
    k.stamp(2); k.stamp(9, grp=2); k.stamp(2, grp=5)
    for st in range(3):
        for mb in range(4): k(xload(st, mb, st * 1024))
    for grp in vmem:
        for x in grp: k(x)
    for i in range(max(11 - len(vmem), 5)): k(pfl)

    dma_k = lambda p: f"buffer_load_dwordx4 v{vKdma[p]}, s[{SK}:{SK+3}], s{sSOK} offen offset:{p*1024} lds"
    dma_v = lambda p: f"buffer_load_dwordx4 v{vVdma[p&1]}, s[{SV}:{SV+3}], s{sSOV} offen offset:{p*1024} lds"
    m0k = lambda slot: f"s_add_u32 m0, s{sW4K}, {KB+slot*16384}"
    m0v = lambda slot: f"s_add_u32 m0, s{sW4K}, {VB+slot*16384}"
    advk = f"s_add_u32 s{sSOK}, s{sSOK}, 16384"
    advv = f"s_add_u32 s{sSOV}, s{sSOV}, 16384"

    def wreads(slot, st):
        R = []
        for nb in range(15):
            for q2 in range(2):
                if nb < 8:
                    R.append(f"ds_read_b64_tr_b16 {vr(WF(st,nb)+2*q2,2)}, v{vWq[nb>>1]} offset:{slot*16384+q2*1024+(nb&1)*8}")
                else:
                    R.append(f"ds_read_b64_tr_b16 {vr(WF(st,nb)+2*q2,2)}, v{vW1[nb-8]} offset:{slot*16384+q2*1024}")
        return R

    def p1_mfmas(u):
        return [MFMA(ar(acc(nb, mb), 4), vr(WF(u & 1, nb), 4), vr(XR(u, mb), 4), ar(acc(nb, mb), 4))
                for nb in range(15) for mb in range(4)]

    def p1_stage(u, vmcnt, vm_items, rd=True):
        k(f"s_waitcnt vmcnt({vmcnt}) lgkmcnt(0)")
        k("s_barrier")
        fill = {}
        if rd:
            for i, r in enumerate(wreads((u + 1) & 3, (u + 1) & 1)):
                add_fill(fill, i, r)
        for i, (pre, ins, post) in enumerate(vm_items):
            g = 31 + 3 * i
            for s in pre: add_fill(fill, g - 1, s)
            add_fill(fill, g, ins)
            for s in post: add_fill(fill, g + 1, s)
        weave(k, p1_mfmas(u), fill)

    for r in wreads(0, 0): k(r)
    k(f"s_mov_b32 s{sCNT}, 0")
    if CFG["stamps"] == 2:
        k("s_waitcnt vmcnt(19)")
        k.stamp(10, grp=2)
    k.lab("k_p1_loop")
    for u in range(4):
        imm = 3072 if u == 0 else (u - 1) * 1024
        it = [([m0q(u)], dq(0), []), ([], dq(1), []), ([m01(u)], d1(0), []), ([], d1(1), advw)]
        it += [([], xload((u + 3) & 3, mb, imm), [f"s_add_u32 s{sSOX}, s{sSOX}, 4096"] if (u == 0 and mb == 3) else [])
               for mb in range(4)]
        it.append((pf_pre, pfl, pf_post))
        if u == 1:
            it.append(([f"s_cmp_lt_u32 s{sCNT}, 4", "s_cselect_b32 s49, s48, 0x40000000"],
                       f"buffer_load_dwordx4 v[240:243], v{vL16}, s[44:47], s49 offen", ["s_add_u32 s48, s48, 16384"]))
        p1_stage(u, 19, it)
    k(f"s_add_u32 s{sCNT}, s{sCNT}, 1")
    if CFG["stamps"] == 5:
        for n, (c, i) in enumerate(((1, 3), (2, 4), (4, 5), (6, 8))):
            k(f"s_cmp_eq_u32 s{sCNT}, {c}")
            k(f"s_cbranch_scc0 k_dg{n}")
            k.stamp(i, grp=5)
            k.lab(f"k_dg{n}")
    k(f"s_cmp_lt_u32 s{sCNT}, 7")
    k("s_cbranch_scc1 k_p1_loop")
    k.stamp(9, grp=5)

    def kv_items(kind, slot):
        L = []
        for p in range(4):
            pre = [m0k(slot) if kind == "k" else m0v(slot)] if p == 0 else []
            post = [advk if kind == "k" else advv] if p == 3 else []
            L.append((pre, dma_k(p) if kind == "k" else dma_v(p), post))
        return L

    kv = kv_items("k", 0) + kv_items("k", 1) + kv_items("v", 0) + kv_items("k", 2) + kv_items("v", 1) + kv_items("k", 3)
    p1_stage(0, 19, [([], xload(3, mb, 3072), []) for mb in range(4)] + kv[:5])
    p1_stage(1, 19, kv[5:14])
    p1_stage(2, 19, kv[14:23])
    p1_stage(3, 23, kv[23:], rd=False)
    k.stamp(3); k.stamp(2, grp=4); k.stamp(10, grp=5)

    k(f"s_mul_i32 s3, s{sM16}, {112*1024}")
    k.srd(SH, 34, const=H_OFF, soff="s3", nrec=4 * 112 * 1024)
    sHP, sHS = 93, 94
    k(f"s_mul_i32 s{sHP}, s{sHEAD}, 7")
    k(f"s_add_u32 s{sHP}, s{sHP}, s97")
    k(f"s_lshl_b32 s{sHP}, s{sHP}, 9")
    k(f"s_mul_i32 s{sHS}, s97, {-4096+8}")
    k(f"s_add_u32 s{sHS}, s{sHS}, 3072")
    k(f"s_add_u32 s{sHS}, s{sHS}, s{sHP}")
    for mb in range(4):
        k(f"v_add_u32 v{vX[mb]}, {mb*112*1024}, v{vL16}")
    if CFG["pf"]:
        k("s_load_dwordx2 s[46:47], s[0:1], 32")
        k("s_load_dwordx2 s[50:51], s[0:1], 56")
        k(f"s_lshl_b32 s3, s2, 2")
        k(f"s_add_u32 s3, s3, s{sW}")
        k("s_waitcnt lgkmcnt(0)")
        k.srd(SWQ, 46, nrec=8 << 20)
        k.srd(SW1, 50, nrec=7340032)
        k(f"s_lshl_b32 s{sSOWQ}, s3, 13")
        k(f"s_mul_i32 s{sSOW1}, s3, 7168")
    k(f"s_mov_b32 s{sC}, {f32(-LOG2E)}")
    k(f"s_mov_b32 s{sC+1}, {f32(-LOG2E)}")
    for p in range(4):
        n = 32 if p < 3 else 16
        T, U = 96, 160 + (p & 1) * 16
        for i in range(n):
            k(f"v_accvgpr_read_b32 v{T+i}, a{acc(8+2*p,0)+i}")
        silu_n(k, list(range(T, T + n)), list(range(T + 32, T + 32 + n)), sC)
        for mb in range(4):
            for b in range(n // 16):
                for h2 in range(2):
                    k(f"v_cvt_pk_bf16_f32 v{U+4*mb+2*b+h2}, v{T+16*b+4*mb+2*h2}, v{T+16*b+4*mb+2*h2+1}")
        if p == 0:
            k.stamp(3, grp=4)
            k("s_waitcnt vmcnt(0)")
            k.stamp(4, grp=4)
        for mb in range(4):
            if p < 3:
                k(f"buffer_store_dwordx4 {vr(U+4*mb,4)}, v{vX[mb]}, s[{SH}:{SH+3}], s{sHP} offen offset:{p*1024} sc1")
            else:
                k(f"buffer_store_dwordx2 {vr(U+4*mb,2)}, v{vX[mb]}, s[{SH}:{SH+3}], s{sHS} offen sc1")
    k.stamp(5, grp=4)
    Q = lambda qb, js: 32 + (qb * 4 + js) * 4
    k(f"s_mov_b32 s{sC}, {f32(QSCALE)}")
    k(f"s_mov_b32 s{sC+1}, {f32(QSCALE)}")
    for js in range(4):
        T = 96 + (js & 1) * 32
        for b in range(2):
            for i in range(16):
                k(f"v_accvgpr_read_b32 v{T+16*b+i}, a{acc(2*js+b,0)+i}")
        if CFG["pk"]:
            for i in range(0, 32, 2):
                k(f"v_pk_mul_f32 {vr(T+i,2)}, {vr(T+i,2)}, s[{sC}:{sC+1}]")
        else:
            for i in range(32):
                k(f"v_mul_f32 v{T+i}, s{sC}, v{T+i}")
        for qb in range(4):
            for b in range(2):
                for h2 in range(2):
                    k(f"v_cvt_pk_bf16_f32 v{Q(qb,js)+2*b+h2}, v{T+16*b+4*qb+2*h2}, v{T+16*b+4*qb+2*h2+1}")
    k(f"s_lshl_b32 s3, s{sM16}, 7")
    k(f"s_lshl_b32 s{sT0}, s{sHEAD}, 2")
    k(f"s_add_u32 s3, s3, s{sT0}")
    k("s_lshl_b32 s3, s3, 10")
    k(f"s_sub_u32 s{sT1}, {O_SZ}, s3")
    k.srd(SO, 34, const=O_OFF, soff="s3", nrec=f"s{sT1}")
    for qb in range(4):
        k(f"s_mov_b32 s{93+qb}, {qb*128*1024}")

    Sb = lambda buf, kb, qb: 96 + buf * 32 + (kb * 4 + qb) * 4
    Pb = lambda buf, qb: 160 + buf * 16 + qb * 4
    NM = lambda qb: 192 + 4 * qb
    vLs = [208, 209, 210, 211]
    KF = lambda f: 192 + 4 * f
    VF = lambda db: 224 + 4 * db
    O = lambda db, qb: (db * 4 + qb) * 4

    def kread(f, slot, half):
        return f"ds_read_b128 {ar(KF(f),4)}, v{vKrd[f&3]} offset:{slot*16384+half*8192+(f>>2)*4096}"

    def vread(db, q2, slot, half):
        return f"ds_read_b64_tr_b16 {ar(VF(db)+2*q2,2)}, v{vVrd[db]} offset:{slot*16384+half*8192+q2*4096}"

    def qk(buf, first_c=None):
        M = []
        for f in range(8):
            for qb in range(4):
                d = vr(Sb(buf, f >> 2, qb), 4)
                c = d if (f & 3) else (first_c if first_c is not None else vr(NM(qb), 4))
                M.append(MFMA(d, ar(KF(f), 4), vr(Q(qb, f & 3), 4), c))
        return M

    LM = CFG["lm"]
    LA_ = lambda qb: 128 + 4 * qb
    ONES = 144

    def pv(buf, lm=False):
        M = [MFMA(ar(O(db, qb), 4), ar(VF(db), 4), vr(Pb(buf, qb), 4), ar(O(db, qb), 4))
             for db in range(8) for qb in range(4)]
        if lm:
            M += [MFMA(ar(LA_(qb), 4), ar(ONES, 4), vr(Pb(buf, qb), 4), ar(LA_(qb), 4)) for qb in range(4 - LM, 4)]
        return M

    def sm_add(buf, i, add=None):
        kb, qb, r = i >> 4, (i >> 2) & 3, i & 3
        s = 96 + buf * 32 + i
        L = [f"v_add_f32 v{vLs[qb]}, v{vLs[qb]}, v{s}"] if (add or (add is None and qb < 4 - LM)) else []
        if i & 1:
            L.append(f"v_cvt_pk_bf16_f32 v{Pb(buf,qb)+2*kb+(r>>1)}, v{s-1}, v{s}")
        return L

    sm_exp = lambda buf, i: f"v_exp_f32 v{96+buf*32+i}, v{96+buf*32+i}"

    k.stamp(8, grp=4)
    k("s_barrier")
    k.stamp(4); k.stamp(8, True, grp=6)
    for f in range(8): k(kread(f, 0, 0))
    for i in range(32):
        k(f"v_accvgpr_write_b32 a{i}, 0")
    for qb in range(4):
        k(f"v_mov_b32 v{vLs[qb]}, 0")
    if LM:
        k("v_mov_b32 v7, 0x3f803f80")
        for i in range(16): k(f"v_accvgpr_write_b32 a{LA_(0)+i}, 0")
        for i in range(4): k(f"v_accvgpr_write_b32 a{ONES+i}, v7")
    k("s_waitcnt lgkmcnt(0)")
    fill = {}
    for f in range(8): add_fill(fill, 4 * f + 3, kread(f, 0, 1))
    for i in range(32, 128): add_fill(fill, (i - 32) // 3, f"v_accvgpr_write_b32 a{i}, 0")
    weave(k, qk(0, "0"), fill)
    k("s_nop 7")
    tm, tt = [212, 213, 214, 215], [234, 235, 236, 237]
    for qb in range(4):
        k(f"v_max3_f32 v{tm[qb]}, v{Sb(0,0,qb)}, v{Sb(0,0,qb)+1}, v{Sb(0,0,qb)+2}")
    for qb in range(4):
        k(f"v_max3_f32 v{tm[qb]}, v{Sb(0,0,qb)+3}, v{Sb(0,1,qb)}, v{tm[qb]}")
    for qb in range(4):
        k(f"v_max3_f32 v{tm[qb]}, v{Sb(0,1,qb)+1}, v{Sb(0,1,qb)+2}, v{tm[qb]}")
    for qb in range(4):
        k(f"v_max_f32 v{tm[qb]}, v{Sb(0,1,qb)+3}, v{tm[qb]}")
    reduce_g(k, "v_max_f32", tm, tt)
    for qb in range(4):
        k(f"v_sub_f32 v{tm[qb]}, {f32(-float(CFG['margin']))}, v{tm[qb]}")
    for qb in range(4):
        for r in range(4):
            k(f"v_mov_b32 v{NM(qb)+r}, v{tm[qb]}")
    for i in range(32):
        k(f"v_add_f32 v{96+i}, v{96+i}, v{tm[(i>>2)&3]}")
    k("s_waitcnt lgkmcnt(0)")
    fill = {}
    for f in range(8): add_fill(fill, 4 * f + 3, kread(f, 1, 0))
    for i in range(32):
        if i >= 1:
            for x in sm_add(0, i - 1): add_fill(fill, i, x)
        add_fill(fill, i, sm_exp(0, i))
    weave(k, qk(1), fill)
    k(f"s_mov_b32 s{sCNT}, 0")
    k.stamp(9, grp=4)
    k("s_waitcnt vmcnt(0)")
    raise_flag(k, "k_h_pub", F_H)
    k.stamp(10, grp=4)
    if CFG["stamps"] == 4: k("s_waitcnt lgkmcnt(0)")

    def half(tt, par):
        vm, ds, va, ex, first, last = {}, {}, {}, {}, {}, {}
        M = qk(par) + pv(par, LM)
        for db in range(8):
            for q2 in range(2):
                add_fill(ds, 2 * db + q2, vread(db, q2, tt, par))
        for f in range(8):
            add_fill(ds, 16 + 2 * f, kread(f, (tt + 1 + par) & 3, 1 - par))
        add_fill(first, 7, "s_waitcnt lgkmcnt(7)")
        if par == 1:
            add_fill(first, 15, f"s_waitcnt vmcnt({9 if tt else 8}) lgkmcnt(7)")
            add_fill(last, 15, "s_barrier")
            if CFG["pf"] and tt == 0:
                add_fill(vm, 16, f"buffer_load_dwordx4 v[244:247], v{vL16}, s[{SWQ}:{SWQ+3}], s{sSOWQ} offen")
                add_fill(first, 19, f"s_add_u32 s{sSOWQ}, s{sSOWQ}, 1024")
            if tt == 1:
                add_fill(vm, 16, "global_load_dword v238, v252, s[44:45] sc1")
            if CFG["pf"] and tt == 2:
                add_fill(vm, 16, f"buffer_load_dwordx4 v[248:251], v{vL16}, s[{SW1}:{SW1+3}], s{sSOW1} offen")
                add_fill(first, 19, f"s_add_u32 s{sSOW1}, s{sSOW1}, 1024")
            add_fill(first, 16, m0k(tt))
            for p in range(4): add_fill(vm, 17 + 4 * p, dma_k(p))
            add_fill(first, 31, advk)
        else:
            add_fill(first, 15, "s_waitcnt lgkmcnt(7)")
            add_fill(first, 16, m0v((tt + 2) & 3))
            for p in range(4): add_fill(vm, 17 + 4 * p, dma_v(p))
            add_fill(first, 31, advv)
        add_fill(first, 23, "s_waitcnt lgkmcnt(4)")
        add_fill(first, 31, "s_waitcnt lgkmcnt(4)")
        for x in sm_add(par, 31): add_fill(va, 0, x)
        late = []
        for g in range(32):
            if g >= 1:
                for x in sm_add(1 - par, g - 1, False if LM else None): add_fill(va, g, x)
                if LM: late += [x for x in sm_add(1 - par, g - 1) if x.startswith("v_add")]
            add_fill(ex, g, sm_exp(1 - par, g))
            if LM and (g & 1):
                n = 1 if g < 16 else (0 if g in vm else 2)
                for x in late[:n]: add_fill(va, g, x)
                late = late[n:]
        for x in late: add_fill(va, 31, x)
        fill = {}
        for g in range(32):
            fill[2 * g] = first.get(g, []) + vm.get(g, []) + ds.get(g, []) + va.get(g, [])
            fill[2 * g + 1] = ex.get(g, []) + last.get(g, [])
        weave(k, M, fill)

    k("s_load_dwordx2 s[44:45], s[0:1], 72")
    k(f"s_lshr_b32 s3, s2, 3")
    k(f"s_add_u32 s3, s3, s{sW}")
    k("s_cmp_eq_u32 s3, 0")
    k(f"s_cselect_b32 s48, {CFG['rkt']}, 99")
    k("s_and_b32 s3, s2, 7")
    k("s_lshl_b32 s3, s3, 2")
    k("s_add_u32 s3, s3, 32")
    k("v_mov_b32 v252, s3")
    k("v_mov_b32 v253, 0")
    k("v_mov_b32 v254, 1")
    k("v_mov_b32 v255, -1")
    k("v_mov_b32 v238, 0")
    k("s_waitcnt lgkmcnt(0)")
    k.lab("k_attn_loop")
    k(f"s_cmp_ge_u32 s{sCNT}, s48")
    k("s_cbranch_scc1 k_rank")
    k.lab("k_rank_done")
    for i in range(8):
        if i == 6:
            k(f"s_cmp_eq_u32 s{sCNT}, 7")
            k("s_cbranch_scc1 k_attn_tail")
        half(i >> 1, i & 1)
    k(f"s_add_u32 s{sCNT}, s{sCNT}, 1")
    k("s_branch k_attn_loop")
    k.lab("k_rank")
    k("s_mov_b64 exec, 1")
    k(f"s_cmp_eq_u32 s48, {CFG['rkt']}")
    k("s_cbranch_scc0 k_rank2")
    k("global_atomic_add v255, v253, v254, s[44:45] sc0 sc1")
    k("s_add_u32 s48, s48, 1")
    k("s_mov_b64 exec, -1")
    k("s_branch k_rank_done")
    k.lab("k_rank2")
    k("v_readfirstlane_b32 s3, v255")
    k("s_mov_b32 s48, 99")
    k("s_cmp_eq_u32 s3, -1")
    k("s_cbranch_scc0 k_rank3")
    k("s_waitcnt vmcnt(0)")
    k.lab("k_rank3")
    k("v_add_u32 v254, 1, v255")
    k("global_store_dword v252, v254, s[44:45] sc1")
    k("s_mov_b64 exec, -1")
    k("s_branch k_rank_done")
    k.lab("k_attn_tail")
    for db in range(8):
        for q2 in range(2): k(vread(db, q2, 3, 0))
    for x in sm_add(0, 31): k(x)
    k("s_waitcnt lgkmcnt(0)")
    fill = {}
    for i in range(32):
        if i >= 1:
            for x in sm_add(1, i - 1): add_fill(fill, i, x)
        add_fill(fill, i, sm_exp(1, i))
        if (i & 3) == 3:
            for q2 in range(2): fill[i] = [vread(i >> 2, q2, 3, 1)] + fill[i]
    weave(k, pv(0, LM), fill)
    k("s_nop 0")
    for x in sm_add(1, 31): k(x)
    k("s_waitcnt lgkmcnt(0)")
    if LM:
        k("s_nop 0")
        for m in pv(1, True)[32:]: k(m)
    assert LM == 4

    def o_chunk(c):
        T = 96 + (c & 1) * 48
        W = [f"v_accvgpr_read_b32 v{T+16*b+i}, a{O(2*c+b,0)+i}" for b in range(2) for i in range(16)]
        for i in range(0, 32, 2):
            L = vLs[(i >> 2) & 3]
            W.append(f"v_pk_mul_f32 {vr(T+i,2)}, {vr(T+i,2)}, {vr(L&~1,2)} op_sel:[0,{L&1}] op_sel_hi:[1,{L&1}]")
        for qb in range(4):
            for b in range(2):
                for h2 in range(2):
                    W.append(f"v_cvt_pk_bf16_f32 v{T+32+4*qb+2*b+h2}, v{T+16*b+4*qb+2*h2}, v{T+16*b+4*qb+2*h2+1}")
            W.append(f"buffer_store_dwordx4 {vr(T+32+4*qb,4)}, v{vL16}, s[{SO}:{SO+3}], s{93+qb} offen offset:{c*1024} sc1")
        return W

    fill = {}
    for qb in range(4): add_fill(fill, 5 + (qb >> 1), f"v_accvgpr_read_b32 v{vLs[qb]}, a{LA_(qb)}")
    for x in (f"s_mov_b32 s{sT0}, {f32(LTHRESH if not CFG['force_slow'] else -1.0)}",
              f"v_add_f32 v213, v{vLs[0]}, v{vLs[1]}", f"v_add_f32 v214, v{vLs[2]}, v{vLs[3]}"): add_fill(fill, 7, x)
    add_fill(fill, 8, "v_add_f32 v212, v213, v214")
    add_fill(fill, 8, f"v_cmp_nge_f32 vcc, s{sT0}, v212")
    for qb in range(4): add_fill(fill, 9 + qb, f"v_rcp_f32 v{vLs[qb]}, v{vLs[qb]}")
    add_fill(fill, 13, "s_cmp_lg_u64 vcc, 0"); add_fill(fill, 13, "s_cselect_b32 s42, 1, 0")
    w0 = o_chunk(0)
    for n, x in enumerate(w0[:32]): add_fill(fill, 14 + n // 2, x)
    weave(k, pv(1), fill)
    for x in w0[32:]: k(x)
    k.stamp(5); k.stamp(2, True, grp=6)
    k("s_branch k_attn_epi2")

    k.lab("k_slow")
    k("s_waitcnt vmcnt(0) lgkmcnt(0)")
    k("s_mov_b32 s42, 0")
    for i in range(128):
        k(f"v_accvgpr_write_b32 a{i}, 0")
    vM = [192, 193, 194, 195]
    tm, tt, al = [212, 213, 214, 215], [234, 235, 236, 237], [240, 241, 242, 243]
    for qb in range(4):
        k(f"v_mov_b32 v{vM[qb]}, {f32(-3.0e38)}")
        k(f"v_mov_b32 v{vLs[qb]}, 0")
    k(f"s_mov_b32 s{sSOK}, 0")
    k(f"s_mov_b32 s{sSOV}, 0")
    k.lab("k_slow_loop")
    k("s_barrier")
    k(m0k(0)); k("s_nop 0")
    for p in range(4): k(dma_k(p))
    k(m0v(0)); k("s_nop 0")
    for p in range(4): k(dma_v(p))
    k(advk); k(advv)
    k("s_waitcnt vmcnt(0)")
    k("s_barrier")
    k("s_mov_b32 s43, 0")
    k.lab("k_slow_half")
    for f in range(8): k(kread(f, 0, 0))
    for db in range(8):
        for q2 in range(2): k(vread(db, q2, 0, 0))
    k("s_waitcnt lgkmcnt(0)")
    for m in qk(0, "0"): k(m)
    for r in vKrd + vVrd:
        k(f"v_xor_b32 v{r}, 0x2000, v{r}")
    for qb in range(4):
        k(f"v_max3_f32 v{tm[qb]}, v{Sb(0,0,qb)}, v{Sb(0,0,qb)+1}, v{vM[qb]}")
    for a, b in (((0, 2), (0, 3)), ((1, 0), (1, 1)), ((1, 2), (1, 3))):
        for qb in range(4):
            k(f"v_max3_f32 v{tm[qb]}, v{Sb(0,a[0],qb)+a[1]}, v{Sb(0,b[0],qb)+b[1]}, v{tm[qb]}")
    reduce_g(k, "v_max_f32", tm, tt)
    for qb in range(4): k(f"v_sub_f32 v{al[qb]}, v{vM[qb]}, v{tm[qb]}")
    for qb in range(4): k(f"v_exp_f32 v{al[qb]}, v{al[qb]}")
    for qb in range(4): k(f"v_mov_b32 v{vM[qb]}, v{tm[qb]}")
    for qb in range(4): k(f"v_mul_f32 v{vLs[qb]}, v{vLs[qb]}, v{al[qb]}")
    for i in range(32): k(f"v_sub_f32 v{96+i}, v{96+i}, v{tm[(i>>2)&3]}")
    for i in range(32): k(sm_exp(0, i))
    k("s_nop 0")
    for i in range(32):
        for x in sm_add(0, i, True): k(x)
    for db in range(8):
        for i in range(16): k(f"v_accvgpr_read_b32 v{128+i}, a{O(db,0)+i}")
        for i in range(16): k(f"v_mul_f32 v{128+i}, v{128+i}, v{al[i>>2]}")
        for i in range(16): k(f"v_accvgpr_write_b32 a{O(db,0)+i}, v{128+i}")
    k("s_nop 1")
    for m in pv(0): k(m)
    k("s_nop 7")
    k("s_add_u32 s43, s43, 1")
    k("s_cmp_lt_u32 s43, 2")
    k("s_cbranch_scc1 k_slow_half")
    k(f"s_cmp_lt_u32 s{sSOK}, 524288")
    k("s_cbranch_scc1 k_slow_loop")

    k.lab("k_attn_epi")
    reduce_g(k, "v_add_f32", vLs, [234, 235, 236, 237])
    for qb in range(4): k(f"v_rcp_f32 v{vLs[qb]}, v{vLs[qb]}")
    for x in o_chunk(0): k(x)
    k.lab("k_attn_epi2")
    for c in range(1, 4):
        for x in o_chunk(c): k(x)
    k(f"s_lshl_b32 s{sT1}, s{sW}, 2")
    k(f"s_add_u32 s{sT1}, s{sT1}, 131072")
    k(f"v_mov_b32 v213, s{sT1}")
    k("v_mov_b32 v214, s42")
    k("ds_write_b32 v213, v214")
    k("v_mov_b32 v213, 131072")
    k("s_waitcnt lgkmcnt(0)")
    k("s_barrier")
    k("ds_read_b128 v[244:247], v213")
    k("s_waitcnt lgkmcnt(0)")
    k("v_or_b32 v244, v244, v245")
    k("v_or3_b32 v244, v244, v246, v247")
    k("s_nop 0")
    k("v_readfirstlane_b32 s42, v244")
    k("s_nop 3")
    k("s_cmp_lg_u32 s42, 0")
    k("s_cbranch_scc1 k_slow")


def part_b(k):
    sNT, sISS, sKH = 40, 24, 41
    sSOA, sSOW, sCNT, sLAST = 26, 27, 28, 29
    SA, SWT, SG, SXI, SOU, SE, SEP = 8, 12, 16, 36, 44, 52, 56
    sT0, sT1, sC, sNK = 42, 32, 30, 43
    vWrd = list(range(10, 18))
    vD = [18, 19]
    vX = [20, 21, 22, 23]
    vXo = [24, 25]
    X = 224
    XR = lambda st, mb: 32 + st * 16 + mb * 4
    WF = lambda st, nb: 160 + st * 32 + nb * 4
    acc = lambda nb, mb: (mb * 8 + nb) * 4
    LA = CFG["g2la"]

    sVH, sOWNV, sSEQ, sMSK = 61, 60, 30, 62
    JOB = [0b000, 0b001, 0b100, 0b101, 0b010, 0b011, 0b111, 0b110]
    S68, S60 = (1, [8, 9, 11, 24, 26, 0, 2, 16, 18]), (1, [13, 14, 28, 30, 4, 6, 20, 22])
    S72, S56 = (0, [8, 10, 24, 26, 0, 2, 16, 18, 12]), (0, [14, 28, 30, 4, 6, 20, 22])
    B60, B52 = (1, [0, 1, 3, 5, 7, 9, 11, 13]), (1, [15, 16, 18, 20, 22, 24, 26])
    SEQ = [B60, B60, B52, B52] + {2: [S68, S68, S60, S60], 4: [S72, S68, S56, S60], 5: [S72, S72, S56, S56]}[CFG["rank"]]
    pk = lambda L, w=4: sum(v << (w * i) for i, v in enumerate(L))
    k("s_mov_b32 s3, 0")
    k.lab("k_rk_wait")
    k("v_readfirstlane_b32 s60, v238")
    k("s_add_u32 s3, s3, 1")
    k("s_nop 2")
    k("s_cmp_lg_u32 s60, 0")
    k("s_cbranch_scc1 k_rk_seen")
    k("s_cmp_gt_u32 s3, 0x40000")
    k("s_cbranch_scc1 k_rk_seen")
    k("global_load_dword v238, v252, s[44:45] sc1")
    k("s_waitcnt vmcnt(0)")
    k("s_branch k_rk_wait")
    k.lab("k_rk_seen")
    k("s_load_dwordx2 s[4:5], s[0:1], 32")
    k("s_load_dwordx2 s[6:7], s[0:1], 56")
    k("s_load_dwordx2 s[48:49], s[0:1], 64")
    k("s_load_dwordx2 s[50:51], s[0:1], 0")
    k("s_sub_u32 s60, s60, 1")
    k("s_and_b32 s60, s60, 7")
    k("s_lshl_b32 s60, s60, 2")
    k(f"s_lshr_b32 s{sVH}, {pk(JOB):#x}, s60")
    k(f"s_and_b32 s{sVH}, s{sVH}, 7")
    k(f"s_lshl_b32 s{sVH}, s{sVH}, 2")
    k(f"s_and_b32 s3, s{sHEAD}, 3")
    k(f"s_add_u32 s{sVH}, s{sVH}, s3")
    k(f"s_lshr_b32 s{sISS}, s{sVH}, 4")
    k(f"s_bfe_u32 s{sKH}, s{sVH}, 0x10003")
    k(f"s_and_b32 s{sNT}, s{sVH}, 7")
    k(f"s_lshl_b32 s{sOWNV}, s{sQB}, 5")
    k(f"s_add_u32 s{sOWNV}, s{sOWNV}, s{sVH}")
    k(f"s_lshl_b32 s{sOWNV}, s{sOWNV}, 10")
    PB, RB = 8, 16
    k(f"s_lshr_b32 s3, s{sVH}, 2")
    for n, (hf, L) in enumerate(SEQ):
        v = pk(L, 5) | (hf << 63)
        if n: k(f"s_cmp_eq_u32 s3, {n}")
        op = "s_cselect_b32" if n else "s_mov_b32"
        tail = lambda r: f", s{r}" if n else ""
        k(f"{op} s{sSEQ}, {v & 0xffffffff:#x}{tail(sSEQ)}")
        k(f"{op} s{sSEQ+1}, {v >> 32:#x}{tail(sSEQ+1)}")
        k(f"{op} s{sLAST}, {len(L) - 1}{tail(sLAST)}")
    k(f"s_lshr_b32 s97, s{sSEQ+1}, 31")
    k(f"s_lshl_b32 s96, s97, 1")
    k(f"s_sub_u32 s96, 3, s96")
    nextb = lambda m: [f"s_and_b32 s63, s{sSEQ}, 31", f"s_lshr_b64 s[{sSEQ}:{sSEQ+1}], s[{sSEQ}:{sSEQ+1}], 5",
                       f"s_lshl_b32 s{sSOW}, s63, 18", f"s_lshl_b32 s{sSOA}, s63, 12",
                       f"s_lshl_b32 s{sMSK}, {m}, s63", f"s_mul_i32 s{sMSK}, s{sMSK}, s{sISS}"]
    for x in nextb("s96"): k(x)
    k("s_lshl_b32 s96, s97, 15")
    k(f"s_add_u32 s96, s96, s{sW2K}")
    k(f"s_lshl_b32 s{sT0}, s{sW}, 14")
    k(f"v_lshlrev_b32 v7, 11, v{vg}")
    k(f"v_add_u32 v7, s{sT0}, v7")
    for i in range(2):
        k(f"v_add_u32 v8, {4*i}, v{vg}")
        k(f"v_lshlrev_b32 v8, 1, v8")
        k(f"v_xor_b32 v8, v8, v{v15}")
        k(f"v_lshl_add_u32 v8, v8, 4, v7")
        k(f"v_add_u32 v{vD[i]}, {i*(8192-1024)}, v8")
    k(f"s_cmp_eq_u32 s{sISS}, 1")
    k.csel2(sNK, 128, 112)
    k.csel2(93, O_OFF, H_OFF)
    k.csel2(94, O_SZ, H_SZ)
    k.csel2(95, 8388608, 7340032)
    k("s_waitcnt lgkmcnt(0)")
    k("s_cselect_b32 s4, s4, s6")
    k("s_cselect_b32 s5, s5, s7")
    k(f"s_lshl_b32 s3, s{sNT}, 8")
    k(f"s_sub_u32 s95, s95, s3")
    k.srd(SWT, 4, soff="s3", nrec="s95")

    xload = lambda st, mb: f"buffer_load_dwordx4 {vr(XR(st,mb),4)}, v{vX[mb]}, s[{SA}:{SA+3}], s{sSOA} offen offset:{(st&3)*1024} sc1"
    dw = lambda i: f"buffer_load_dwordx4 v{vD[i]}, s[{SWT}:{SWT+3}], s{sSOW} offen offset:{i*1024} lds"
    m0w = lambda slot: f"s_add_u32 m0, s{sW2K}, {slot*8192}"
    advw = f"s_add_u32 s{sSOW}, s{sSOW}, {32*2048}"
    adva = f"s_add_u32 s{sSOA}, s{sSOA}, 4096"
    vmem = []
    for st in range(4):
        vmem += [[f"s_add_u32 m0, s96, {st*8192}", "s_nop 0", dw(0)], [dw(1), advw]]
    k2 = K("tmp")
    k2(f"s_mul_i32 s3, s{sM16}, s{sNK}")
    k2(f"s_lshl_b32 s3, s3, 10")
    k2(f"s_sub_u32 s94, s94, s3")
    k2(f"s_add_u32 s3, s3, s93")
    k2.srd(SA, 34, soff="s3", nrec="s94")
    k2(f"s_lshl_b32 s93, s{sKH}, 1")
    for j in range(4):
        k2(f"s_xor_b32 s{sT0}, s93, {j}")
        k2(f"s_mul_i32 s{sT0}, s{sT0}, s{sNK}")
        k2(f"s_lshl_b32 s{sT0}, s{sT0}, 10")
        k2(f"v_add_u32 v{vX[j]}, s{sT0}, v{vL16}")
    k2(f"v_lshlrev_b32 v7, 11, v{v15}")
    k2(f"v_lshl_add_u32 v7, v{vg}, 4, v7")
    k2(f"s_add_u32 s3, s{sM16}, s93")
    k2(f"s_lshl_b32 s3, s3, 15")
    k2(f"s_lshl_b32 s{sT1}, s{sNT}, 8")
    k2(f"s_add_u32 s3, s3, s{sT1}")
    k2(f"v_add_u32 v{vXo[0]}, s3, v7")
    k2(f"v_add_u32 v{vXo[1]}, 32768, v{vXo[0]}")
    k2(f"v_lshl_add_u32 v7, v{vg}, 2, v{vrr}")
    k2(f"v_lshlrev_b32 v7, 8, v7")
    k2(f"v_lshl_add_u32 v7, v{vc}, 3, v7")
    k2(f"v_and_b32 v9, 1, v{vg}")
    k2(f"v_lshl_add_u32 v9, v9, 2, v{vrr}")
    for nb in range(8):
        k2(f"v_xor_b32 v8, {nb}, v9")
        k2(f"v_lshl_add_u32 v{vWrd[nb]}, v8, 5, v7")
    for i in range(128):
        k2(f"v_accvgpr_write_b32 a{i}, 0")
    k2(f"s_lshl_b32 s3, s{sOWNV}, 6")
    k2(f"s_lshl_b32 s{sT1}, s{sW}, 14")
    k2(f"s_add_u32 s3, s3, s{sT1}")
    k2.srd(SE, 34, const=E_OFF, soff="s3", nrec=16384)
    k2(f"s_xor_b32 s{sT0}, s3, {PB << 16}")
    k2.srd(SEP, 34, const=E_OFF, soff=f"s{sT0}", nrec=8192)
    k2(f"s_xor_b32 s{sT0}, s3, {RB << 16}")
    k2.srd(SG, 34, const=E_OFF + 8192, soff=f"s{sT0}", nrec=8192)
    k2(f"s_lshl_b32 s{sT1}, s{sISS}, 22")
    k2.srd(SXI, 50, nrec=f"s{sT1}")
    k2.srd(SOU, 48, nrec=2048 * 2048)
    k2(f"s_lshl_b32 s3, s{sQB}, 15")
    k2(f"s_lshl_b32 s{sT1}, s{sISS}, 7")
    k2(f"s_add_u32 s3, s3, s{sT1}")
    k2(f"v_and_b32 v26, 31, v{vl}")
    k2(f"v_lshlrev_b32 v26, 10, v26")
    k2(f"v_add_u32 v26, s3, v26")
    for x in k2.L: k(x.strip())
    k("s_waitcnt vmcnt(0)")
    raise_flag(k, "k_o_pub", F_O)
    k.stamp(8)
    for grp in vmem:
        for x in grp: k(x)
    k(f"s_sub_u32 s93, s{sISS}, 1")
    k(f"s_or_b32 s93, s93, s{sMSK}")
    k(f"s_cmp_eq_u32 s{sW}, 0")
    k("s_cbranch_scc0 k_dep_seen")
    k("s_mov_b32 s3, 0")
    k.lab("k_dep_wait")
    k(f"global_load_dword v27, v26, s[98:99] offset:{F_H*128} sc1")
    k("s_waitcnt vmcnt(0)")
    k(f"v_cmp_ne_u32 vcc, s{sNONCE}, v27")
    k("s_add_u32 s3, s3, 1")
    k("s_and_b32 s63, vcc_lo, s93")
    k("s_cbranch_scc0 k_dep_seen")
    k("s_cmp_gt_u32 s3, 0x40000")
    k("s_cbranch_scc0 k_dep_wait")
    k.lab("k_dep_seen")
    k("s_waitcnt vmcnt(0)")
    k("s_barrier")
    k.stamp(9)
    NV = 4 + 6 * (LA - 2)
    k(f"global_load_dword v27, v26, s[98:99] offset:{F_H*128} sc1")
    assert LA == 4
    k(f"s_mov_b32 s63, s97")
    k("s_cmp_eq_u32 s97, 1")
    k("s_cbranch_scc1 k_b_half")
    for st in range(4):
        for mb in range(4): k(xload(st, mb))
    k(adva)
    k("s_branch k_b_x")
    k.lab("k_b_half")
    for st in range(4, 8):
        for mb in range(4): k(xload(st, mb))
    k.lab("k_b_x")
    k("s_mov_b32 s3, 0x40000000")
    for i in range(NV - 4 * (LA - 1)):
        k(f"buffer_load_dword v31, v{vL16}, s[{SA}:{SA+3}], s3 offen")
    k(f"v_lshlrev_b32 v7, 11, v{v15}")
    k(f"v_sub_u32 v7, v{vXo[0]}, v7")
    k(f"v_lshlrev_b32 v8, 4, v{vg}")
    k(f"v_sub_u32 v7, v7, v8")
    k(f"v_lshl_add_u32 v7, v{vg}, 11, v7")
    k(f"s_mov_b32 s96, {16*2048}")
    k(f"s_lshl_b32 s97, s{sW}, 13")
    k(f"s_add_u32 s97, s97, 65536")
    for p in range(4):
        k(f"v_add_u32 v8, {4*p}, v{vg}")
        k(f"v_xor_b32 v8, v8, v{v15}")
        k(f"v_lshl_add_u32 v8, v8, 4, v7")
        k(f"v_add_u32 v{224+p}, {p*(8192-1024)}, v8")
        k(f"v_accvgpr_write_b32 a{128+p}, v{224+p}")
    k(f"s_xor_b32 s3, s{sOWNV}, {PB << 10}")
    k(f"v_mov_b32 v28, s3")
    k(f"s_xor_b32 s3, s{sOWNV}, {RB << 10}")
    k(f"v_mov_b32 v29, s3")

    def wreads(slot, st):
        return [f"ds_read_b64_tr_b16 {vr(WF(st,nb)+2*q2,2)}, v{vWrd[nb]} offset:{slot*8192+q2*4096}"
                for nb in range(8) for q2 in range(2)]

    def mfmas(u):
        return [MFMA(ar(acc(nb, mb), 4), vr(WF(u & 1, nb), 4), vr(XR(u, mb), 4), ar(acc(nb, mb), 4))
                for mb in range(4) for nb in range(8)]

    k(f"s_mov_b32 s{sCNT}, 0")
    k("s_cmp_eq_u32 s63, 1")
    k("s_cbranch_scc0 k_b_full")
    for r in wreads(4, 0): k(r)
    k("s_branch k_g2_mid")
    k.lab("k_b_full")
    for r in wreads(0, 0): k(r)
    k.lab("k_g2_loop")
    for u in range(8):
        if u == 4: k.lab("k_g2_mid")
        k(f"s_waitcnt vmcnt({NV}) lgkmcnt(0)")
        if u == 8 - LA:
            for x in nextb(3): k(x)
            k(f"v_cmp_ne_u32 vcc, s{sNONCE}, v27")
            k("s_mov_b32 s3, 0")
            k(f"s_and_b32 s63, vcc_lo, s{sMSK}")
            k("s_cbranch_scc0 k_grp_ok")
            k.lab("k_grp_wait")
            k(f"global_load_dword v27, v26, s[98:99] offset:{F_H*128} sc1")
            k("s_waitcnt vmcnt(0)")
            k(f"v_cmp_ne_u32 vcc, s{sNONCE}, v27")
            k("s_add_u32 s3, s3, 1")
            k(f"s_and_b32 s63, vcc_lo, s{sMSK}")
            k("s_cbranch_scc0 k_grp_ok")
            k("s_cmp_gt_u32 s3, 0x40000")
            k("s_cbranch_scc0 k_grp_wait")
            k.lab("k_grp_ok")
        k("s_barrier")
        fill = {}
        if u == (8 - 2 * LA) % 8:
            add_fill(fill, 29, f"global_load_dword v27, v26, s[98:99] offset:{F_H*128} sc1")
        t = (u + LA) & 7
        vg_ = [11, 16, 21, 26]
        add_fill(fill, 0, m0w(t))
        add_fill(fill, 1, dw(0)); add_fill(fill, 6, dw(1)); add_fill(fill, 7, advw)
        for mb in range(4): add_fill(fill, vg_[mb], xload(t, mb))
        if t == 3: add_fill(fill, 31, adva)
        slots = [g for g in range(32) if g not in [1, 6] + vg_]
        for r, g in zip(wreads((u + 1) & 7, (u + 1) & 1), slots): add_fill(fill, g, r)
        weave(k, mfmas(u), fill)
    k(f"s_add_u32 s{sCNT}, s{sCNT}, 1")
    k(f"s_cmp_lt_u32 s{sCNT}, s{sLAST}")
    k("s_cbranch_scc1 k_g2_loop")
    DS = CFG["g2ds"]
    for i in range(1, 4):
        k(f"s_mov_b32 s{92+i}, {4096*i}")
    so4 = lambda i: "0" if i == 0 else f"s{92+i}"
    hm = lambda u, mbs: [MFMA(ar(acc(nb, mb), 4), vr(WF(u & 1, nb), 4), vr(XR(u, mb), 4), ar(acc(nb, mb), 4))
                         for mb in mbs for nb in range(8)]
    q = []
    for st in range(LA): q += [("W", st)] * 2 + [("K", st)] * 2 + [("S", st)] * 2
    pend = []
    for st in range(LA, 8):
        pend += [([m0w(st)], dw(0), [], ("W", st)), ([], dw(1), [advw], ("W", st)),
                 ([], xload(st, 2), [], ("S", st)), ([], xload(st, 3), [], ("S", st))]
        if st - LA < DS:
            pend += [([], xload(st, mb), [], ("K", st)) for mb in range(2)]
    pend += [([], xload(st, mb), [], ("K", st)) for st in range(LA + DS, 8) for mb in range(2)]
    for u in range(8):
        full = u < DS
        tags = [("S", u)] + ([("K", u)] if full else []) + ([("W", u + 1)] if u < 7 else [])
        need = [n for n, e in enumerate(q) if e in tags]
        k(f"s_waitcnt vmcnt({len(q) - 1 - max(need)}) lgkmcnt({0 if u <= DS else 8})")
        if u < 7: k("s_barrier")
        fill = {}
        pos = [1, 6, 11, 16, 21, 26] if full else [1, 5, 9, 13]
        for g in pos:
            if not pend: break
            pre, ins, post, tag = pend.pop(0)
            for x in pre: add_fill(fill, g - 1, x)
            add_fill(fill, g, ins)
            for x in post: add_fill(fill, g + 1, x)
            q.append(tag)
        nxt = u + 1 if u < 7 else DS
        rd = wreads(nxt, (u + 1) & 1)
        if full:
            for r, g in zip(rd, [g for g in range(32) if g not in pos]): add_fill(fill, g, r)
            weave(k, mfmas(u), fill)
        else:
            for g, r in enumerate(rd): add_fill(fill, g, r)
            add_fill(fill, 3, "s_waitcnt lgkmcnt(4)")
            if u >= 6:
                add_fill(fill, 0, f"s_add_u32 m0, s97, {(u-6)*4096}")
                for p in range(4):
                    add_fill(fill, 1 + 4 * p, f"buffer_load_dwordx4 v{224+p}, s[{SXI}:{SXI+3}], {'s96' if u == 7 else '0'} offen offset:{p*1024} lds")
            if u == 7:
                add_fill(fill, 15, f"global_load_dword v30, v29, s[98:99] offset:{F_G*128} sc1")
            weave(k, hm(u, (2, 3)), fill)
    assert not pend and DS % 2 == 0
    work = []
    RR = lambda i: XR(4 + (i >> 2), 2) + (i & 3) * 2
    for h in range(2):
        for i in range(16):
            work += [f"v_accvgpr_read_b32 v{RR(i)}, a{64+32*h+2*i}", f"v_accvgpr_read_b32 v{RR(i)+1}, a{65+32*h+2*i}"]
        for i in range(16):
            U = XR(2 * h + (i >> 3), 2) + (i & 7)
            work.append(f"v_cvt_pk_bf16_f32 v{U}, v{RR(i)}, v{RR(i)+1}")
            if (i & 3) == 3:
                if h == 0 and i == 3: work.append("s_waitcnt vmcnt(9)")
                work.append(f"buffer_store_dwordx4 {vr(U-3,4)}, v{vL16}, s[{SE}:{SE+3}], {so4(h)} offen offset:{(i>>2)*1024} sc1")
    for u in range(DS, 8):
        k("s_waitcnt lgkmcnt(8)")
        fill = {}
        if u < 7:
            for g, r in enumerate(wreads(u + 1, (u + 1) & 1)): add_fill(fill, g, r)
        add_fill(fill, 3, f"s_waitcnt lgkmcnt({4 if u < 7 else 0})")
        for g in range(16):
            n = 0
            while work and n < (2 if DS < 4 else 3):
                x = work.pop(0)
                if x.startswith("buffer"): fill[g] = [x] + fill.get(g, []) if n == 0 else fill.get(g, []) + [x]
                else: add_fill(fill, g, x)
                n += 1
        weave(k, hm(u, (0, 1)), fill)
    assert not work
    k.stamp(10); k.stamp(3, True, grp=6)

    T = 32
    k(f"s_mov_b32 s{sC}, {f32(-LOG2E)}")
    k(f"s_mov_b32 s{sC+1}, {f32(-LOG2E)}")
    k(f"v_lshrrev_b32 v7, 1, v{vg}")
    k(f"v_xor_b32 v7, v7, v{v15}")
    k(f"v_lshlrev_b32 v7, 4, v7")
    k(f"v_lshl_add_u32 v7, v{v15}, 8, v7")
    k(f"v_and_b32 v8, 1, v{vg}")
    k(f"v_lshl_add_u32 v7, v8, 3, v7")
    k(f"v_add_u32 v7, s97, v7")
    for nb in range(8):
        k(f"v_xor_b32 v{10+nb}, {nb*32}, v7")
    k("s_waitcnt vmcnt(0)")
    for j in range(2):
        for nb in range(8):
            k(f"ds_read_b64 {vr(X+(j*8+nb)*2,2)}, v{10+nb} offset:{j*4096}")
    raise_flag(k, "k_p_pub", F_P, sOWNV)
    k(f"s_cmp_eq_u32 s{sISS}, 1")
    k("s_cbranch_scc0 k_no_g")
    k(f"v_cmp_ne_u32 vcc, s{sNONCE}, v30")
    k("s_cbranch_vccz k_g_wait_ok")
    spin(k, "k_g_wait", 29, 30, F_G * 128)
    for i in range(8):
        k(f"buffer_load_dwordx4 {vr(96+4*i,4)}, v{vL16}, s[{SG}:{SG+3}], {so4(i>>2)} offen offset:{(i&3)*1024} sc1")
    k.lab("k_no_g")
    k.stamp(5, True, grp=6)
    k(f"global_load_dword v30, v28, s[98:99] offset:{F_P*128} sc1")
    for i in range(64):
        k(f"v_accvgpr_read_b32 v{T+i}, a{i}")
    k("s_waitcnt lgkmcnt(0)")
    for i in range(32):
        k(f"v_lshlrev_b32 v{160+2*i}, 16, v{X+i}")
        k(f"v_and_b32 v{161+2*i}, 0xffff0000, v{X+i}")
    spin(k, "k_p_wait", 28, 30, F_P * 128, first=False)
    k.stamp(4, True, grp=6)
    for i in range(8):
        k(f"buffer_load_dwordx4 {vr(128+4*i,4)}, v{vL16}, s[{SEP}:{SEP+3}], {so4(i>>2)} offen offset:{(i&3)*1024} sc1")
    k(f"s_cmp_eq_u32 s{sISS}, 1")
    k("s_cbranch_scc1 k_epi_s")
    for q in range(4):
        k(f"s_waitcnt vmcnt({6-2*q})")
        for i in range(8 * q, 8 * q + 8):
            k(f"v_lshlrev_b32 v8, 16, v{128+i}")
            k(f"v_and_b32 v9, 0xffff0000, v{128+i}")
            k(f"v_pk_add_f32 {vr(T+2*i,2)}, {vr(T+2*i,2)}, v[8:9]")
    for j in range(2):
        silu_n(k, list(range(T + 32 * j, T + 32 * j + 32)), list(range(96, 128)), sC)
        for i in range(16):
            k(f"v_cvt_pk_bf16_f32 v{160+16*j+i}, v{T+32*j+2*i}, v{T+32*j+2*i+1}")
        for c in range(4):
            k(f"buffer_store_dwordx4 {vr(160+16*j+4*c,4)}, v{vL16}, s[{SE}:{SE+3}], {so4(2+j)} offen offset:{c*1024} sc1")
    k("s_waitcnt vmcnt(0)")
    raise_flag(k, "k_g_pub", F_G, sOWNV)
    k.stamp_out(1, 34, sW)
    k("s_endpgm")
    k.lab("k_epi_s")
    for i in range(32):
        k(f"v_lshlrev_b32 v8, 16, v{96+i}")
        k(f"v_and_b32 v9, 0xffff0000, v{96+i}")
        k(f"v_pk_fma_f32 {vr(160+2*i,2)}, {vr(T+2*i,2)}, v[8:9], {vr(160+2*i,2)}")
        k(f"v_pk_mul_f32 {vr(T+2*i,2)}, v[8:9], 1.0 op_sel_hi:[1,0]")
    for j in range(2):
        U = 224 + 16 * j
        for q in range(2):
            k(f"s_waitcnt vmcnt({6-4*j-2*q})")
            for i in range(16 * j + 8 * q, 16 * j + 8 * q + 8):
                k(f"v_lshlrev_b32 v8, 16, v{128+i}")
                k(f"v_and_b32 v9, 0xffff0000, v{128+i}")
                k(f"v_pk_fma_f32 {vr(160+2*i,2)}, v[8:9], {vr(T+2*i,2)}, {vr(160+2*i,2)}")
                k(f"v_cvt_pk_bf16_f32 v{224+i}, v{160+2*i}, v{161+2*i}")
        for nb in range(8):
            k(f"ds_write_b64 v{10+nb}, {vr(U+2*nb,2)} offset:{j*4096}")
    for p in range(4):
        k(f"v_accvgpr_read_b32 v{20+p}, a{128+p}")
    k(f"v_add_u32 v7, s97, v{vL16}")
    k("s_waitcnt lgkmcnt(0)")
    for p in range(8):
        k(f"ds_read_b128 {vr(32+4*p,4)}, v7 offset:{p*1024}")
    for p in range(8):
        k(f"s_waitcnt lgkmcnt({7-p})")
        k(f"buffer_store_dwordx4 {vr(32+4*p,4)}, v{20+(p&3)}, s[{SOU}:{SOU+3}], {'s96' if p >= 4 else '0'} offen offset:{(p&3)*1024} sc1")
    k.stamp_out(1, 34, sW)
    k.lab("k_done")
    k("s_endpgm")
    k.lab("code_end")


HEADER = """; Kernarg layout (88 bytes): A_x@0 A_k_cache@8 A_v_cache@16 A_wq@24 A_wo@32 B_x@40 B_w1@48 B_w2@56 out@64 dbg@72 ws@80
"""


def main(path):
    k = K(NAME + "_kernel")
    part_a(k)
    part_b(k)
    out = [HEADER.rstrip("\n")]
    if CFG["aslist"]:
        out.append(f"; @launch kernel={k.name} grid=(256,1,1) block=(256,1,1) lds=163840")
    else:
        out.append(f"; @launch grid=(256,1,1) block=(256,1,1) lds=163840")
    out.append('.amdgcn_target "amdgcn-amd-amdhsa--gfx950"')
    out.append(".text")
    out.append(k.text())
    out.append('.section .rodata,"a"')
    out.append(k.kd(512, 102, 256))
    open(path, "w").write("\n".join(out) + "\n")


if __name__ == "__main__":
    path = f"cdna_kernels/{NAME}.s"
    for a in sys.argv[1:]:
        if "=" in a:
            kk, v = a.split("=")
            if kk == "o":
                path = v
            else:
                CFG[kk] = int(v)
    main(path)
```

```python
import sys, struct, math

NAME = "recurrent_scan__mha_block_cached__dense_activation_silu__prompt"

XN_OFF = 0
H_OFF = 4 << 20
O_OFF = 20 << 20
E_OFF = 96 << 20
FL_OFF = 60 << 20
EP_OFF = 256 << 10
XN_SZ, H_SZ, O_SZ = 4 << 20, 128 * 112 * 1024, 16 << 20

LOG2E = 1.4426950408889634
QSCALE = (128 ** -0.5) * LOG2E


def f32(x):
    return "0x%08x" % struct.unpack("<I", struct.pack("<f", x))[0]


CFG = dict(slow_only=0, stamps=0, pf=1, force_slow=0, g2la=4, cpf=1, g2ds=0, margin=96, pk=1, aslist=1, nw0=12, accpre=0, lm=4, pmap=0, rmap=0, rank=7, rkt=5)
ST_OFF = 64 << 20


class K:
    def __init__(self, name):
        self.name = name
        self.L = []

    def __call__(self, s):
        self.L.append("    " + s)

    def lab(self, s):
        self.L.append(s + ":")

    def head(self):
        n = self.name
        return f".globl {n}\n.p2align 8\n.type {n},@function\n{n}:"

    def text(self):
        return self.head() + "\n" + "\n".join(self.L)

    def kd(self, vgpr, sgpr, accum):
        return f""".p2align 6
.amdhsa_kernel {self.name}
  .amdhsa_next_free_vgpr {vgpr}
  .amdhsa_next_free_sgpr {sgpr}
  .amdhsa_accum_offset {accum}
  .amdhsa_group_segment_fixed_size 0
  .amdhsa_kernarg_size 88
  .amdhsa_user_sgpr_count 2
  .amdhsa_user_sgpr_kernarg_segment_ptr 1
  .amdhsa_system_sgpr_workgroup_id_x 1
.end_amdhsa_kernel"""

    def stamp(self, i, real=False, grp=1):
        if CFG["stamps"] and (CFG["stamps"] == grp or i in (0, 1, 6, 7)):
            self(f"{'s_memrealtime' if real else 's_memtime'} s[{64+2*i}:{65+2*i}]")

    def stamp_out(self, kidx, sws, sw):
        if not CFG["stamps"]:
            return
        self("s_waitcnt vmcnt(0)")
        self.stamp(6)
        self.stamp(7, True)
        self("s_waitcnt lgkmcnt(0)")
        self(f"s_lshl_b32 s43, s2, 2")
        self(f"s_add_u32 s43, s43, s{sw}")
        self(f"s_lshl_b32 s43, s43, 6")
        self(f"s_add_u32 s43, s43, {ST_OFF + kidx*65536}")
        self(f"s_add_u32 s40, s{sws}, s43")
        self(f"s_addc_u32 s41, s{sws+1}, 0")
        self("s_getreg_b32 s42, hwreg(HW_REG_XCC_ID)")
        self("s_mov_b32 s86, s42")
        self("v_mov_b32 v186, 0")
        for h in range(3):
            for i in range(4):
                self(f"v_mov_b32 v{188+i}, s{64+2*(4*h+i)}")
            self(f"global_store_dwordx4 v186, v[188:191], s[40:41] offset:{16*h}")
            self("s_nop 1")

    def code_pf_setup(self, sp, start, end, vo, vt, swave):
        lab = f"{self.name}_pc"
        self(f"s_getpc_b64 s[{sp}:{sp+1}]")
        self.lab(lab)
        if start is None:
            start = lab
        else:
            self(f"s_add_u32 s{sp}, s{sp}, {start}-{lab}")
            self(f"s_addc_u32 s{sp+1}, s{sp+1}, 0")
        self(f"s_and_b32 s{sp}, s{sp}, -16")
        self(f"v_and_b32 v{vo}, 0xff, v0")
        self(f"v_lshlrev_b32 v{vo}, 4, v{vo}")
        self(f"s_lshr_b32 s{swave}, s2, 3")
        self(f"s_lshl_b32 s{swave}, s{swave}, 12")
        self(f"v_add_u32 v{vo}, s{swave}, v{vo}")
        self(f"v_min_u32 v{vo}, ({end}-{start}-16)&~15, v{vo}")
        return f"global_load_dwordx4 v[{vt}:{vt+3}], v{vo}, s[{sp}:{sp+1}]"

    def csel2(self, d, a, b):
        self(f"s_mov_b32 s{d}, {b}")
        self(f"s_cselect_b32 s{d}, {a}, s{d}")

    def srd(self, d, p, const=0, soff=None, nrec=0):
        a = self
        if const:
            a(f"s_add_u32 s{d}, s{p}, {const}")
            a(f"s_addc_u32 s{d+1}, s{p+1}, 0")
        else:
            a(f"s_mov_b32 s{d}, s{p}")
            a(f"s_mov_b32 s{d+1}, s{p+1}")
        if soff is not None:
            a(f"s_add_u32 s{d}, s{d}, {soff}")
            a(f"s_addc_u32 s{d+1}, s{d+1}, 0")
        a(f"s_and_b32 s{d+1}, s{d+1}, 0xffff")
        a(f"s_mov_b32 s{d+2}, {nrec}")
        a(f"s_mov_b32 s{d+3}, 0x20000")


def vr(b, n):
    return f"v[{b}:{b+n-1}]"


def ar(b, n):
    return f"a[{b}:{b+n-1}]"


def MFMA(d, a, b, c):
    return f"v_mfma_f32_16x16x32_bf16 {d}, {a}, {b}, {c}"


def weave(k, mfmas, fill):
    for i, m in enumerate(mfmas):
        k(m)
        for s in fill.get(i, []):
            k(s)


def interleave(k, groups, rest, skip):
    per = -(-len(rest) // (len(groups) - skip))
    pos = 0
    for n, grp in enumerate(groups):
        for x in grp: k(x)
        if n >= skip:
            end = min(len(rest), pos + per)
            while end < len(rest) and rest[end].startswith("s_addc"): end += 1
            for x in rest[pos:end]: k(x)
            pos = end
    for x in rest[pos:]: k(x)


def add_fill(fill, i, s):
    fill.setdefault(i, []).append(s)


def lane_fields(k, vl, vrr, vc, vg, v15, sw):
    k(f"v_lshrrev_b32 v{vg}, 6, v0")
    k(f"v_and_b32 v{vl}, 63, v0")
    k(f"v_bfe_u32 v{vrr}, v0, 2, 2")
    k(f"v_readfirstlane_b32 s{sw}, v{vg}")
    k(f"v_and_b32 v{vc}, 3, v0")
    k(f"v_and_b32 v{v15}, 15, v0")
    k(f"v_bfe_u32 v{vg}, v0, 4, 2")


def silu_n(k, regs, temps, sneg):
    P = list(zip(regs, temps))
    if CFG["pk"]:
        for a, t in P[::2]: k(f"v_pk_mul_f32 {vr(t,2)}, {vr(a,2)}, s[{sneg}:{sneg+1}]")
        for a, t in P: k(f"v_exp_f32 v{t}, v{t}")
        for a, t in P[::2]: k(f"v_pk_add_f32 {vr(t,2)}, {vr(t,2)}, 1.0 op_sel_hi:[1,0]")
        for a, t in P: k(f"v_rcp_f32 v{t}, v{t}")
        for a, t in P[::2]: k(f"v_pk_mul_f32 {vr(a,2)}, {vr(a,2)}, {vr(t,2)}")
        return
    for a, t in P: k(f"v_mul_f32 v{t}, s{sneg}, v{a}")
    for a, t in P: k(f"v_exp_f32 v{t}, v{t}")
    for a, t in P: k(f"v_add_f32 v{t}, 1.0, v{t}")
    for a, t in P: k(f"v_rcp_f32 v{t}, v{t}")
    for a, t in P: k(f"v_mul_f32 v{a}, v{a}, v{t}")


def reduce_g(k, op, regs, temps):
    for sw in ("v_permlane16_swap_b32", "v_permlane32_swap_b32"):
        for a, t in zip(regs, temps): k(f"v_mov_b32 v{t}, v{a}")
        k("s_nop 1")
        for a, t in zip(regs, temps): k(f"{sw} v{a}, v{t}")
        k("s_nop 1")
        for a, t in zip(regs, temps): k(f"{op} v{a}, v{a}, v{t}")


LTHRESH = 2.0 ** 60
sW, sHEAD, sQB, sW2K, sW4K, sM16, sNONCE, sOWN = 20, 21, 22, 23, 25, 33, 100, 101
vl, vrr, vc, vg, v15, vL16 = 1, 2, 3, 4, 5, 6
F_LN, F_H, F_O, F_P, F_G = 0, 1, 2, 3, 4


def raise_flag(k, name, slot, own=None):
    k("s_barrier")
    k(f"s_cmp_eq_u32 s{sW}, 0")
    k(f"s_cbranch_scc0 {name}")
    k(f"v_mov_b32 v7, s{own or sOWN}")
    k(f"v_mov_b32 v8, s{sNONCE}")
    k("s_mov_b64 exec, 1")
    k(f"global_store_dword v7, v8, s[98:99] offset:{slot*128} sc1")
    k("s_mov_b64 exec, -1")
    k.lab(name)


def spin(k, name, vflag, vdst, off, first=True):
    k("s_mov_b32 s3, 0")
    if first:
        k(f"global_load_dword v{vdst}, v{vflag}, s[98:99] offset:{off} sc1")
    k.lab(name)
    k("s_waitcnt vmcnt(0)")
    k(f"v_cmp_ne_u32 vcc, s{sNONCE}, v{vdst}")
    k("s_add_u32 s3, s3, 1")
    k(f"s_cbranch_vccz {name}_ok")
    k("s_cmp_gt_u32 s3, 0x40000")
    k(f"s_cbranch_scc1 {name}_ok")
    k(f"global_load_dword v{vdst}, v{vflag}, s[98:99] offset:{off} sc1")
    k(f"s_branch {name}")
    k.lab(f"{name}_ok")


def ln_rows(k, nyoung, vst, sxn):
    D, F, A, T = 96, 112, 144, 152
    k(f"s_mov_b32 s32, {f32(1.0/1024)}")
    for i in range(4):
        k(f"s_waitcnt vmcnt({3-i+nyoung})")
        if i == 3: k.stamp(3, grp=2)
        for r in range(4):
            k(f"v_lshlrev_b32 v{F+8*i+2*r}, 16, v{D+4*i+r}")
            k(f"v_and_b32 v{F+1+8*i+2*r}, 0xffff0000, v{D+4*i+r}")

    def reduce32(s, t):
        for p in ("quad_perm:[1,0,3,2]", "quad_perm:[2,3,0,1]", "row_half_mirror", "row_mirror"):
            k("s_nop 1")
            k(f"v_add_f32_dpp v{s}, v{s}, v{s} {p} row_mask:0xf bank_mask:0xf")
        k(f"v_mov_b32 v{t}, v{s}")
        k("s_nop 1")
        k(f"v_permlane16_swap_b32 v{s}, v{t}")
        k("s_nop 1")
        k(f"v_add_f32 v{s}, v{s}, v{t}")

    for i in range(2):
        k(f"v_pk_add_f32 {vr(A+2*i,2)}, {vr(F+2*i,2)}, {vr(F+4+2*i,2)}")
    for j in range(8, 32, 4):
        for i in range(2):
            k(f"v_pk_add_f32 {vr(A+2*i,2)}, {vr(A+2*i,2)}, {vr(F+j+2*i,2)}")
    k(f"v_pk_add_f32 {vr(A,2)}, {vr(A,2)}, {vr(A+2,2)}")
    k(f"v_add_f32 v{A}, v{A}, v{A+1}")
    reduce32(A, A + 1)
    k(f"v_mul_f32 v{A}, s32, v{A}")
    V = A + 2
    for j in range(0, 32, 2):
        t = T + (j & 2)
        k(f"v_pk_add_f32 {vr(t,2)}, {vr(F+j,2)}, {vr(A,2)} op_sel_hi:[1,0] neg_lo:[0,1] neg_hi:[0,1]")
        if j < 4:
            k(f"v_pk_mul_f32 {vr(V+(j&2),2)}, {vr(t,2)}, {vr(t,2)}")
        else:
            k(f"v_pk_fma_f32 {vr(V+(j&2),2)}, {vr(t,2)}, {vr(t,2)}, {vr(V+(j&2),2)}")
    k(f"v_pk_add_f32 {vr(V,2)}, {vr(V,2)}, {vr(V+2,2)}")
    k(f"v_add_f32 v{V}, v{V}, v{V+1}")
    reduce32(V, V + 1)
    k(f"v_mul_f32 v{V}, s32, v{V}")
    k(f"v_cvt_pk_bf16_f32 v{A}, v{A}, v{V}")
    k(f"v_and_b32 v{V}, 0xffff0000, v{A}")
    k(f"v_lshlrev_b32 v{A}, 16, v{A}")
    k(f"v_add_f32 v{V}, {f32(1e-5)}, v{V}")
    k(f"v_cvt_pk_bf16_f32 v{V}, v{V}, v{V}")
    k(f"v_lshlrev_b32 v{V}, 16, v{V}")
    k(f"v_sqrt_f32 v{V}, v{V}")
    k("s_nop 0")
    k(f"v_cvt_pk_bf16_f32 v{V}, v{V}, v{V}")
    k(f"v_lshlrev_b32 v{V}, 16, v{V}")
    k(f"v_rcp_f32 v{V}, v{V}")
    k("s_mov_b32 s32, 4096")
    for j in range(0, 32, 2):
        k(f"v_pk_add_f32 {vr(F+j,2)}, {vr(F+j,2)}, {vr(A,2)} op_sel_hi:[1,0] neg_lo:[0,1] neg_hi:[0,1]")
    for i in range(4):
        for r in range(4):
            a = F + 8 * i + 2 * r
            k(f"v_pk_mul_f32 {vr(a,2)}, {vr(a,2)}, {vr(V,2)} op_sel_hi:[1,0]")
        for r in range(4):
            a = F + 8 * i + 2 * r
            k(f"v_cvt_pk_bf16_f32 v{D+4*i+r}, v{a}, v{a+1}")
        k(f"ds_write_b128 v{vst+3}, {vr(D+4*i,4)} offset:{4096*i}")
    k("s_waitcnt lgkmcnt(0)")
    k("s_barrier")
    for i in range(4):
        k(f"ds_read_b128 {vr(D+4*i,4)}, v{vst+4} offset:{1024*i}")
    for i in range(4):
        k(f"s_waitcnt lgkmcnt({3-i})")
        k(f"buffer_store_dwordx4 {vr(D+4*i,4)}, v{vst}, s[{sxn}:{sxn+3}], {'s32' if i >= 2 else '0'} offen offset:{(i&1)*2048} sc1")


def part_a(k):
    sSOW1, sSOX, sSOWQ, sCNT = 24, 26, 27, 28
    sT0, sT1, sC = 29, 32, 30
    SK, SV, SX, SO, SWQ, SW1, SH = 8, 12, 16, 36, 52, 56, 60
    sSOK, sSOV = 40, 41
    vWq = [10, 11, 12, 13]
    vW1 = list(range(14, 21))
    vDq, vD1 = [21, 22], [23, 24]
    vX = [25, 26, 27, 28]
    XR = lambda st, mb: 32 + st * 16 + mb * 4
    WF = lambda st, nb: 96 + st * 60 + nb * 4
    vKrd = [216, 217, 218, 219]
    vVrd = list(range(220, 228))
    vKdma = [228, 229, 230, 231]
    vVdma = [232, 233]
    acc = lambda nb, mb: (nb * 4 + mb) * 4
    KB, VB, WB = 0, 65536, 98304

    k("s_cmp_ge_u32 s2, 256")
    k("s_cbranch_scc1 k_done")
    k.stamp(0, True); k.stamp(1)
    k("s_load_dwordx2 s[42:43], s[0:1], 0")
    k("s_load_dwordx2 s[34:35], s[0:1], 80")
    k("s_load_dwordx4 s[4:7], s[0:1], 8")
    k("s_load_dwordx4 s[44:47], s[0:1], 24")
    k("s_load_dwordx4 s[48:51], s[0:1], 48")
    lane_fields(k, vl, vrr, vc, vg, v15, sW)
    k("s_and_b32 s3, s2, 7")
    k("s_lshl_b32 s3, s3, 2")
    k(f"s_lshr_b32 s{sT0}, s2, 6")
    k(f"s_add_u32 s{sHEAD}, s3, s{sT0}")
    k(f"s_bfe_u32 s{sQB}, s2, 0x30003")
    k(f"s_lshl_b32 s{sOWN}, s{sQB}, 5")
    k(f"s_add_u32 s{sOWN}, s{sOWN}, s{sHEAD}")
    k(f"s_lshl_b32 s3, s{sOWN}, 3")
    k("v_lshrrev_b32 v7, 5, v0")
    k("v_add_u32 v7, s3, v7")
    k("v_and_b32 v8, 31, v0")
    k("v_lshlrev_b32 v156, 11, v7")
    k("v_lshl_add_u32 v156, v8, 4, v156")
    k(f"s_lshl_b32 s{sOWN}, s{sOWN}, 10")
    k(f"s_lshl_b32 s3, s{sQB}, 7")
    k(f"s_add_u32 s3, s3, {EP_OFF}")
    k("v_mov_b32 v158, s3")
    k("s_waitcnt lgkmcnt(0)")
    k.srd(SV, 42, nrec=2048 * 2048)
    for i in range(4):
        k(f"buffer_load_dwordx4 {vr(96+4*i,4)}, v156, s[{SV}:{SV+3}], 0 offen offset:{512*i}")
    k(f"s_add_u32 s98, s34, {FL_OFF}")
    k(f"s_addc_u32 s99, s35, 0")
    k("global_load_dword v159, v158, s[98:99] sc1")
    k(k.code_pf_setup(42, None, "code_end", 234, 236, sT0))
    k("v_lshrrev_b32 v9, 5, v0")
    k("v_lshlrev_b32 v160, 4, v9")
    k("v_lshl_add_u32 v160, v8, 7, v160")
    k("v_and_b32 v161, 63, v0")
    k("v_lshlrev_b32 v161, 4, v161")
    k("v_lshrrev_b32 v9, 6, v0")
    k("v_lshl_add_u32 v161, v9, 12, v161")
    k(f"s_lshr_b32 s3, s{sOWN}, 11")
    k("s_lshl_b32 s3, s3, 15")
    k(f"s_and_b32 s{sT0}, s{sHEAD}, 1")
    k(f"s_lshl_b32 s{sT0}, s{sT0}, 7")
    k(f"s_add_u32 s3, s3, s{sT0}")
    k("v_lshlrev_b32 v157, 13, v9")
    k("v_add_u32 v157, s3, v157")
    k("v_bfe_u32 v9, v0, 5, 1")
    k("v_lshl_add_u32 v157, v9, 10, v157")
    k("v_bfe_u32 v9, v0, 3, 2")
    k("v_lshl_add_u32 v157, v9, 8, v157")
    k("v_and_b32 v9, 7, v0")
    k("v_lshl_add_u32 v157, v9, 4, v157")
    k.srd(SO, 34, const=XN_OFF, nrec=XN_SZ)
    k(f"s_lshl_b32 s{sW4K}, s{sW}, 12")
    k(f"s_lshl_b32 s{sW2K}, s{sW}, 11")
    k(f"v_lshlrev_b32 v{vL16}, 4, v{vl}")
    k(f"s_lshl_b32 s{sT0}, s{sW}, 3")
    k(f"v_add_u32 v7, s{sT0}, v{vg}")
    k(f"v_lshlrev_b32 v8, 2, v{vg}")
    k(f"v_xor_b32 v8, v8, v{v15}")
    k(f"v_lshlrev_b32 v9, 13, v7")
    k(f"v_lshl_add_u32 v{vDq[0]}, v8, 4, v9")
    k(f"v_add_u32 v{vDq[1]}, {4*8192-1024}, v{vDq[0]}")
    k(f"s_and_b32 s{sT0}, s{sW}, 1")
    k(f"s_lshl_b32 s{sT0}, s{sT0}, 2")
    k(f"v_or_b32 v8, s{sT0}, v{vg}")
    k(f"v_lshlrev_b32 v8, 1, v8")
    k(f"v_xor_b32 v8, v8, v{v15}")
    k(f"v_mul_u32_u24 v9, 7168, v7")
    k(f"v_lshl_add_u32 v9, v8, 4, v9")
    k(f"v_cmp_gt_u32 vcc, 14, v8")
    k(f"v_mov_b32 v8, 0x80000000")
    k("s_nop 0")
    k(f"v_cndmask_b32 v{vD1[0]}, v8, v9, vcc")
    k(f"v_add_u32 v{vD1[1]}, {4*7168-1024}, v{vD1[0]}")
    k(f"s_lshl_b32 s3, s{sHEAD}, 8")
    k(f"s_sub_u32 s{sT1}, {8 << 20}, s3")
    k.srd(SWQ, 44, soff="s3", nrec=f"s{sT1}")
    k(f"s_mul_i32 s3, s{sHEAD}, 224")
    k(f"s_sub_u32 s{sT1}, 7340032, s3")
    k.srd(SW1, 48, soff="s3", nrec=f"s{sT1}")
    k(f"s_mov_b32 s{sSOX}, 0")
    k(f"s_mov_b32 s{sSOWQ}, 0")
    k(f"s_mov_b32 s{sSOW1}, 0")
    PF, sPFS, sPFO, sPFC, sPFX, vPF = SH, 93, 94, 95, 96, 30
    k(f"s_cmp_lt_u32 s{sW}, 2")
    for i in range(3):
        k(f"s_cselect_b32 s{PF+i}, s{SWQ+i}, s{SW1+i}")
    k(f"s_mov_b32 s{PF+3}, 0x20000")
    k.csel2(sT0, 8192, 7168)
    k(f"s_lshl_b32 s{sPFS}, s{sT0}, 5")
    k(f"s_and_b32 s{sT1}, s{sW}, 1")
    k(f"s_lshl_b32 s{sT1}, s{sT1}, 4")
    k(f"v_lshrrev_b32 v7, 2, v{vl}")
    k(f"v_add_u32 v7, s{sT1}, v7")
    k(f"v_mul_lo_u32 v7, v7, s{sT0}")
    k(f"v_lshl_add_u32 v{vPF}, v{vc}, 6, v7")
    k(f"s_mul_i32 s{sPFX}, s{sPFS}, s{sQB}")
    k(f"s_lshl_b32 s{sPFO}, s{sPFS}, 3")
    k(f"s_sub_u32 s{sPFC}, 8, s{sQB}")
    pfl = f"buffer_load_dword v31, v{vPF}, s[{PF}:{PF+3}], s{sPFX} offen"
    pf_pre = [f"s_and_b32 s{sPFX}, s{sPFC}, 7", f"s_cselect_b32 s{sPFX}, 0x40000000, s{sPFO}"]
    pf_post = [f"s_add_u32 s{sPFO}, s{sPFO}, s{sPFS}", f"s_add_u32 s{sPFC}, s{sPFC}, 1"]

    def xload(st, mb, imm):
        return f"buffer_load_dwordx4 {vr(XR(st,mb),4)}, v{vX[mb]}, s[{SX}:{SX+3}], s{sSOX} offen offset:{imm} sc1"

    dq = lambda i: f"buffer_load_dwordx4 v{vDq[i]}, s[{SWQ}:{SWQ+3}], s{sSOWQ} offen offset:{i*1024} lds"
    d1 = lambda i: f"buffer_load_dwordx4 v{vD1[i]}, s[{SW1}:{SW1+3}], s{sSOW1} offen offset:{i*1024} lds"
    m0q = lambda slot: f"s_add_u32 m0, s{sW2K}, {WB+slot*16384}"
    m01 = lambda slot: f"s_add_u32 m0, s{sW2K}, {WB+slot*16384+8192}"
    advw = [f"s_add_u32 s{sSOWQ}, s{sSOWQ}, {32*8192}", f"s_add_u32 s{sSOW1}, s{sSOW1}, {32*7168}"]

    def wdma_grp(slot):
        return [[m0q(slot), "s_nop 0", dq(0)], [dq(1)], [m01(slot), "s_nop 0", d1(0)], [d1(1)] + advw]

    vmem = wdma_grp(0) + wdma_grp(1) + wdma_grp(2) + wdma_grp(3)
    NW0 = CFG["nw0"]
    for grp in vmem[:NW0]:
        for x in grp: k(x)
    vmem = vmem[NW0:] + [[pfl, f"s_mov_b32 s{sPFX}, 0x40000000"]]
    k(f"s_lshl_b32 s3, s{sHEAD}, 19")
    k(f"s_cmp_lt_u32 s{sW}, 2")
    k("s_cselect_b32 s44, s4, s6")
    k("s_cselect_b32 s45, s5, s7")
    k.srd(44, 44, soff="s3", nrec=524288)
    k(f"s_and_b32 s3, s{sW}, 1")
    k(f"s_lshl_b32 s48, s{sQB}, 1")
    k("s_add_u32 s48, s48, s3")
    k("s_lshl_b32 s48, s48, 10")
    k.stamp(2, grp=2)
    ln_rows(k, 2 + NW0, 157, SO)
    k.stamp(4, grp=2)
    k2 = K("tmp")
    k2(f"s_lshl_b32 s3, s{sQB}, 4")
    k2(f"s_lshl_b32 s{sT0}, s{sW}, 2")
    k2(f"s_add_u32 s{sM16}, s3, s{sT0}")
    k2(f"s_lshl_b32 s3, s{sM16}, 15")
    k2.srd(SX, 34, const=XN_OFF, soff="s3", nrec=4 * 32768)
    for mb in range(4):
        k2(f"v_add_u32 v{vX[mb]}, {mb*32768}, v{vL16}")
    k2(f"v_lshl_add_u32 v7, v{vg}, 3, v{vrr}")
    k2(f"v_lshlrev_b32 v7, 8, v7")
    k2(f"v_add_u32 v7, {WB}, v7")
    k2(f"v_lshl_add_u32 v8, v{vc}, 4, v7")
    for js in range(4):
        k2(f"v_xor_b32 v9, {js}, v{vrr}")
        k2(f"v_lshl_add_u32 v{vWq[js]}, v9, 6, v8")
    k2(f"v_lshl_add_u32 v8, v{vc}, 3, v7")
    k2(f"v_add_u32 v8, 8192, v8")
    k2(f"v_and_b32 v29, 1, v{vg}")
    k2(f"v_lshl_add_u32 v29, v29, 2, v{vrr}")
    k2(f"s_and_b32 s97, s{sHEAD}, 1")
    for n7 in range(7):
        if n7 < 6:
            k2(f"s_add_u32 s{sT0}, s97, {n7}")
        else:
            k2(f"s_mul_i32 s{sT0}, s97, -6")
            k2(f"s_add_u32 s{sT0}, s{sT0}, 6")
        k2(f"v_xor_b32 v9, s{sT0}, v29")
        k2(f"v_lshl_add_u32 v{vW1[n7]}, v9, 5, v8")
    k2(f"s_lshl_b32 s3, s{sHEAD}, 19")
    k2.srd(SK, 4, soff="s3", nrec=524288)
    k2.srd(SV, 6, soff="s3", nrec=524288)
    k2(f"v_lshlrev_b32 v7, 8, v{v15}")
    for js in range(4):
        k2(f"v_add_u32 v9, {4*js}, v{vg}")
        k2(f"v_xor_b32 v9, v9, v{v15}")
        k2(f"v_lshl_add_u32 v{vKrd[js]}, v9, 4, v7")
    k2(f"v_lshl_add_u32 v7, v{vg}, 2, v{vrr}")
    k2(f"v_lshlrev_b32 v7, 8, v7")
    k2(f"v_add_u32 v7, {VB}, v7")
    k2(f"v_lshl_add_u32 v7, v{vc}, 3, v7")
    for db in range(8):
        k2(f"v_xor_b32 v9, {db}, v29")
        k2(f"v_lshl_add_u32 v{vVrd[db]}, v9, 5, v7")
    k2(f"v_lshlrev_b32 v7, 8, v{vg}")
    k2(f"v_add_u32 v7, s{sW4K}, v7")
    for p in range(4):
        k2(f"v_add_u32 v9, {4*p}, v{vg}")
        k2(f"v_xor_b32 v9, v9, v{v15}")
        k2(f"v_lshl_add_u32 v{vKdma[p]}, v9, 4, v7")
    for i in range(2):
        k2(f"v_add_u32 v9, {4*i}, v{vg}")
        k2(f"v_lshlrev_b32 v9, 1, v9")
        k2(f"v_xor_b32 v9, v9, v{v15}")
        k2(f"v_lshl_add_u32 v{vVdma[i]}, v9, 4, v7")
    k2(f"s_mov_b32 s{sSOK}, 0")
    k2(f"s_mov_b32 s{sSOV}, 0")
    for i in range(CFG["accpre"]):
        k2(f"v_accvgpr_write_b32 a{i}, 0")
    for x in k2.L: k(x.strip())
    k(f"s_lshl_b32 s3, s{sQB}, 15")
    k(f"v_and_b32 v156, 31, v{vl}")
    k(f"v_lshlrev_b32 v156, 10, v156")
    k(f"v_add_u32 v156, s3, v156")
    k.stamp(5, grp=2)
    k("s_waitcnt vmcnt(0)")
    k(f"v_readfirstlane_b32 s{sNONCE}, v159")
    k("s_nop 3")
    k(f"s_add_u32 s{sNONCE}, s{sNONCE}, 1")
    k(f"s_or_b32 s{sNONCE}, s{sNONCE}, 0x80000000")
    raise_flag(k, "k_ln_pub", F_LN)
    for i in range(CFG["accpre"], 240):
        k(f"v_accvgpr_write_b32 a{i}, 0")
    k.stamp(8, grp=2)
    k(f"s_cmp_eq_u32 s{sW}, 0")
    k("s_cbranch_scc0 k_ln_seen")
    spin(k, "k_ln_wait", 156, 155, F_LN * 128)
    k(f"s_cmp_eq_u32 s{sHEAD}, 0")
    k("s_cbranch_scc0 k_ln_seen")
    k(f"v_mov_b32 v8, s{sNONCE}")
    k("s_mov_b64 exec, 1")
    k("global_store_dword v158, v8, s[98:99] sc1")
    k("s_mov_b64 exec, -1")
    k.lab("k_ln_seen")
    k("s_barrier")
    k.stamp(2); k.stamp(9, grp=2); k.stamp(2, grp=5)
    for st in range(3):
        for mb in range(4): k(xload(st, mb, st * 1024))
    for grp in vmem:
        for x in grp: k(x)
    for i in range(max(11 - len(vmem), 5)): k(pfl)

    dma_k = lambda p: f"buffer_load_dwordx4 v{vKdma[p]}, s[{SK}:{SK+3}], s{sSOK} offen offset:{p*1024} lds"
    dma_v = lambda p: f"buffer_load_dwordx4 v{vVdma[p&1]}, s[{SV}:{SV+3}], s{sSOV} offen offset:{p*1024} lds"
    m0k = lambda slot: f"s_add_u32 m0, s{sW4K}, {KB+slot*16384}"
    m0v = lambda slot: f"s_add_u32 m0, s{sW4K}, {VB+slot*16384}"
    advk = f"s_add_u32 s{sSOK}, s{sSOK}, 16384"
    advv = f"s_add_u32 s{sSOV}, s{sSOV}, 16384"

    def wreads(slot, st):
        R = []
        for nb in range(15):
            for q2 in range(2):
                if nb < 8:
                    R.append(f"ds_read_b64_tr_b16 {vr(WF(st,nb)+2*q2,2)}, v{vWq[nb>>1]} offset:{slot*16384+q2*1024+(nb&1)*8}")
                else:
                    R.append(f"ds_read_b64_tr_b16 {vr(WF(st,nb)+2*q2,2)}, v{vW1[nb-8]} offset:{slot*16384+q2*1024}")
        return R

    def p1_mfmas(u):
        return [MFMA(ar(acc(nb, mb), 4), vr(WF(u & 1, nb), 4), vr(XR(u, mb), 4), ar(acc(nb, mb), 4))
                for nb in range(15) for mb in range(4)]

    def p1_stage(u, vmcnt, vm_items, rd=True):
        k(f"s_waitcnt vmcnt({vmcnt}) lgkmcnt(0)")
        k("s_barrier")
        fill = {}
        if rd:
            for i, r in enumerate(wreads((u + 1) & 3, (u + 1) & 1)):
                add_fill(fill, i, r)
        for i, (pre, ins, post) in enumerate(vm_items):
            g = 31 + 3 * i
            for s in pre: add_fill(fill, g - 1, s)
            add_fill(fill, g, ins)
            for s in post: add_fill(fill, g + 1, s)
        weave(k, p1_mfmas(u), fill)

    for r in wreads(0, 0): k(r)
    k(f"s_mov_b32 s{sCNT}, 0")
    if CFG["stamps"] == 2:
        k("s_waitcnt vmcnt(19)")
        k.stamp(10, grp=2)
    k.lab("k_p1_loop")
    for u in range(4):
        imm = 3072 if u == 0 else (u - 1) * 1024
        it = [([m0q(u)], dq(0), []), ([], dq(1), []), ([m01(u)], d1(0), []), ([], d1(1), advw)]
        it += [([], xload((u + 3) & 3, mb, imm), [f"s_add_u32 s{sSOX}, s{sSOX}, 4096"] if (u == 0 and mb == 3) else [])
               for mb in range(4)]
        it.append((pf_pre, pfl, pf_post))
        if u == 1:
            it.append(([f"s_cmp_lt_u32 s{sCNT}, 4", "s_cselect_b32 s49, s48, 0x40000000"],
                       f"buffer_load_dwordx4 v[240:243], v{vL16}, s[44:47], s49 offen", ["s_add_u32 s48, s48, 16384"]))
        p1_stage(u, 19, it)
    k(f"s_add_u32 s{sCNT}, s{sCNT}, 1")
    if CFG["stamps"] == 5:
        for n, (c, i) in enumerate(((1, 3), (2, 4), (4, 5), (6, 8))):
            k(f"s_cmp_eq_u32 s{sCNT}, {c}")
            k(f"s_cbranch_scc0 k_dg{n}")
            k.stamp(i, grp=5)
            k.lab(f"k_dg{n}")
    k(f"s_cmp_lt_u32 s{sCNT}, 7")
    k("s_cbranch_scc1 k_p1_loop")
    k.stamp(9, grp=5)

    def kv_items(kind, slot):
        L = []
        for p in range(4):
            pre = [m0k(slot) if kind == "k" else m0v(slot)] if p == 0 else []
            post = [advk if kind == "k" else advv] if p == 3 else []
            L.append((pre, dma_k(p) if kind == "k" else dma_v(p), post))
        return L

    kv = kv_items("k", 0) + kv_items("k", 1) + kv_items("v", 0) + kv_items("k", 2) + kv_items("v", 1) + kv_items("k", 3)
    p1_stage(0, 19, [([], xload(3, mb, 3072), []) for mb in range(4)] + kv[:5])
    p1_stage(1, 19, kv[5:14])
    p1_stage(2, 19, kv[14:23])
    p1_stage(3, 23, kv[23:], rd=False)
    k.stamp(3); k.stamp(2, grp=4); k.stamp(10, grp=5)

    k(f"s_mul_i32 s3, s{sM16}, {112*1024}")
    k.srd(SH, 34, const=H_OFF, soff="s3", nrec=4 * 112 * 1024)
    sHP, sHS = 93, 94
    k(f"s_mul_i32 s{sHP}, s{sHEAD}, 7")
    k(f"s_add_u32 s{sHP}, s{sHP}, s97")
    k(f"s_lshl_b32 s{sHP}, s{sHP}, 9")
    k(f"s_mul_i32 s{sHS}, s97, {-4096+8}")
    k(f"s_add_u32 s{sHS}, s{sHS}, 3072")
    k(f"s_add_u32 s{sHS}, s{sHS}, s{sHP}")
    for mb in range(4):
        k(f"v_add_u32 v{vX[mb]}, {mb*112*1024}, v{vL16}")
    if CFG["pf"]:
        k("s_load_dwordx2 s[46:47], s[0:1], 32")
        k("s_load_dwordx2 s[50:51], s[0:1], 56")
        k(f"s_lshl_b32 s3, s2, 2")
        k(f"s_add_u32 s3, s3, s{sW}")
        k("s_waitcnt lgkmcnt(0)")
        k.srd(SWQ, 46, nrec=8 << 20)
        k.srd(SW1, 50, nrec=7340032)
        k(f"s_lshl_b32 s{sSOWQ}, s3, 13")
        k(f"s_mul_i32 s{sSOW1}, s3, 7168")
    k(f"s_mov_b32 s{sC}, {f32(-LOG2E)}")
    k(f"s_mov_b32 s{sC+1}, {f32(-LOG2E)}")
    for p in range(4):
        n = 32 if p < 3 else 16
        T, U = 96, 160 + (p & 1) * 16
        for i in range(n):
            k(f"v_accvgpr_read_b32 v{T+i}, a{acc(8+2*p,0)+i}")
        silu_n(k, list(range(T, T + n)), list(range(T + 32, T + 32 + n)), sC)
        for mb in range(4):
            for b in range(n // 16):
                for h2 in range(2):
                    k(f"v_cvt_pk_bf16_f32 v{U+4*mb+2*b+h2}, v{T+16*b+4*mb+2*h2}, v{T+16*b+4*mb+2*h2+1}")
        if p == 0:
            k.stamp(3, grp=4)
            k("s_waitcnt vmcnt(0)")
            k.stamp(4, grp=4)
        for mb in range(4):
            if p < 3:
                k(f"buffer_store_dwordx4 {vr(U+4*mb,4)}, v{vX[mb]}, s[{SH}:{SH+3}], s{sHP} offen offset:{p*1024} sc1")
            else:
                k(f"buffer_store_dwordx2 {vr(U+4*mb,2)}, v{vX[mb]}, s[{SH}:{SH+3}], s{sHS} offen sc1")
    k.stamp(5, grp=4)
    Q = lambda qb, js: 32 + (qb * 4 + js) * 4
    k(f"s_mov_b32 s{sC}, {f32(QSCALE)}")
    k(f"s_mov_b32 s{sC+1}, {f32(QSCALE)}")
    for js in range(4):
        T = 96 + (js & 1) * 32
        for b in range(2):
            for i in range(16):
                k(f"v_accvgpr_read_b32 v{T+16*b+i}, a{acc(2*js+b,0)+i}")
        if CFG["pk"]:
            for i in range(0, 32, 2):
                k(f"v_pk_mul_f32 {vr(T+i,2)}, {vr(T+i,2)}, s[{sC}:{sC+1}]")
        else:
            for i in range(32):
                k(f"v_mul_f32 v{T+i}, s{sC}, v{T+i}")
        for qb in range(4):
            for b in range(2):
                for h2 in range(2):
                    k(f"v_cvt_pk_bf16_f32 v{Q(qb,js)+2*b+h2}, v{T+16*b+4*qb+2*h2}, v{T+16*b+4*qb+2*h2+1}")
    k(f"s_lshl_b32 s3, s{sM16}, 7")
    k(f"s_lshl_b32 s{sT0}, s{sHEAD}, 2")
    k(f"s_add_u32 s3, s3, s{sT0}")
    k("s_lshl_b32 s3, s3, 10")
    k(f"s_sub_u32 s{sT1}, {O_SZ}, s3")
    k.srd(SO, 34, const=O_OFF, soff="s3", nrec=f"s{sT1}")
    for qb in range(4):
        k(f"s_mov_b32 s{93+qb}, {qb*128*1024}")

    Sb = lambda buf, kb, qb: 96 + buf * 32 + (kb * 4 + qb) * 4
    Pb = lambda buf, qb: 160 + buf * 16 + qb * 4
    NM = lambda qb: 192 + 4 * qb
    vLs = [208, 209, 210, 211]
    KF = lambda f: 192 + 4 * f
    VF = lambda db: 224 + 4 * db
    O = lambda db, qb: (db * 4 + qb) * 4

    def kread(f, slot, half):
        return f"ds_read_b128 {ar(KF(f),4)}, v{vKrd[f&3]} offset:{slot*16384+half*8192+(f>>2)*4096}"

    def vread(db, q2, slot, half):
        return f"ds_read_b64_tr_b16 {ar(VF(db)+2*q2,2)}, v{vVrd[db]} offset:{slot*16384+half*8192+q2*4096}"

    def qk(buf, first_c=None):
        M = []
        for f in range(8):
            for qb in range(4):
                d = vr(Sb(buf, f >> 2, qb), 4)
                c = d if (f & 3) else (first_c if first_c is not None else vr(NM(qb), 4))
                M.append(MFMA(d, ar(KF(f), 4), vr(Q(qb, f & 3), 4), c))
        return M

    LM = CFG["lm"]
    LA_ = lambda qb: 128 + 4 * qb
    ONES = 144

    def pv(buf, lm=False):
        M = [MFMA(ar(O(db, qb), 4), ar(VF(db), 4), vr(Pb(buf, qb), 4), ar(O(db, qb), 4))
             for db in range(8) for qb in range(4)]
        if lm:
            M += [MFMA(ar(LA_(qb), 4), ar(ONES, 4), vr(Pb(buf, qb), 4), ar(LA_(qb), 4)) for qb in range(4 - LM, 4)]
        return M

    def sm_add(buf, i, add=None):
        kb, qb, r = i >> 4, (i >> 2) & 3, i & 3
        s = 96 + buf * 32 + i
        L = [f"v_add_f32 v{vLs[qb]}, v{vLs[qb]}, v{s}"] if (add or (add is None and qb < 4 - LM)) else []
        if i & 1:
            L.append(f"v_cvt_pk_bf16_f32 v{Pb(buf,qb)+2*kb+(r>>1)}, v{s-1}, v{s}")
        return L

    sm_exp = lambda buf, i: f"v_exp_f32 v{96+buf*32+i}, v{96+buf*32+i}"

    k.stamp(8, grp=4)
    k("s_barrier")
    k.stamp(4); k.stamp(8, True, grp=6)
    for f in range(8): k(kread(f, 0, 0))
    for i in range(32):
        k(f"v_accvgpr_write_b32 a{i}, 0")
    for qb in range(4):
        k(f"v_mov_b32 v{vLs[qb]}, 0")
    if LM:
        k("v_mov_b32 v7, 0x3f803f80")
        for i in range(16): k(f"v_accvgpr_write_b32 a{LA_(0)+i}, 0")
        for i in range(4): k(f"v_accvgpr_write_b32 a{ONES+i}, v7")
    k("s_waitcnt lgkmcnt(0)")
    fill = {}
    for f in range(8): add_fill(fill, 4 * f + 3, kread(f, 0, 1))
    for i in range(32, 128): add_fill(fill, (i - 32) // 3, f"v_accvgpr_write_b32 a{i}, 0")
    weave(k, qk(0, "0"), fill)
    k("s_nop 7")
    tm, tt = [212, 213, 214, 215], [234, 235, 236, 237]
    for qb in range(4):
        k(f"v_max3_f32 v{tm[qb]}, v{Sb(0,0,qb)}, v{Sb(0,0,qb)+1}, v{Sb(0,0,qb)+2}")
    for qb in range(4):
        k(f"v_max3_f32 v{tm[qb]}, v{Sb(0,0,qb)+3}, v{Sb(0,1,qb)}, v{tm[qb]}")
    for qb in range(4):
        k(f"v_max3_f32 v{tm[qb]}, v{Sb(0,1,qb)+1}, v{Sb(0,1,qb)+2}, v{tm[qb]}")
    for qb in range(4):
        k(f"v_max_f32 v{tm[qb]}, v{Sb(0,1,qb)+3}, v{tm[qb]}")
    reduce_g(k, "v_max_f32", tm, tt)
    for qb in range(4):
        k(f"v_sub_f32 v{tm[qb]}, {f32(-float(CFG['margin']))}, v{tm[qb]}")
    for qb in range(4):
        for r in range(4):
            k(f"v_mov_b32 v{NM(qb)+r}, v{tm[qb]}")
    for i in range(32):
        k(f"v_add_f32 v{96+i}, v{96+i}, v{tm[(i>>2)&3]}")
    k("s_waitcnt lgkmcnt(0)")
    fill = {}
    for f in range(8): add_fill(fill, 4 * f + 3, kread(f, 1, 0))
    for i in range(32):
        if i >= 1:
            for x in sm_add(0, i - 1): add_fill(fill, i, x)
        add_fill(fill, i, sm_exp(0, i))
    weave(k, qk(1), fill)
    k(f"s_mov_b32 s{sCNT}, 0")
    k.stamp(9, grp=4)
    k("s_waitcnt vmcnt(0)")
    raise_flag(k, "k_h_pub", F_H)
    k.stamp(10, grp=4)
    if CFG["stamps"] == 4: k("s_waitcnt lgkmcnt(0)")

    def half(tt, par):
        vm, ds, va, ex, first, last = {}, {}, {}, {}, {}, {}
        M = qk(par) + pv(par, LM)
        for db in range(8):
            for q2 in range(2):
                add_fill(ds, 2 * db + q2, vread(db, q2, tt, par))
        for f in range(8):
            add_fill(ds, 16 + 2 * f, kread(f, (tt + 1 + par) & 3, 1 - par))
        add_fill(first, 7, "s_waitcnt lgkmcnt(7)")
        if par == 1:
            add_fill(first, 15, f"s_waitcnt vmcnt({9 if tt else 8}) lgkmcnt(7)")
            add_fill(last, 15, "s_barrier")
            if CFG["pf"] and tt == 0:
                add_fill(vm, 16, f"buffer_load_dwordx4 v[244:247], v{vL16}, s[{SWQ}:{SWQ+3}], s{sSOWQ} offen")
                add_fill(first, 19, f"s_add_u32 s{sSOWQ}, s{sSOWQ}, 1024")
            if tt == 1:
                add_fill(vm, 16, "global_load_dword v238, v252, s[44:45] sc1")
            if CFG["pf"] and tt == 2:
                add_fill(vm, 16, f"buffer_load_dwordx4 v[248:251], v{vL16}, s[{SW1}:{SW1+3}], s{sSOW1} offen")
                add_fill(first, 19, f"s_add_u32 s{sSOW1}, s{sSOW1}, 1024")
            add_fill(first, 16, m0k(tt))
            for p in range(4): add_fill(vm, 17 + 4 * p, dma_k(p))
            add_fill(first, 31, advk)
        else:
            add_fill(first, 15, "s_waitcnt lgkmcnt(7)")
            add_fill(first, 16, m0v((tt + 2) & 3))
            for p in range(4): add_fill(vm, 17 + 4 * p, dma_v(p))
            add_fill(first, 31, advv)
        add_fill(first, 23, "s_waitcnt lgkmcnt(4)")
        add_fill(first, 31, "s_waitcnt lgkmcnt(4)")
        for x in sm_add(par, 31): add_fill(va, 0, x)
        late = []
        for g in range(32):
            if g >= 1:
                for x in sm_add(1 - par, g - 1, False if LM else None): add_fill(va, g, x)
                if LM: late += [x for x in sm_add(1 - par, g - 1) if x.startswith("v_add")]
            add_fill(ex, g, sm_exp(1 - par, g))
            if LM and (g & 1):
                n = 1 if g < 16 else (0 if g in vm else 2)
                for x in late[:n]: add_fill(va, g, x)
                late = late[n:]
        for x in late: add_fill(va, 31, x)
        fill = {}
        for g in range(32):
            fill[2 * g] = first.get(g, []) + vm.get(g, []) + ds.get(g, []) + va.get(g, [])
            fill[2 * g + 1] = ex.get(g, []) + last.get(g, [])
        weave(k, M, fill)

    k("s_load_dwordx2 s[44:45], s[0:1], 72")
    k(f"s_lshr_b32 s3, s2, 3")
    k(f"s_add_u32 s3, s3, s{sW}")
    k("s_cmp_eq_u32 s3, 0")
    k(f"s_cselect_b32 s48, {CFG['rkt']}, 99")
    k("s_and_b32 s3, s2, 7")
    k("s_lshl_b32 s3, s3, 2")
    k("s_add_u32 s3, s3, 32")
    k("v_mov_b32 v252, s3")
    k("v_mov_b32 v253, 0")
    k("v_mov_b32 v254, 1")
    k("v_mov_b32 v255, -1")
    k("v_mov_b32 v238, 0")
    k("s_waitcnt lgkmcnt(0)")
    k.lab("k_attn_loop")
    k(f"s_cmp_ge_u32 s{sCNT}, s48")
    k("s_cbranch_scc1 k_rank")
    k.lab("k_rank_done")
    for i in range(8):
        if i == 6:
            k(f"s_cmp_eq_u32 s{sCNT}, 7")
            k("s_cbranch_scc1 k_attn_tail")
        half(i >> 1, i & 1)
    k(f"s_add_u32 s{sCNT}, s{sCNT}, 1")
    k("s_branch k_attn_loop")
    k.lab("k_rank")
    k("s_mov_b64 exec, 1")
    k(f"s_cmp_eq_u32 s48, {CFG['rkt']}")
    k("s_cbranch_scc0 k_rank2")
    k("global_atomic_add v255, v253, v254, s[44:45] sc0 sc1")
    k("s_add_u32 s48, s48, 1")
    k("s_mov_b64 exec, -1")
    k("s_branch k_rank_done")
    k.lab("k_rank2")
    k("v_readfirstlane_b32 s3, v255")
    k("s_mov_b32 s48, 99")
    k("s_cmp_eq_u32 s3, -1")
    k("s_cbranch_scc0 k_rank3")
    k("s_waitcnt vmcnt(0)")
    k.lab("k_rank3")
    k("v_add_u32 v254, 1, v255")
    k("global_store_dword v252, v254, s[44:45] sc1")
    k("s_mov_b64 exec, -1")
    k("s_branch k_rank_done")
    k.lab("k_attn_tail")
    for db in range(8):
        for q2 in range(2): k(vread(db, q2, 3, 0))
    for x in sm_add(0, 31): k(x)
    k("s_waitcnt lgkmcnt(0)")
    fill = {}
    for i in range(32):
        if i >= 1:
            for x in sm_add(1, i - 1): add_fill(fill, i, x)
        add_fill(fill, i, sm_exp(1, i))
        if (i & 3) == 3:
            for q2 in range(2): fill[i] = [vread(i >> 2, q2, 3, 1)] + fill[i]
    weave(k, pv(0, LM), fill)
    k("s_nop 0")
    for x in sm_add(1, 31): k(x)
    k("s_waitcnt lgkmcnt(0)")
    if LM:
        k("s_nop 0")
        for m in pv(1, True)[32:]: k(m)
    assert LM == 4

    def o_chunk(c):
        T = 96 + (c & 1) * 48
        W = [f"v_accvgpr_read_b32 v{T+16*b+i}, a{O(2*c+b,0)+i}" for b in range(2) for i in range(16)]
        for i in range(0, 32, 2):
            L = vLs[(i >> 2) & 3]
            W.append(f"v_pk_mul_f32 {vr(T+i,2)}, {vr(T+i,2)}, {vr(L&~1,2)} op_sel:[0,{L&1}] op_sel_hi:[1,{L&1}]")
        for qb in range(4):
            for b in range(2):
                for h2 in range(2):
                    W.append(f"v_cvt_pk_bf16_f32 v{T+32+4*qb+2*b+h2}, v{T+16*b+4*qb+2*h2}, v{T+16*b+4*qb+2*h2+1}")
            W.append(f"buffer_store_dwordx4 {vr(T+32+4*qb,4)}, v{vL16}, s[{SO}:{SO+3}], s{93+qb} offen offset:{c*1024} sc1")
        return W

    fill = {}
    for qb in range(4): add_fill(fill, 5 + (qb >> 1), f"v_accvgpr_read_b32 v{vLs[qb]}, a{LA_(qb)}")
    for x in (f"s_mov_b32 s{sT0}, {f32(LTHRESH if not CFG['force_slow'] else -1.0)}",
              f"v_add_f32 v213, v{vLs[0]}, v{vLs[1]}", f"v_add_f32 v214, v{vLs[2]}, v{vLs[3]}"): add_fill(fill, 7, x)
    add_fill(fill, 8, "v_add_f32 v212, v213, v214")
    add_fill(fill, 8, f"v_cmp_nge_f32 vcc, s{sT0}, v212")
    for qb in range(4): add_fill(fill, 9 + qb, f"v_rcp_f32 v{vLs[qb]}, v{vLs[qb]}")
    add_fill(fill, 13, "s_cmp_lg_u64 vcc, 0"); add_fill(fill, 13, "s_cselect_b32 s42, 1, 0")
    w0 = o_chunk(0)
    for n, x in enumerate(w0[:32]): add_fill(fill, 14 + n // 2, x)
    weave(k, pv(1), fill)
    for x in w0[32:]: k(x)
    k.stamp(5); k.stamp(2, True, grp=6)
    k("s_branch k_attn_epi2")

    k.lab("k_slow")
    k("s_waitcnt vmcnt(0) lgkmcnt(0)")
    k("s_mov_b32 s42, 0")
    for i in range(128):
        k(f"v_accvgpr_write_b32 a{i}, 0")
    vM = [192, 193, 194, 195]
    tm, tt, al = [212, 213, 214, 215], [234, 235, 236, 237], [240, 241, 242, 243]
    for qb in range(4):
        k(f"v_mov_b32 v{vM[qb]}, {f32(-3.0e38)}")
        k(f"v_mov_b32 v{vLs[qb]}, 0")
    k(f"s_mov_b32 s{sSOK}, 0")
    k(f"s_mov_b32 s{sSOV}, 0")
    k.lab("k_slow_loop")
    k("s_barrier")
    k(m0k(0)); k("s_nop 0")
    for p in range(4): k(dma_k(p))
    k(m0v(0)); k("s_nop 0")
    for p in range(4): k(dma_v(p))
    k(advk); k(advv)
    k("s_waitcnt vmcnt(0)")
    k("s_barrier")
    k("s_mov_b32 s43, 0")
    k.lab("k_slow_half")
    for f in range(8): k(kread(f, 0, 0))
    for db in range(8):
        for q2 in range(2): k(vread(db, q2, 0, 0))
    k("s_waitcnt lgkmcnt(0)")
    for m in qk(0, "0"): k(m)
    for r in vKrd + vVrd:
        k(f"v_xor_b32 v{r}, 0x2000, v{r}")
    for qb in range(4):
        k(f"v_max3_f32 v{tm[qb]}, v{Sb(0,0,qb)}, v{Sb(0,0,qb)+1}, v{vM[qb]}")
    for a, b in (((0, 2), (0, 3)), ((1, 0), (1, 1)), ((1, 2), (1, 3))):
        for qb in range(4):
            k(f"v_max3_f32 v{tm[qb]}, v{Sb(0,a[0],qb)+a[1]}, v{Sb(0,b[0],qb)+b[1]}, v{tm[qb]}")
    reduce_g(k, "v_max_f32", tm, tt)
    for qb in range(4): k(f"v_sub_f32 v{al[qb]}, v{vM[qb]}, v{tm[qb]}")
    for qb in range(4): k(f"v_exp_f32 v{al[qb]}, v{al[qb]}")
    for qb in range(4): k(f"v_mov_b32 v{vM[qb]}, v{tm[qb]}")
    for qb in range(4): k(f"v_mul_f32 v{vLs[qb]}, v{vLs[qb]}, v{al[qb]}")
    for i in range(32): k(f"v_sub_f32 v{96+i}, v{96+i}, v{tm[(i>>2)&3]}")
    for i in range(32): k(sm_exp(0, i))
    k("s_nop 0")
    for i in range(32):
        for x in sm_add(0, i, True): k(x)
    for db in range(8):
        for i in range(16): k(f"v_accvgpr_read_b32 v{128+i}, a{O(db,0)+i}")
        for i in range(16): k(f"v_mul_f32 v{128+i}, v{128+i}, v{al[i>>2]}")
        for i in range(16): k(f"v_accvgpr_write_b32 a{O(db,0)+i}, v{128+i}")
    k("s_nop 1")
    for m in pv(0): k(m)
    k("s_nop 7")
    k("s_add_u32 s43, s43, 1")
    k("s_cmp_lt_u32 s43, 2")
    k("s_cbranch_scc1 k_slow_half")
    k(f"s_cmp_lt_u32 s{sSOK}, 524288")
    k("s_cbranch_scc1 k_slow_loop")

    k.lab("k_attn_epi")
    reduce_g(k, "v_add_f32", vLs, [234, 235, 236, 237])
    for qb in range(4): k(f"v_rcp_f32 v{vLs[qb]}, v{vLs[qb]}")
    for x in o_chunk(0): k(x)
    k.lab("k_attn_epi2")
    for c in range(1, 4):
        for x in o_chunk(c): k(x)
    k(f"s_lshl_b32 s{sT1}, s{sW}, 2")
    k(f"s_add_u32 s{sT1}, s{sT1}, 131072")
    k(f"v_mov_b32 v213, s{sT1}")
    k("v_mov_b32 v214, s42")
    k("ds_write_b32 v213, v214")
    k("v_mov_b32 v213, 131072")
    k("s_waitcnt lgkmcnt(0)")
    k("s_barrier")
    k("ds_read_b128 v[244:247], v213")
    k("s_waitcnt lgkmcnt(0)")
    k("v_or_b32 v244, v244, v245")
    k("v_or3_b32 v244, v244, v246, v247")
    k("s_nop 0")
    k("v_readfirstlane_b32 s42, v244")
    k("s_nop 3")
    k("s_cmp_lg_u32 s42, 0")
    k("s_cbranch_scc1 k_slow")


def part_b(k):
    sNT, sISS, sKH = 40, 24, 41
    sSOA, sSOW, sCNT, sLAST = 26, 27, 28, 29
    SA, SWT, SG, SXI, SOU, SE, SEP = 8, 12, 16, 36, 44, 52, 56
    sT0, sT1, sC, sNK = 42, 32, 30, 43
    vWrd = list(range(10, 18))
    vD = [18, 19]
    vX = [20, 21, 22, 23]
    vXo = [24, 25]
    X = 224
    XR = lambda st, mb: 32 + st * 16 + mb * 4
    WF = lambda st, nb: 160 + st * 32 + nb * 4
    acc = lambda nb, mb: (mb * 8 + nb) * 4
    LA = CFG["g2la"]

    sVH, sOWNV, sSEQ, sMSK = 61, 60, 30, 62
    JOB = [0b000, 0b001, 0b100, 0b101, 0b010, 0b011, 0b111, 0b110]
    S68, S60 = (1, [8, 9, 11, 24, 26, 0, 2, 16, 18]), (1, [13, 14, 28, 30, 4, 6, 20, 22])
    S72, S56 = (0, [8, 10, 24, 26, 0, 2, 16, 18, 12]), (0, [14, 28, 30, 4, 6, 20, 22])
    B60, B52 = (1, [0, 1, 3, 5, 7, 9, 11, 13]), (1, [15, 16, 18, 20, 22, 24, 26])
    if CFG["rank"] < 6:
        SEQ = [B60, B60, B52, B52] + {2: [S68, S68, S60, S60], 4: [S72, S68, S56, S60], 5: [S72, S72, S56, S56]}[CFG["rank"]]
    else:
        JOB = [0b000, 0b001, 0b100, 0b101, 0b110, 0b111, 0b010, 0b011]
        B64, B48 = (0, list(range(0, 16, 2))), (0, list(range(16, 28, 2)))
        SA64, SB64 = (0, list(range(0, 16, 2))), (0, list(range(16, 32, 2)))
        N68, N60 = (1, [0] + list(range(1, 17, 2))), (1, [17] + list(range(18, 32, 2)))
        ob = {6: [B64, B64, B48, B48], 7: [B64, B64, B48, B48], 8: [B60, B60, B52, B52]}[CFG["rank"]]
        SEQ = ob + ([N68, N68, N60, N60] if CFG["rank"] == 7 else [SA64, SA64, SB64, SB64])
    pk = lambda L, w=4: sum(v << (w * i) for i, v in enumerate(L))
    k("s_mov_b32 s3, 0")
    k.lab("k_rk_wait")
    k("v_readfirstlane_b32 s60, v238")
    k("s_add_u32 s3, s3, 1")
    k("s_nop 2")
    k("s_cmp_lg_u32 s60, 0")
    k("s_cbranch_scc1 k_rk_seen")
    k("s_cmp_gt_u32 s3, 0x40000")
    k("s_cbranch_scc1 k_rk_seen")
    k("global_load_dword v238, v252, s[44:45] sc1")
    k("s_waitcnt vmcnt(0)")
    k("s_branch k_rk_wait")
    k.lab("k_rk_seen")
    k("s_load_dwordx2 s[4:5], s[0:1], 32")
    k("s_load_dwordx2 s[6:7], s[0:1], 56")
    k("s_load_dwordx2 s[48:49], s[0:1], 64")
    k("s_load_dwordx2 s[50:51], s[0:1], 0")
    k("s_sub_u32 s60, s60, 1")
    k("s_and_b32 s60, s60, 7")
    k("s_lshl_b32 s60, s60, 2")
    k(f"s_lshr_b32 s{sVH}, {pk(JOB):#x}, s60")
    k(f"s_and_b32 s{sVH}, s{sVH}, 7")
    k(f"s_lshl_b32 s{sVH}, s{sVH}, 2")
    k(f"s_and_b32 s3, s{sHEAD}, 3")
    k(f"s_add_u32 s{sVH}, s{sVH}, s3")
    k(f"s_lshr_b32 s{sISS}, s{sVH}, 4")
    k(f"s_bfe_u32 s{sKH}, s{sVH}, 0x10003")
    k(f"s_and_b32 s{sNT}, s{sVH}, 7")
    k(f"s_lshl_b32 s{sOWNV}, s{sQB}, 5")
    k(f"s_add_u32 s{sOWNV}, s{sOWNV}, s{sVH}")
    k(f"s_lshl_b32 s{sOWNV}, s{sOWNV}, 10")
    PB, RB = 8, 16
    k(f"s_lshr_b32 s3, s{sVH}, 2")
    for n, (hf, L) in enumerate(SEQ):
        v = pk(L, 5) | (hf << 63)
        if n: k(f"s_cmp_eq_u32 s3, {n}")
        op = "s_cselect_b32" if n else "s_mov_b32"
        tail = lambda r: f", s{r}" if n else ""
        k(f"{op} s{sSEQ}, {v & 0xffffffff:#x}{tail(sSEQ)}")
        k(f"{op} s{sSEQ+1}, {v >> 32:#x}{tail(sSEQ+1)}")
        k(f"{op} s{sLAST}, {len(L) - 1}{tail(sLAST)}")
    k(f"s_lshr_b32 s97, s{sSEQ+1}, 31")
    k(f"s_lshl_b32 s96, s97, 1")
    k(f"s_sub_u32 s96, 3, s96")
    nextb = lambda m: [f"s_and_b32 s63, s{sSEQ}, 31", f"s_lshr_b64 s[{sSEQ}:{sSEQ+1}], s[{sSEQ}:{sSEQ+1}], 5",
                       f"s_lshl_b32 s{sSOW}, s63, 18", f"s_lshl_b32 s{sSOA}, s63, 12",
                       f"s_lshl_b32 s{sMSK}, {m}, s63", f"s_mul_i32 s{sMSK}, s{sMSK}, s{sISS}"]
    for x in nextb("s96"): k(x)
    k("s_lshl_b32 s96, s97, 15")
    k(f"s_add_u32 s96, s96, s{sW2K}")
    k(f"s_lshl_b32 s{sT0}, s{sW}, 14")
    k(f"v_lshlrev_b32 v7, 11, v{vg}")
    k(f"v_add_u32 v7, s{sT0}, v7")
    for i in range(2):
        k(f"v_add_u32 v8, {4*i}, v{vg}")
        k(f"v_lshlrev_b32 v8, 1, v8")
        k(f"v_xor_b32 v8, v8, v{v15}")
        k(f"v_lshl_add_u32 v8, v8, 4, v7")
        k(f"v_add_u32 v{vD[i]}, {i*(8192-1024)}, v8")
    k(f"s_cmp_eq_u32 s{sISS}, 1")
    k.csel2(sNK, 128, 112)
    k.csel2(93, O_OFF, H_OFF)
    k.csel2(94, O_SZ, H_SZ)
    k.csel2(95, 8388608, 7340032)
    k("s_waitcnt lgkmcnt(0)")
    k("s_cselect_b32 s4, s4, s6")
    k("s_cselect_b32 s5, s5, s7")
    k(f"s_lshl_b32 s3, s{sNT}, 8")
    k(f"s_sub_u32 s95, s95, s3")
    k.srd(SWT, 4, soff="s3", nrec="s95")

    xload = lambda st, mb: f"buffer_load_dwordx4 {vr(XR(st,mb),4)}, v{vX[mb]}, s[{SA}:{SA+3}], s{sSOA} offen offset:{(st&3)*1024} sc1"
    dw = lambda i: f"buffer_load_dwordx4 v{vD[i]}, s[{SWT}:{SWT+3}], s{sSOW} offen offset:{i*1024} lds"
    m0w = lambda slot: f"s_add_u32 m0, s{sW2K}, {slot*8192}"
    advw = f"s_add_u32 s{sSOW}, s{sSOW}, {32*2048}"
    adva = f"s_add_u32 s{sSOA}, s{sSOA}, 4096"
    vmem = []
    for st in range(4):
        vmem += [[f"s_add_u32 m0, s96, {st*8192}", "s_nop 0", dw(0)], [dw(1), advw]]
    k2 = K("tmp")
    k2(f"s_mul_i32 s3, s{sM16}, s{sNK}")
    k2(f"s_lshl_b32 s3, s3, 10")
    k2(f"s_sub_u32 s94, s94, s3")
    k2(f"s_add_u32 s3, s3, s93")
    k2.srd(SA, 34, soff="s3", nrec="s94")
    k2(f"s_lshl_b32 s93, s{sKH}, 1")
    for j in range(4):
        k2(f"s_xor_b32 s{sT0}, s93, {j}")
        k2(f"s_mul_i32 s{sT0}, s{sT0}, s{sNK}")
        k2(f"s_lshl_b32 s{sT0}, s{sT0}, 10")
        k2(f"v_add_u32 v{vX[j]}, s{sT0}, v{vL16}")
    k2(f"v_lshlrev_b32 v7, 11, v{v15}")
    k2(f"v_lshl_add_u32 v7, v{vg}, 4, v7")
    k2(f"s_add_u32 s3, s{sM16}, s93")
    k2(f"s_lshl_b32 s3, s3, 15")
    k2(f"s_lshl_b32 s{sT1}, s{sNT}, 8")
    k2(f"s_add_u32 s3, s3, s{sT1}")
    k2(f"v_add_u32 v{vXo[0]}, s3, v7")
    k2(f"v_add_u32 v{vXo[1]}, 32768, v{vXo[0]}")
    k2(f"v_lshl_add_u32 v7, v{vg}, 2, v{vrr}")
    k2(f"v_lshlrev_b32 v7, 8, v7")
    k2(f"v_lshl_add_u32 v7, v{vc}, 3, v7")
    k2(f"v_and_b32 v9, 1, v{vg}")
    k2(f"v_lshl_add_u32 v9, v9, 2, v{vrr}")
    for nb in range(8):
        k2(f"v_xor_b32 v8, {nb}, v9")
        k2(f"v_lshl_add_u32 v{vWrd[nb]}, v8, 5, v7")
    for i in range(128):
        k2(f"v_accvgpr_write_b32 a{i}, 0")
    k2(f"s_lshl_b32 s3, s{sOWNV}, 6")
    k2(f"s_lshl_b32 s{sT1}, s{sW}, 14")
    k2(f"s_add_u32 s3, s3, s{sT1}")
    k2.srd(SE, 34, const=E_OFF, soff="s3", nrec=16384)
    k2(f"s_xor_b32 s{sT0}, s3, {PB << 16}")
    k2.srd(SEP, 34, const=E_OFF, soff=f"s{sT0}", nrec=8192)
    k2(f"s_xor_b32 s{sT0}, s3, {RB << 16}")
    k2.srd(SG, 34, const=E_OFF + 8192, soff=f"s{sT0}", nrec=8192)
    k2(f"s_lshl_b32 s{sT1}, s{sISS}, 22")
    k2.srd(SXI, 50, nrec=f"s{sT1}")
    k2.srd(SOU, 48, nrec=2048 * 2048)
    k2(f"s_lshl_b32 s3, s{sQB}, 15")
    k2(f"s_lshl_b32 s{sT1}, s{sISS}, 7")
    k2(f"s_add_u32 s3, s3, s{sT1}")
    k2(f"v_and_b32 v26, 31, v{vl}")
    k2(f"v_lshlrev_b32 v26, 10, v26")
    k2(f"v_add_u32 v26, s3, v26")
    for x in k2.L: k(x.strip())
    k("s_waitcnt vmcnt(0)")
    raise_flag(k, "k_o_pub", F_O)
    k.stamp(8)
    for grp in vmem:
        for x in grp: k(x)
    k(f"s_sub_u32 s93, s{sISS}, 1")
    k(f"s_or_b32 s93, s93, s{sMSK}")
    k(f"s_cmp_eq_u32 s{sW}, 0")
    k("s_cbranch_scc0 k_dep_seen")
    k("s_mov_b32 s3, 0")
    k.lab("k_dep_wait")
    k(f"global_load_dword v27, v26, s[98:99] offset:{F_H*128} sc1")
    k("s_waitcnt vmcnt(0)")
    k(f"v_cmp_ne_u32 vcc, s{sNONCE}, v27")
    k("s_add_u32 s3, s3, 1")
    k("s_and_b32 s63, vcc_lo, s93")
    k("s_cbranch_scc0 k_dep_seen")
    k("s_cmp_gt_u32 s3, 0x40000")
    k("s_cbranch_scc0 k_dep_wait")
    k.lab("k_dep_seen")
    k("s_waitcnt vmcnt(0)")
    k("s_barrier")
    k.stamp(9)
    NV = 4 + 6 * (LA - 2)
    k(f"global_load_dword v27, v26, s[98:99] offset:{F_H*128} sc1")
    assert LA == 4
    k(f"s_mov_b32 s63, s97")
    k("s_cmp_eq_u32 s97, 1")
    k("s_cbranch_scc1 k_b_half")
    for st in range(4):
        for mb in range(4): k(xload(st, mb))
    k(adva)
    k("s_branch k_b_x")
    k.lab("k_b_half")
    for st in range(4, 8):
        for mb in range(4): k(xload(st, mb))
    k.lab("k_b_x")
    k("s_mov_b32 s3, 0x40000000")
    for i in range(NV - 4 * (LA - 1)):
        k(f"buffer_load_dword v31, v{vL16}, s[{SA}:{SA+3}], s3 offen")
    k(f"v_lshlrev_b32 v7, 11, v{v15}")
    k(f"v_sub_u32 v7, v{vXo[0]}, v7")
    k(f"v_lshlrev_b32 v8, 4, v{vg}")
    k(f"v_sub_u32 v7, v7, v8")
    k(f"v_lshl_add_u32 v7, v{vg}, 11, v7")
    k(f"s_mov_b32 s96, {16*2048}")
    k(f"s_lshl_b32 s97, s{sW}, 13")
    k(f"s_add_u32 s97, s97, 65536")
    for p in range(4):
        k(f"v_add_u32 v8, {4*p}, v{vg}")
        k(f"v_xor_b32 v8, v8, v{v15}")
        k(f"v_lshl_add_u32 v8, v8, 4, v7")
        k(f"v_add_u32 v{224+p}, {p*(8192-1024)}, v8")
        k(f"v_accvgpr_write_b32 a{128+p}, v{224+p}")
    k(f"s_xor_b32 s3, s{sOWNV}, {PB << 10}")
    k(f"v_mov_b32 v28, s3")
    k(f"s_xor_b32 s3, s{sOWNV}, {RB << 10}")
    k(f"v_mov_b32 v29, s3")

    def wreads(slot, st):
        return [f"ds_read_b64_tr_b16 {vr(WF(st,nb)+2*q2,2)}, v{vWrd[nb]} offset:{slot*8192+q2*4096}"
                for nb in range(8) for q2 in range(2)]

    def mfmas(u):
        return [MFMA(ar(acc(nb, mb), 4), vr(WF(u & 1, nb), 4), vr(XR(u, mb), 4), ar(acc(nb, mb), 4))
                for mb in range(4) for nb in range(8)]

    k(f"s_mov_b32 s{sCNT}, 0")
    k("s_cmp_eq_u32 s63, 1")
    k("s_cbranch_scc0 k_b_full")
    for r in wreads(4, 0): k(r)
    k("s_branch k_g2_mid")
    k.lab("k_b_full")
    for r in wreads(0, 0): k(r)
    k.lab("k_g2_loop")
    for u in range(8):
        if u == 4: k.lab("k_g2_mid")
        k(f"s_waitcnt vmcnt({NV}) lgkmcnt(0)")
        if u == 8 - LA:
            for x in nextb(3): k(x)
            k(f"v_cmp_ne_u32 vcc, s{sNONCE}, v27")
            k("s_mov_b32 s3, 0")
            k(f"s_and_b32 s63, vcc_lo, s{sMSK}")
            k("s_cbranch_scc0 k_grp_ok")
            k.lab("k_grp_wait")
            k(f"global_load_dword v27, v26, s[98:99] offset:{F_H*128} sc1")
            k("s_waitcnt vmcnt(0)")
            k(f"v_cmp_ne_u32 vcc, s{sNONCE}, v27")
            k("s_add_u32 s3, s3, 1")
            k(f"s_and_b32 s63, vcc_lo, s{sMSK}")
            k("s_cbranch_scc0 k_grp_ok")
            k("s_cmp_gt_u32 s3, 0x40000")
            k("s_cbranch_scc0 k_grp_wait")
            k.lab("k_grp_ok")
        k("s_barrier")
        fill = {}
        if u == (8 - 2 * LA) % 8:
            add_fill(fill, 29, f"global_load_dword v27, v26, s[98:99] offset:{F_H*128} sc1")
        t = (u + LA) & 7
        vg_ = [11, 16, 21, 26]
        add_fill(fill, 0, m0w(t))
        add_fill(fill, 1, dw(0)); add_fill(fill, 6, dw(1)); add_fill(fill, 7, advw)
        for mb in range(4): add_fill(fill, vg_[mb], xload(t, mb))
        if t == 3: add_fill(fill, 31, adva)
        slots = [g for g in range(32) if g not in [1, 6] + vg_]
        for r, g in zip(wreads((u + 1) & 7, (u + 1) & 1), slots): add_fill(fill, g, r)
        weave(k, mfmas(u), fill)
    k(f"s_add_u32 s{sCNT}, s{sCNT}, 1")
    k(f"s_cmp_lt_u32 s{sCNT}, s{sLAST}")
    k("s_cbranch_scc1 k_g2_loop")
    DS = CFG["g2ds"]
    for i in range(1, 4):
        k(f"s_mov_b32 s{92+i}, {4096*i}")
    so4 = lambda i: "0" if i == 0 else f"s{92+i}"
    hm = lambda u, mbs: [MFMA(ar(acc(nb, mb), 4), vr(WF(u & 1, nb), 4), vr(XR(u, mb), 4), ar(acc(nb, mb), 4))
                         for mb in mbs for nb in range(8)]
    q = []
    for st in range(LA): q += [("W", st)] * 2 + [("K", st)] * 2 + [("S", st)] * 2
    pend = []
    for st in range(LA, 8):
        pend += [([m0w(st)], dw(0), [], ("W", st)), ([], dw(1), [advw], ("W", st)),
                 ([], xload(st, 2), [], ("S", st)), ([], xload(st, 3), [], ("S", st))]
        if st - LA < DS:
            pend += [([], xload(st, mb), [], ("K", st)) for mb in range(2)]
    pend += [([], xload(st, mb), [], ("K", st)) for st in range(LA + DS, 8) for mb in range(2)]
    for u in range(8):
        full = u < DS
        tags = [("S", u)] + ([("K", u)] if full else []) + ([("W", u + 1)] if u < 7 else [])
        need = [n for n, e in enumerate(q) if e in tags]
        k(f"s_waitcnt vmcnt({len(q) - 1 - max(need)}) lgkmcnt({0 if u <= DS else 8})")
        if u < 7: k("s_barrier")
        fill = {}
        pos = [1, 6, 11, 16, 21, 26] if full else [1, 5, 9, 13]
        for g in pos:
            if not pend: break
            pre, ins, post, tag = pend.pop(0)
            for x in pre: add_fill(fill, g - 1, x)
            add_fill(fill, g, ins)
            for x in post: add_fill(fill, g + 1, x)
            q.append(tag)
        nxt = u + 1 if u < 7 else DS
        rd = wreads(nxt, (u + 1) & 1)
        if full:
            for r, g in zip(rd, [g for g in range(32) if g not in pos]): add_fill(fill, g, r)
            weave(k, mfmas(u), fill)
        else:
            for g, r in enumerate(rd): add_fill(fill, g, r)
            add_fill(fill, 3, "s_waitcnt lgkmcnt(4)")
            if u >= 6:
                add_fill(fill, 0, f"s_add_u32 m0, s97, {(u-6)*4096}")
                for p in range(4):
                    add_fill(fill, 1 + 4 * p, f"buffer_load_dwordx4 v{224+p}, s[{SXI}:{SXI+3}], {'s96' if u == 7 else '0'} offen offset:{p*1024} lds")
            if u == 7:
                add_fill(fill, 15, f"global_load_dword v30, v29, s[98:99] offset:{F_G*128} sc1")
            weave(k, hm(u, (2, 3)), fill)
    assert not pend and DS % 2 == 0
    work = []
    RR = lambda i: XR(4 + (i >> 2), 2) + (i & 3) * 2
    for h in range(2):
        for i in range(16):
            work += [f"v_accvgpr_read_b32 v{RR(i)}, a{64+32*h+2*i}", f"v_accvgpr_read_b32 v{RR(i)+1}, a{65+32*h+2*i}"]
        for i in range(16):
            U = XR(2 * h + (i >> 3), 2) + (i & 7)
            work.append(f"v_cvt_pk_bf16_f32 v{U}, v{RR(i)}, v{RR(i)+1}")
            if (i & 3) == 3:
                if h == 0 and i == 3: work.append("s_waitcnt vmcnt(9)")
                work.append(f"buffer_store_dwordx4 {vr(U-3,4)}, v{vL16}, s[{SE}:{SE+3}], {so4(h)} offen offset:{(i>>2)*1024} sc1")
    for u in range(DS, 8):
        k("s_waitcnt lgkmcnt(8)")
        fill = {}
        if u < 7:
            for g, r in enumerate(wreads(u + 1, (u + 1) & 1)): add_fill(fill, g, r)
        add_fill(fill, 3, f"s_waitcnt lgkmcnt({4 if u < 7 else 0})")
        for g in range(16):
            n = 0
            while work and n < (2 if DS < 4 else 3):
                x = work.pop(0)
                if x.startswith("buffer"): fill[g] = [x] + fill.get(g, []) if n == 0 else fill.get(g, []) + [x]
                else: add_fill(fill, g, x)
                n += 1
        weave(k, hm(u, (0, 1)), fill)
    assert not work
    k.stamp(10); k.stamp(3, True, grp=6)

    T = 32
    k(f"s_mov_b32 s{sC}, {f32(-LOG2E)}")
    k(f"s_mov_b32 s{sC+1}, {f32(-LOG2E)}")
    k(f"v_lshrrev_b32 v7, 1, v{vg}")
    k(f"v_xor_b32 v7, v7, v{v15}")
    k(f"v_lshlrev_b32 v7, 4, v7")
    k(f"v_lshl_add_u32 v7, v{v15}, 8, v7")
    k(f"v_and_b32 v8, 1, v{vg}")
    k(f"v_lshl_add_u32 v7, v8, 3, v7")
    k(f"v_add_u32 v7, s97, v7")
    for nb in range(8):
        k(f"v_xor_b32 v{10+nb}, {nb*32}, v7")
    k("s_waitcnt vmcnt(0)")
    for j in range(2):
        for nb in range(8):
            k(f"ds_read_b64 {vr(X+(j*8+nb)*2,2)}, v{10+nb} offset:{j*4096}")
    raise_flag(k, "k_p_pub", F_P, sOWNV)
    k(f"s_cmp_eq_u32 s{sISS}, 1")
    k("s_cbranch_scc0 k_no_g")
    k(f"v_cmp_ne_u32 vcc, s{sNONCE}, v30")
    k("s_cbranch_vccz k_g_wait_ok")
    spin(k, "k_g_wait", 29, 30, F_G * 128)
    for i in range(8):
        k(f"buffer_load_dwordx4 {vr(96+4*i,4)}, v{vL16}, s[{SG}:{SG+3}], {so4(i>>2)} offen offset:{(i&3)*1024} sc1")
    k.lab("k_no_g")
    k.stamp(5, True, grp=6)
    k(f"global_load_dword v30, v28, s[98:99] offset:{F_P*128} sc1")
    for i in range(64):
        k(f"v_accvgpr_read_b32 v{T+i}, a{i}")
    k("s_waitcnt lgkmcnt(0)")
    for i in range(32):
        k(f"v_lshlrev_b32 v{160+2*i}, 16, v{X+i}")
        k(f"v_and_b32 v{161+2*i}, 0xffff0000, v{X+i}")
    spin(k, "k_p_wait", 28, 30, F_P * 128, first=False)
    k.stamp(4, True, grp=6)
    for i in range(8):
        k(f"buffer_load_dwordx4 {vr(128+4*i,4)}, v{vL16}, s[{SEP}:{SEP+3}], {so4(i>>2)} offen offset:{(i&3)*1024} sc1")
    k(f"s_cmp_eq_u32 s{sISS}, 1")
    k("s_cbranch_scc1 k_epi_s")
    for q in range(4):
        k(f"s_waitcnt vmcnt({6-2*q})")
        for i in range(8 * q, 8 * q + 8):
            k(f"v_lshlrev_b32 v8, 16, v{128+i}")
            k(f"v_and_b32 v9, 0xffff0000, v{128+i}")
            k(f"v_pk_add_f32 {vr(T+2*i,2)}, {vr(T+2*i,2)}, v[8:9]")
    for j in range(2):
        silu_n(k, list(range(T + 32 * j, T + 32 * j + 32)), list(range(96, 128)), sC)
        for i in range(16):
            k(f"v_cvt_pk_bf16_f32 v{160+16*j+i}, v{T+32*j+2*i}, v{T+32*j+2*i+1}")
        for c in range(4):
            k(f"buffer_store_dwordx4 {vr(160+16*j+4*c,4)}, v{vL16}, s[{SE}:{SE+3}], {so4(2+j)} offen offset:{c*1024} sc1")
    k("s_waitcnt vmcnt(0)")
    raise_flag(k, "k_g_pub", F_G, sOWNV)
    k.stamp_out(1, 34, sW)
    k("s_endpgm")
    k.lab("k_epi_s")
    for i in range(32):
        k(f"v_lshlrev_b32 v8, 16, v{96+i}")
        k(f"v_and_b32 v9, 0xffff0000, v{96+i}")
        k(f"v_pk_fma_f32 {vr(160+2*i,2)}, {vr(T+2*i,2)}, v[8:9], {vr(160+2*i,2)}")
        k(f"v_pk_mul_f32 {vr(T+2*i,2)}, v[8:9], 1.0 op_sel_hi:[1,0]")
    for j in range(2):
        U = 224 + 16 * j
        for q in range(2):
            k(f"s_waitcnt vmcnt({6-4*j-2*q})")
            for i in range(16 * j + 8 * q, 16 * j + 8 * q + 8):
                k(f"v_lshlrev_b32 v8, 16, v{128+i}")
                k(f"v_and_b32 v9, 0xffff0000, v{128+i}")
                k(f"v_pk_fma_f32 {vr(160+2*i,2)}, v[8:9], {vr(T+2*i,2)}, {vr(160+2*i,2)}")
                k(f"v_cvt_pk_bf16_f32 v{224+i}, v{160+2*i}, v{161+2*i}")
        for nb in range(8):
            k(f"ds_write_b64 v{10+nb}, {vr(U+2*nb,2)} offset:{j*4096}")
    for p in range(4):
        k(f"v_accvgpr_read_b32 v{20+p}, a{128+p}")
    k(f"v_add_u32 v7, s97, v{vL16}")
    k("s_waitcnt lgkmcnt(0)")
    for p in range(8):
        k(f"ds_read_b128 {vr(32+4*p,4)}, v7 offset:{p*1024}")
    for p in range(8):
        k(f"s_waitcnt lgkmcnt({7-p})")
        k(f"buffer_store_dwordx4 {vr(32+4*p,4)}, v{20+(p&3)}, s[{SOU}:{SOU+3}], {'s96' if p >= 4 else '0'} offen offset:{(p&3)*1024} sc1")
    k.stamp_out(1, 34, sW)
    k.lab("k_done")
    k("s_endpgm")
    k.lab("code_end")


HEADER = """; out = x + (attention(ln(x)) @ wo) * silu(silu(ln(x) @ w1) @ w2), one launch, 256 workgroups (1 per CU) x 4 waves.
"""


def main(path):
    k = K(NAME + "_kernel")
    part_a(k)
    part_b(k)
    out = [HEADER.rstrip("\n")]
    if CFG["aslist"]:
        out.append(f"; @launch kernel={k.name} grid=(256,1,1) block=(256,1,1) lds=163840")
    else:
        out.append(f"; @launch grid=(256,1,1) block=(256,1,1) lds=163840")
    out.append('.amdgcn_target "amdgcn-amd-amdhsa--gfx950"')
    out.append(".text")
    out.append(k.text())
    out.append('.section .rodata,"a"')
    out.append(k.kd(512, 102, 256))
    open(path, "w").write("\n".join(out) + "\n")


if __name__ == "__main__":
    path = f"cdna_kernels/{NAME}.s"
    for a in sys.argv[1:]:
        if "=" in a:
            kk, v = a.split("=")
            if kk == "o":
                path = v
            else:
                CFG[kk] = int(v)
    main(path)
```
